```python
import torch

def _softmax(x, axis=-1):
    return torch.softmax(x, dim=axis)
def _gelu(x):
    return torch.nn.functional.gelu(x, approximate="tanh")
def _silu(x):
    return torch.nn.functional.silu(x)
def _sigmoid(x):
    return torch.sigmoid(x)
def _layernorm(x, axis=-1, eps=1e-5):
    m = x.mean(dim=axis, keepdim=True)
    v = x.var(dim=axis, keepdim=True, unbiased=False)
    return (x - m) / torch.sqrt(v + eps)
def _scatter_add(tgt, idx, src, axis=0):
    return tgt.clone().index_add_(axis, idx, src)
def _segment_sum(src, seg, n):
    out = torch.zeros((n,) + src.shape[1:], dtype=src.dtype)
    return out.index_add_(0, seg, src)
def _pad(x, pw):
    flat = tuple(v for pair in reversed(pw) for v in pair)
    return torch.nn.functional.pad(x, flat)

kernel_name = 'recurrent_scan__spectral_fnet__dense_activation_silu__prompt'

def setup_inputs():

    _w = (lambda a: (lambda t: t.to(torch.bfloat16) if t.is_floating_point() else t)(torch.as_tensor(a)))
    def _A_setup():
        B, S, D = 1, 2048, 1024
        ns = torch.arange(S)[:, None] * torch.arange(S)[None, :]
        nd = torch.arange(D)[:, None] * torch.arange(D)[None, :]
        Ws_re = torch.cos(-2.0 * torch.pi * ns / S).to(float)
        Ws_im = torch.sin(-2.0 * torch.pi * ns / S).to(float)
        Wd_re = torch.cos(-2.0 * torch.pi * nd / D).to(float)
        Wd_im = torch.sin(-2.0 * torch.pi * nd / D).to(float)
        return {
            "x": _w((lambda *s: torch.randn(*s, dtype=torch.bfloat16) * 0.05)(B, S, D)),
            "dft_seq_re": _w(Ws_re),
            "dft_seq_im": _w(Ws_im),
            "dft_hid_re": _w(Wd_re),
            "dft_hid_im": _w(Wd_im),
        }
    _A_in = _A_setup()

    def _B_setup():
        B, S, D, F = 1, 2048, 1024, 3584
        return {
            "x": _w((lambda *s: torch.randn(*s, dtype=torch.bfloat16) * 0.05)(B, S, D)),
            "w1": _w((lambda *s: torch.randn(*s, dtype=torch.bfloat16) * 0.4)(D, F) * (D ** -0.5)),
            "w2": _w((lambda *s: torch.randn(*s, dtype=torch.bfloat16) * 0.05)(F, D) * (F ** -0.5)),
        }
    _B_in = _B_setup()

    return {
        "A_x": _A_in["x"],
        "A_dft_seq_re": _A_in["dft_seq_re"],
        "A_dft_seq_im": _A_in["dft_seq_im"],
        "A_dft_hid_re": _A_in["dft_hid_re"],
        "A_dft_hid_im": _A_in["dft_hid_im"],
        "B_x": _B_in["x"],
        "B_w1": _B_in["w1"],
        "B_w2": _B_in["w2"],
    }

def reference(A_x, A_dft_seq_re, A_dft_seq_im, A_dft_hid_re, A_dft_hid_im, B_x, B_w1, B_w2):
    def _A_ref(x, dft_seq_re, dft_seq_im, dft_hid_re, dft_hid_im):
        a = torch.einsum("bsd,ed->bse", x, dft_hid_re)
        b = torch.einsum("bsd,ed->bse", x, dft_hid_im)
        y = torch.einsum("ts,bse->bte", dft_seq_re, a) - torch.einsum("ts,bse->bte", dft_seq_im, b)
        return y

    def _B_ref(x, w1, w2):
        h = torch.einsum("bsd,df->bsf", x, w1)
        h = _silu(h)
        out = torch.einsum("bsf,fd->bsd", h, w2)
        return out

    x = A_x
    xn = _layernorm(x, axis=-1)
    s = _A_ref(xn, A_dft_seq_re, A_dft_seq_im, A_dft_hid_re, A_dft_hid_im)
    g = _silu(_B_ref(xn, B_w1, B_w2))
    return x + s * g
```

```python
import re

class Asm:
    def __init__(self):
        self.lines = []
        self._uid = 0
    def __call__(self, s):
        for l in s.split("\n"):
            l = l.strip()
            if l:
                self.lines.append(l)
    def label(self, name):
        self.lines.append(name + ":")
    def uid(self, p="L"):
        self._uid += 1
        return f"{p}_{self._uid}"
    def nop(self, n):
        while n > 0:
            k = min(n, 16)
            self.lines.append(f"s_nop {k-1}")
            n -= k
    def text(self):
        out = []
        for l in self.lines:
            if l.endswith(":") or l.startswith("."):
                out.append(l)
            else:
                out.append("    " + l)
        return "\n".join(out) + "\n"

def vr(a, n=1):
    return f"v{a}" if n == 1 else f"v[{a}:{a+n-1}]"
def sr(a, n=1):
    return f"s{a}" if n == 1 else f"s[{a}:{a+n-1}]"

_reg_re = re.compile(r"\b([vsa])(?:(\d+)|\[(\d+):(\d+)\])")
def regs_of(op):
    out = set()
    for m in _reg_re.finditer(op):
        k = m.group(1)
        if m.group(2) is not None:
            out.add((k, int(m.group(2))))
        else:
            for i in range(int(m.group(3)), int(m.group(4)) + 1):
                out.add((k, i))
    if re.search(r"\bvcc\b", op): out.add(("vcc", 0))
    if re.search(r"\bm0\b", op): out.add(("m0", 0))
    if re.search(r"\bexec\b", op): out.add(("exec", 0))
    return out

TRANS = ("v_exp_f32", "v_log_f32", "v_rcp_f32", "v_rsq_f32", "v_sqrt_f32", "v_sin_f32", "v_cos_f32")

def split_ops(rest):
    ops = []; depth = 0; cur = ""
    for ch in rest:
        if ch == "[": depth += 1
        if ch == "]": depth -= 1
        if ch == "," and depth == 0:
            ops.append(cur.strip()); cur = ""
        else:
            cur += ch
    if cur.strip(): ops.append(cur.strip())
    return ops

class Ins:
    def __init__(self, line):
        self.line = line
        line = line.split(";")[0].strip()
        parts = line.split(None, 1)
        self.mn = parts[0]
        rest = parts[1] if len(parts) > 1 else ""
        self.ops = split_ops(rest)
        mn = self.mn
        self.is_mfma = mn.startswith("v_mfma")
        self.is_valu = mn.startswith("v_") and not self.is_mfma
        self.is_salu = mn.startswith("s_")
        self.is_vmem = mn.startswith(("buffer_", "global_", "flat_"))
        self.is_ds = mn.startswith("ds_")
        self.is_trans = any(mn.startswith(t) for t in TRANS)
        self.is_dpp = "dpp" in mn or any(k in rest for k in ("row_shr", "row_bcast", "quad_perm", "row_ror", "row_mirror", "row_half_mirror", "row_newbcast", "row_shl"))
        self.is_perm = mn.startswith("v_permlane")
        self.is_rdlane = mn.startswith(("v_readlane", "v_readfirstlane"))
        self.lds_dma = self.is_vmem and re.search(r"\blds\b", rest) is not None
        self.w = set(); self.r = set()
        ops = self.ops
        if self.is_mfma:
            self.w = regs_of(ops[0]); self.ra = regs_of(ops[1]) | regs_of(ops[2]); self.rc = regs_of(ops[3]); self.r = self.ra | self.rc
            self.passes = 8 if "32x32" in mn else 4
        elif self.is_valu:
            if mn.startswith("v_cmp"):
                self.w = regs_of(ops[0]); self.r = set().union(*[regs_of(o) for o in ops[1:]])
            elif self.is_perm:
                self.w = regs_of(ops[0]) | regs_of(ops[1]); self.r = set(self.w)
            elif mn.startswith(("v_add_co", "v_sub_co", "v_addc_co", "v_subb_co")):
                self.w = regs_of(ops[0]) | regs_of(ops[1]); self.r = set().union(*[regs_of(o) for o in ops[2:]])
            else:
                self.w = regs_of(ops[0]); self.r = set().union(*[regs_of(o) for o in ops[1:]]) if len(ops) > 1 else set()
                if mn.startswith(("v_fmac", "v_mac", "v_pk_fmac", "v_dot2c")) or self.is_dpp:
                    self.r |= self.w
                if mn.startswith("v_cndmask") and len(ops) == 3:
                    self.r.add(("vcc", 0))
        elif self.is_ds:
            if "read" in mn or "permute" in mn or "swizzle" in mn:
                self.w = regs_of(ops[0]); self.r = set().union(*[regs_of(o) for o in ops[1:]])
            else:
                self.r = set().union(*[regs_of(o) for o in ops])
        elif self.is_vmem:
            if self.lds_dma:
                self.r = set().union(*[regs_of(o) for o in ops]); self.r.add(("m0", 0))
            elif "load" in mn:
                self.w = regs_of(ops[0]); self.r = set().union(*[regs_of(o) for o in ops[1:]])
            elif ops:
                self.r = set().union(*[regs_of(o) for o in ops])
                if "atomic" in mn and "sc0" in rest:
                    self.w = regs_of(ops[0])
            self.wide_store = ("store" in mn and ("x4" in mn or "x3" in mn))
            if self.wide_store:
                self.data = regs_of(ops[0]) if mn.startswith("buffer") else regs_of(ops[1])
        elif self.is_salu:
            if mn.startswith(("s_cmp", "s_cbranch", "s_branch", "s_waitcnt", "s_barrier", "s_nop", "s_endpgm", "s_sleep", "s_setprio")):
                self.r = set().union(*[regs_of(o) for o in ops]) if ops else set()
            else:
                self.w = regs_of(ops[0]) if ops else set()
                self.r = set().union(*[regs_of(o) for o in ops[1:]]) if len(ops) > 1 else set()
                if "saveexec" in mn: self.w.add(("exec", 0))
    def states(self):
        if self.mn == "s_nop":
            return int(self.ops[0], 0) + 1
        return 1

def need(p, c):
    n = 0; why = ""
    def up(k, w):
        nonlocal n, why
        if k > n: n, why = k, w
    vw = {x for x in p.w if x[0] in "va"}
    sw = {x for x in p.w if x[0] in ("s", "vcc")}
    if p.is_valu:
        if c.is_mfma and vw & c.r: up(2, "valu->mfma")
        if c.is_dpp and vw & c.r: up(2, "valu->dpp")
        if c.is_perm and vw & c.r: up(2, "valu->permlane")
        if c.is_rdlane and vw & c.r: up(1, "valu->readlane")
        if p.is_trans and c.is_valu and not c.is_trans and vw & c.r: up(1, "trans->valu")
        if p.is_trans and c.is_mfma and vw & c.r: up(2, "trans->mfma")
        if sw & c.r:
            if c.is_vmem: up(5, "valu sgpr->vmem")
            if c.is_valu: up(4 if c.is_rdlane or c.mn.startswith("v_writelane") else 2, "valu sgpr->valu")
            if c.is_salu: up(1, "valu sgpr->salu(pad)")
        if ("exec", 0) in p.w:
            if c.is_mfma: up(4, "exec->mfma")
            if c.is_dpp: up(5, "exec->dpp")
    if p.is_mfma:
        big = {4: 8, 8: 12}[p.passes]
        if c.is_mfma:
            if p.w & c.ra: up(big, "mfma D->mfma AB")
            if p.w & c.rc and not (p.w == c.rc and p.passes == c.passes): up({4: 6, 8: 10}[p.passes], "mfma D->mfma C overlap")
            if p.w & c.w and not (p.w == c.w) : up(big, "mfma D->mfma D overlap")
        elif (c.is_valu or c.is_vmem or c.is_ds):
            if p.w & (c.r | c.w): up(big, "mfma D->valu/mem")
            if c.is_valu and (p.rc & c.w): up({4: 3, 8: 7}[p.passes], "mfma C WAR")
    if p.is_salu and ("m0", 0) in p.w and c.is_vmem and c.lds_dma: up(1, "m0->dma")
    if p.is_vmem and getattr(p, "wide_store", False):
        if p.data & c.w: up(2 if c.is_valu else 1, "wide store data WAR")
    return n, why

def check(lines, window=24):
    ins = []
    for l in lines:
        s = l.split(";")[0].strip()
        if not s or s.endswith(":") or s.startswith("."):
            continue
        ins.append(Ins(s))
    probs = []
    for i, c in enumerate(ins):
        dist = 0
        for j in range(i - 1, max(-1, i - window), -1):
            p = ins[j]
            if p.mn in ("s_endpgm", "s_branch"): break
            n, why = need(p, c)
            if n > dist:
                probs.append(f"{why}: need {n} have {dist}: [{p.line}] -> [{c.line}]")
            dist += p.states()
            if dist > 20: break
    return probs
```

```python
import sys
from asmlib import *

NAME = "recurrent_scan__spectral_fnet__dense_activation_silu__prompt"
MB = 1 << 20
XNF_OFF = 0
HF_OFF = 4 * MB
AP_OFF = 20 * MB

def srd(a, d, lo, hi, size, add=0):
    if add == 0:
        a(f"s_mov_b32 s{d}, s{lo}")
        a(f"s_mov_b32 s{d+1}, s{hi}")
    else:
        a(f"s_add_u32 s{d}, s{lo}, {add}")
        a(f"s_addc_u32 s{d+1}, s{hi}, 0")
    a(f"s_mov_b32 s{d+2}, {size}")
    a(f"s_mov_b32 s{d+3}, 0x20000")

def f2u(x):
    import struct
    return "0x%08x" % struct.unpack("<I", struct.pack("<f", x))[0]

def wave_sum(a, v, t):
    a.nop(2)
    a(f"v_add_f32_dpp v{v}, v{v}, v{v} quad_perm:[1,0,3,2] row_mask:0xf bank_mask:0xf")
    a.nop(2)
    a(f"v_add_f32_dpp v{v}, v{v}, v{v} quad_perm:[2,3,0,1] row_mask:0xf bank_mask:0xf")
    a.nop(2)
    a(f"v_add_f32_dpp v{v}, v{v}, v{v} row_half_mirror row_mask:0xf bank_mask:0xf")
    a.nop(2)
    a(f"v_add_f32_dpp v{v}, v{v}, v{v} row_mirror row_mask:0xf bank_mask:0xf")
    a(f"v_mov_b32 v{t}, v{v}")
    a.nop(2)
    a(f"v_permlane16_swap_b32 v{t}, v{v}")
    a(f"v_add_f32 v{v}, v{t}, v{v}")
    a(f"v_mov_b32 v{t}, v{v}")
    a.nop(2)
    a(f"v_permlane32_swap_b32 v{t}, v{v}")
    a(f"v_add_f32 v{v}, v{t}, v{v}")

def rne_bf16(a, v):
    a(f"v_cvt_pk_bf16_f32 v{v}, v{v}, v{v}")
    a(f"v_and_b32 v{v}, 0xffff0000, v{v}")

def gen_prep(a):
    a.label("prep_kernel")
    a("s_cmp_ge_u32 s2, 256")
    a("s_cbranch_scc1 prep_end")
    a("s_load_dwordx4 s[4:7], s[0:1], 0")
    a("s_load_dwordx2 s[8:9], s[0:1], 16")
    a("s_load_dwordx2 s[10:11], s[0:1], 80")
    a("v_and_b32 v1, 63, v0")
    a("v_lshrrev_b32 v2, 6, v0")
    a("s_nop 0")
    a("v_readfirstlane_b32 s32, v2")
    a("s_waitcnt lgkmcnt(0)")
    srd(a, 12, 4, 5, 4 * MB)
    a("s_cmp_ge_u32 s32, 4")
    a("s_cselect_b32 s16, s8, s6")
    a("s_cselect_b32 s17, s9, s7")
    a(f"s_mov_b32 s18, {8*MB}")
    a("s_mov_b32 s19, 0x20000")
    srd(a, 20, 10, 11, 4 * MB, XNF_OFF)
    srd(a, 24, 10, 11, 16 * MB, HF_OFF)
    srd(a, 28, 10, 11, 8 * MB, AP_OFF)
    a("s_lshl_b32 s33, s32, 8")
    a("s_add_u32 s33, s33, s2")
    a("s_lshl_b32 s33, s33, 11")
    a("v_lshlrev_b32 v2, 4, v1")
    a("buffer_load_dwordx4 v[4:7], v2, s[12:15], s33 offen")
    a("buffer_load_dwordx4 v[8:11], v2, s[12:15], s33 offen offset:1024")
    a("v_and_b32 v3, 7, v1")
    a("v_lshlrev_b32 v88, 20, v3")
    a("v_lshrrev_b32 v89, 5, v1")
    a("v_lshl_add_u32 v88, v89, 6, v88")
    a("v_bfe_u32 v90, v1, 3, 2")
    a("v_lshl_add_u32 v88, v90, 3, v88")
    a("s_and_b32 s34, s32, 3")
    a("s_lshl_b32 s34, s34, 7")
    a("s_lshl_b32 s35, s2, 12")
    a("s_add_u32 s34, s34, s35")
    a("buffer_load_dwordx2 v[12:13], v88, s[16:19], s34 offen")
    a("buffer_load_dwordx2 v[14:15], v88, s[16:19], s34 offen offset:32")
    a("v_lshlrev_b32 v91, 4, v3")
    a("v_lshl_add_u32 v91, v89, 13, v91")
    a("v_lshl_add_u32 v91, v90, 8, v91")
    a("s_and_b32 s36, s2, 7")
    a("s_lshl_b32 s37, s36, 1")
    a("s_lshr_b32 s38, s2, 7")
    a("s_add_u32 s37, s37, s38")
    a("s_bfe_u32 s38, s2, 0x30004")
    a("s_lshl_b32 s38, s38, 10")
    a("s_bfe_u32 s39, s2, 0x10003")
    a("s_lshl_b32 s39, s39, 7")
    a("s_add_u32 s38, s38, s39")
    a("s_lshl_b32 s40, s37, 20")
    a("s_lshl_b32 s41, s32, 14")
    a("s_add_u32 s40, s40, s41")
    a("s_add_u32 s40, s40, s38")
    a("s_lshl_b32 s42, s37, 18")
    a("s_add_u32 s42, s42, s38")
    a("s_add_u32 s43, s42, 131072")
    a("v_and_b32 v92, 31, v1")
    a("v_cvt_f32_u32 v92, v92")
    a(f"v_mul_f32 v92, {f2u(1.0/1024)}, v92")
    a("v_lshlrev_b32 v93, 2, v89")
    a("v_cvt_f32_u32 v93, v93")
    a("v_mul_f32 v93, v93, v92")
    for r in range(16):
        K = 8 * (r >> 2) + (r & 3)
        t = 94 + (r & 1) * 3
        a(f"v_fmamk_f32 v{t}, v92, {f2u(float(K))}, v93")
        a(f"v_cos_f32 v{32+r}, v{t}")
        a(f"v_sin_f32 v{48+r}, v{t}")
        a(f"v_mul_f32 v{t}, {f2u(32.0)}, v{t}")
        a(f"v_fract_f32 v{t}, v{t}")
        a(f"v_cos_f32 v{t+1}, v{t}")
        a(f"v_sin_f32 v{t+2}, v{t}")
        if r & 1:
            a("s_nop 0")
            a(f"v_cvt_pk_f16_f32 v{64+(r>>1)}, v95, v98")
            a(f"v_cvt_pk_f16_f32 v{72+(r>>1)}, v96, v99")
            a(f"v_cvt_pk_f16_f32 v{80+(r>>1)}, -v96, -v99")
    a("v_lshrrev_b32 v100, 2, v1")
    a("v_mul_u32_u24 v100, 576, v100")
    a("v_and_b32 v101, 1, v1")
    a("v_mul_u32_u24 v101, 288, v101")
    a("v_add_u32 v100, v100, v101")
    a("v_bfe_u32 v101, v1, 1, 1")
    a("v_lshl_add_u32 v100, v101, 3, v100")
    a("s_lshl_b32 s44, s32, 4")
    a("v_add_u32 v100, s44, v100")
    a("s_waitcnt vmcnt(2)")
    for q in range(8):
        a(f"v_lshlrev_b32 v{16+2*q}, 16, v{4+q}")
        a(f"v_and_b32 v{17+2*q}, 0xffff0000, v{4+q}")
    a("v_pk_add_f32 v[94:95], v[16:17], v[18:19]")
    a("v_pk_add_f32 v[96:97], v[20:21], v[22:23]")
    a("v_pk_add_f32 v[94:95], v[94:95], v[24:25]")
    a("v_pk_add_f32 v[96:97], v[96:97], v[26:27]")
    a("v_pk_add_f32 v[94:95], v[94:95], v[28:29]")
    a("v_pk_add_f32 v[96:97], v[96:97], v[30:31]")
    a("v_pk_add_f32 v[94:95], v[94:95], v[96:97]")
    a("v_add_f32 v94, v94, v95")
    wave_sum(a, 94, 95)
    a(f"v_mul_f32 v94, {f2u(1.0/1024)}, v94")
    a("v_mov_b32 v96, 0")
    a("v_mov_b32 v97, 0")
    for q in range(8):
        a(f"v_pk_add_f32 v[98:99], v[{16+2*q}:{17+2*q}], v[94:95] op_sel_hi:[1,0] neg_lo:[0,1] neg_hi:[0,1]")
        a("v_pk_fma_f32 v[96:97], v[98:99], v[98:99], v[96:97]")
    a("v_add_f32 v96, v96, v97")
    wave_sum(a, 96, 97)
    a(f"v_mul_f32 v96, {f2u(1.0/1024)}, v96")
    rne_bf16(a, 94)
    rne_bf16(a, 96)
    a(f"v_add_f32 v96, {f2u(1e-5)}, v96")
    rne_bf16(a, 96)
    a("v_sqrt_f32 v96, v96")
    a("s_nop 0")
    rne_bf16(a, 96)
    a("v_rcp_f32 v96, v96")
    for q in range(8):
        a(f"v_pk_add_f32 v[98:99], v[{16+2*q}:{17+2*q}], v[94:95] op_sel_hi:[1,0] neg_lo:[0,1] neg_hi:[0,1]")
        a("v_cvt_pk_bf16_f32 v98, v98, v99")
        a("v_and_b32 v99, 0xffff0000, v98")
        a("v_lshlrev_b32 v98, 16, v98")
        a("v_pk_mul_f32 v[98:99], v[98:99], v[96:97] op_sel_hi:[1,0]")
        a(f"v_cvt_pk_bf16_f32 v{4+q}, v98, v99")
    a("ds_write_b64 v100, v[4:5]")
    a("ds_write_b64 v100, v[6:7] offset:144")
    a("ds_write_b64 v100, v[8:9] offset:9216")
    a("ds_write_b64 v100, v[10:11] offset:9360")
    a("s_waitcnt vmcnt(0)")
    a("buffer_store_dwordx4 v[12:15], v91, s[24:27], s40 offen")
    a("v_lshrrev_b32 v103, 3, v0")
    a("v_mul_u32_u24 v101, 144, v103")
    a("v_lshl_add_u32 v101, v3, 4, v101")
    a("v_lshrrev_b32 v102, 5, v0")
    a("v_lshlrev_b32 v102, 13, v102")
    a("v_lshl_add_u32 v102, v90, 8, v102")
    a("v_lshl_add_u32 v102, v3, 4, v102")
    a("v_lshrrev_b32 v103, 2, v0")
    a("v_mul_u32_u24 v103, 144, v103")
    a("v_and_b32 v94, 3, v0")
    a("v_lshl_add_u32 v103, v94, 2, v103")
    a("v_lshrrev_b32 v95, 4, v0")
    a("v_lshlrev_b32 v95, 6, v95")
    a("v_bfe_u32 v94, v0, 1, 1")
    a("v_lshl_add_u32 v95, v94, 5, v95")
    a("v_bfe_u32 v94, v0, 2, 2")
    a("v_lshl_add_u32 v95, v94, 3, v95")
    a("v_and_b32 v94, 1, v0")
    a("v_lshl_add_u32 v95, v94, 2, v95")
    a("v_add_u32 v95, 18432, v95")
    a("s_waitcnt lgkmcnt(0)")
    a("s_barrier")
    a("ds_read_b128 v[104:107], v101")
    a("ds_read_b128 v[108:111], v101 offset:9216")
    for s1 in range(8):
        a(f"ds_read_b32 v{4+s1}, v103 offset:{16*s1}")
    a("s_waitcnt lgkmcnt(8)")
    a("buffer_store_dwordx4 v[104:107], v102, s[20:23], s42 offen")
    a("buffer_store_dwordx4 v[108:111], v102, s[20:23], s43 offen")
    a("s_waitcnt lgkmcnt(0)")
    for q in range(8):
        a(f"v_lshlrev_b32 v{16+2*q}, 16, v{4+q}")
        a(f"v_and_b32 v{17+2*q}, 0xffff0000, v{4+q}")
    X = lambda s: f"v[{16+2*s}:{17+2*s}]"
    T = lambda i: f"v[{112+2*i}:{113+2*i}]"
    NEG = "neg_lo:[0,1] neg_hi:[0,1]"
    a(f"v_pk_add_f32 {T(0)}, {X(0)}, {X(4)}")
    a(f"v_pk_add_f32 {T(1)}, {X(0)}, {X(4)} {NEG}")
    a(f"v_pk_add_f32 {T(2)}, {X(2)}, {X(6)}")
    a(f"v_pk_add_f32 {T(3)}, {X(2)}, {X(6)} {NEG}")
    a(f"v_pk_add_f32 {T(4)}, {X(1)}, {X(5)}")
    a(f"v_pk_add_f32 {T(5)}, {X(1)}, {X(5)} {NEG}")
    a(f"v_pk_add_f32 {T(6)}, {X(3)}, {X(7)}")
    a(f"v_pk_add_f32 {T(7)}, {X(3)}, {X(7)} {NEG}")
    a(f"v_pk_add_f32 {X(0)}, {T(0)}, {T(2)}")
    a(f"v_pk_add_f32 {X(4)}, {T(0)}, {T(2)} {NEG}")
    a(f"v_pk_add_f32 {X(1)}, {T(4)}, {T(6)}")
    a(f"v_pk_add_f32 {X(5)}, {T(6)}, {T(4)} {NEG}")
    a(f"v_pk_add_f32 {X(2)}, {T(5)}, {T(7)} {NEG}")
    a(f"v_pk_add_f32 {X(3)}, {T(5)}, {T(7)}")
    a(f"s_mov_b32 s46, {f2u(0.7071067811865476)}")
    a("s_mov_b32 s47, s46")
    a(f"v_pk_add_f32 {T(0)}, {X(0)}, {X(1)}")
    a(f"v_pk_add_f32 {T(2)}, {X(0)}, {X(1)} {NEG}")
    a(f"v_pk_fma_f32 {T(4)}, {X(2)}, s[46:47], {T(1)}")
    a(f"v_pk_fma_f32 {T(5)}, {X(3)}, s[46:47], {T(3)} neg_lo:[1,0,1] neg_hi:[1,0,1]")
    a(f"v_pk_fma_f32 {T(6)}, {X(2)}, s[46:47], {T(1)} neg_lo:[1,0,0] neg_hi:[1,0,0]")
    a(f"v_pk_fma_f32 {T(7)}, {X(3)}, s[46:47], {T(3)} neg_lo:[1,0,0] neg_hi:[1,0,0]")
    srcs = [112+0, 112+4, 112+8, 112+10, 16+8, 16+10, 112+12, 112+14]
    for k, s in enumerate(srcs):
        a(f"v_cvt_pk_f16_f32 v{4+k}, v{s}, v{s+1}")
    for k in range(8):
        a(f"ds_write_b32 v95, v{4+k} offset:{2048*k}")
    a("s_sub_u32 s48, 8, s32")
    a("s_cmp_gt_u32 s32, 4")
    a("s_cselect_b32 s48, s48, s32")
    a("s_cselect_b32 s49, 0x80008000, 0")
    a("s_lshl_b32 s50, s48, 1")
    a("s_cmp_eq_u32 s48, 4")
    a("s_cselect_b32 s50, 1, s50")
    a("s_and_b32 s51, s32, 3")
    a("s_cmp_eq_u32 s51, 0")
    a("s_cselect_b32 s51, 0, -1")
    a("s_lshl_b32 s50, s50, 11")
    a("s_add_u32 s50, s50, 18432")
    a("v_lshlrev_b32 v94, 8, v89")
    a("v_bfe_u32 v96, v1, 2, 2")
    a("v_lshl_add_u32 v94, v96, 6, v94")
    a("v_bfe_u32 v96, v1, 4, 1")
    a("v_lshl_add_u32 v94, v96, 5, v94")
    a("v_and_b32 v96, 3, v1")
    a("v_lshl_add_u32 v94, v96, 3, v94")
    a("v_add_u32 v94, s50, v94")
    a("v_and_b32 v97, 31, v1")
    a("v_lshlrev_b32 v97, 6, v97")
    a("v_lshl_add_u32 v97, v89, 4, v97")
    a("s_lshl_b32 s52, s32, 9")
    a("s_add_u32 s52, s52, s2")
    a("s_lshl_b32 s52, s52, 11")
    a(f"s_add_u32 s53, s52, {256*2048}")
    a("s_waitcnt lgkmcnt(0)")
    a("s_barrier")
    for part in range(2):
        for kk in range(2):
            for hh in range(2):
                d = 136 + part * 8 + kk * 4 + hh * 2
                a(f"ds_read_b64_tr_b16 v[{d}:{d+1}], v94 offset:{part*2048 + kk*1024 + hh*512}")
    a("s_waitcnt lgkmcnt(0)")
    for i in range(8):
        a(f"v_and_b32 v{144+i}, s51, v{144+i}")
        a(f"v_xor_b32 v{144+i}, s49, v{144+i}")
    Cc = lambda kk: f"v[{64+4*kk}:{67+4*kk}]"
    Ss = lambda kk: f"v[{72+4*kk}:{75+4*kk}]"
    NS = lambda kk: f"v[{80+4*kk}:{83+4*kk}]"
    def cplx(re_base, im_base, Dre, Dim):
        R = lambda kk: f"v[{re_base+4*kk}:{re_base+3+4*kk}]"
        I = lambda kk: f"v[{im_base+4*kk}:{im_base+3+4*kk}]"
        M = "v_mfma_f32_32x32x16_f16"
        a(f"{M} {Dre}, {R(0)}, {Cc(0)}, 0")
        a(f"{M} {Dim}, {R(0)}, {NS(0)}, 0")
        a(f"{M} {Dre}, {R(1)}, {Cc(1)}, {Dre}")
        a(f"{M} {Dim}, {R(1)}, {NS(1)}, {Dim}")
        a(f"{M} {Dre}, {I(0)}, {Ss(0)}, {Dre}")
        a(f"{M} {Dim}, {I(0)}, {Cc(0)}, {Dim}")
        a(f"{M} {Dre}, {I(1)}, {Ss(1)}, {Dre}")
        a(f"{M} {Dim}, {I(1)}, {Cc(1)}, {Dim}")
    cplx(136, 144, "v[104:119]", "v[120:135]")
    a.nop(12)
    for r in range(0, 16, 2):
        P = lambda b: f"v[{b+r}:{b+r+1}]"
        a(f"v_pk_mul_f32 v[16:17], {P(104)}, {P(32)}")
        a(f"v_pk_mul_f32 v[18:19], {P(120)}, {P(32)}")
        a(f"v_pk_fma_f32 v[16:17], {P(120)}, {P(48)}, v[16:17]")
        a(f"v_pk_fma_f32 v[18:19], {P(104)}, {P(48)}, v[18:19] neg_lo:[1,0,0] neg_hi:[1,0,0]")
        a(f"v_cvt_pk_f16_f32 v{152+(r>>1)}, v16, v17")
        a(f"v_cvt_pk_f16_f32 v{160+(r>>1)}, v18, v19")
    a.nop(2)
    cplx(152, 160, "v[104:119]", "v[120:135]")
    a.nop(12)
    for r in range(0, 16, 2):
        a(f"v_cvt_pk_bf16_f32 v{136+(r>>1)}, v{104+r}, v{105+r}")
        a(f"v_cvt_pk_bf16_f32 v{144+(r>>1)}, -v{120+r}, -v{121+r}")
    a.nop(2)
    for base in (136, 140, 144, 148):
        a(f"v_permlane32_swap_b32 v{base}, v{base+2}")
        a(f"v_permlane32_swap_b32 v{base+1}, v{base+3}")
    a("buffer_store_dwordx4 v[136:139], v97, s[28:31], s52 offen")
    a("buffer_store_dwordx4 v[140:143], v97, s[28:31], s52 offen offset:32")
    a("buffer_store_dwordx4 v[144:147], v97, s[28:31], s53 offen")
    a("buffer_store_dwordx4 v[148:151], v97, s[28:31], s53 offen offset:32")
    a.label("prep_end")
    a("s_endpgm")

def silu_pair(a, src, t, dst):
    a(f"v_pk_mul_f32 v[{t}:{t+1}], v[{src}:{src+1}], s[60:61]")
    a(f"v_exp_f32 v{t}, v{t}")
    a(f"v_exp_f32 v{t+1}, v{t+1}")
    a("s_nop 0")
    a(f"v_pk_add_f32 v[{t}:{t+1}], v[{t}:{t+1}], 1.0 op_sel_hi:[1,0]")
    a(f"v_rcp_f32 v{t}, v{t}")
    a(f"v_rcp_f32 v{t+1}, v{t+1}")
    a("s_nop 0")
    a(f"v_pk_mul_f32 v[{t}:{t+1}], v[{t}:{t+1}], v[{src}:{src+1}]")
    a(f"v_cvt_pk_bf16_f32 v{dst}, v{t}, v{t+1}")

def silu_many(a, srcs, temps, dsts):
    n = len(srcs)
    for i in range(n):
        a(f"v_pk_mul_f32 v[{temps[i]}:{temps[i]+1}], v[{srcs[i]}:{srcs[i]+1}], s[60:61]")
    for i in range(n):
        a(f"v_exp_f32 v{temps[i]}, v{temps[i]}")
        a(f"v_exp_f32 v{temps[i]+1}, v{temps[i]+1}")
    if n == 1: a("s_nop 0")
    for i in range(n):
        a(f"v_pk_add_f32 v[{temps[i]}:{temps[i]+1}], v[{temps[i]}:{temps[i]+1}], 1.0 op_sel_hi:[1,0]")
    for i in range(n):
        a(f"v_rcp_f32 v{temps[i]}, v{temps[i]}")
        a(f"v_rcp_f32 v{temps[i]+1}, v{temps[i]+1}")
    if n == 1: a("s_nop 0")
    for i in range(n):
        a(f"v_pk_mul_f32 v[{temps[i]}:{temps[i]+1}], v[{temps[i]}:{temps[i]+1}], v[{srcs[i]}:{srcs[i]+1}]")
    for i in range(n):
        a(f"v_cvt_pk_bf16_f32 v{dsts[i]}, v{temps[i]}, v{temps[i]+1}")

def interleave(a, mfmas, others, first=0, per=1):
    oi = 0
    for i, m in enumerate(mfmas):
        a(m)
        if i >= first:
            for _ in range(per):
                if oi < len(others):
                    a(others[oi]); oi += 1
    while oi < len(others):
        a(others[oi]); oi += 1

G1_STAGE = 45056
def gen_g1(a):
    a.label("g1_kernel")
    a("s_cmp_ge_u32 s2, 256")
    a("s_cbranch_scc1 g1_end")
    a("s_load_dwordx2 s[4:5], s[0:1], 48")
    a("s_load_dwordx2 s[10:11], s[0:1], 80")
    a("v_and_b32 v1, 63, v0")
    a("v_lshrrev_b32 v2, 6, v0")
    a("s_nop 0")
    a("v_readfirstlane_b32 s32, v2")
    a("s_and_b32 s33, s2, 1")
    a("s_lshl_b32 s33, s33, 3")
    a("s_bfe_u32 s34, s2, 0x30003")
    a("s_add_u32 s33, s33, s34")
    a("s_bfe_u32 s34, s2, 0x20001")
    a("s_lshl_b32 s34, s34, 2")
    a("s_lshr_b32 s35, s2, 6")
    a("s_add_u32 s34, s34, s35")
    a("s_waitcnt lgkmcnt(0)")
    a("s_lshl_b32 s36, s33, 18")
    srd(a, 12, 10, 11, 262144, "s36")
    srd(a, 16, 4, 5, 1024 * 3584 * 2)
    a("s_lshl_b32 s36, s33, 20")
    a(f"s_add_u32 s36, s36, {HF_OFF}")
    srd(a, 20, 10, 11, MB, "s36")
    a("s_and_b32 s37, s32, 3")
    a("s_cmp_ge_u32 s32, 4")
    a("s_cbranch_scc0 g1_consumer")
    a("s_lshl_b32 s38, s37, 12")
    a("v_lshlrev_b32 v2, 4, v1")
    a("v_add_u32 v2, s38, v2")
    a("s_mul_i32 s39, s37, 16*7168")
    a("s_mul_i32 s40, s34, 448")
    a("s_add_u32 s39, s39, s40")
    a("s_movk_i32 s41, 2341")
    a("s_movk_i32 s42, 7168")
    for q in range(7):
        a(f"v_add_u32 v10, {64*q}, v1")
        a("v_mul_u32_u24 v11, s41, v10")
        a("v_lshrrev_b32 v11, 16, v11")
        a("v_mul_u32_u24 v12, 28, v11")
        a("v_sub_u32 v12, v10, v12")
        a("v_bfe_u32 v13, v11, 2, 1")
        a("v_lshlrev_b32 v13, 1, v13")
        a("v_xor_b32 v12, v12, v13")
        a("v_mul_u32_u24 v11, s42, v11")
        a("v_lshl_add_u32 v11, v12, 4, v11")
        a(f"v_add_u32 v{3+q}, s39, v11")
    a("s_mul_i32 s43, s37, 7168")
    a("s_add_u32 s43, s43, 16384")
    a("s_mov_b32 s44, 0")
    a("s_mov_b32 s45, 0")
    a("s_mov_b32 s46, 0")
    def issue():
        a("s_add_u32 m0, s46, s38")
        a("s_nop 0")
        for q in range(4):
            a(f"buffer_load_dwordx4 v2, s[12:15], s44 offen offset:{1024*q} lds")
        a("s_add_u32 m0, s46, s43")
        for q in range(7):
            a("s_nop 0")
            a(f"buffer_load_dwordx4 v{3+q}, s[16:19], s45 offen lds")
            if q < 6: a("s_add_u32 m0, m0, 1024")
        a("s_add_u32 s44, s44, 16384")
        a(f"s_add_u32 s45, s45, {64*7168}")
        a(f"s_add_u32 s46, s46, {G1_STAGE}")
        a(f"s_cmp_eq_u32 s46, {3*G1_STAGE}")
        a("s_cselect_b32 s46, 0, s46")
    issue(); issue()
    a("s_mov_b32 s47, 0")
    a.label("g1_ld_loop")
    a("s_waitcnt vmcnt(11)")
    a("s_barrier")
    issue()
    a("s_add_u32 s47, s47, 1")
    a("s_cmp_lt_u32 s47, 14")
    a("s_cbranch_scc1 g1_ld_loop")
    a("s_waitcnt vmcnt(11)")
    a("s_barrier")
    a("s_waitcnt vmcnt(0)")
    a("s_barrier")
    a("s_endpgm")
    a.label("g1_consumer")
    ACC = 16
    SET = [128, 172]
    a("s_lshr_b32 s38, s37, 1")
    a("s_and_b32 s39, s37, 1")
    a("s_lshl_b32 s40, s38, 12")
    a("v_lshlrev_b32 v2, 4, v1")
    a("v_add_u32 v2, s40, v2")
    a("v_lshrrev_b32 v10, 2, v1")
    a("v_mul_u32_u24 v10, 448, v10")
    a("v_and_b32 v11, 3, v1")
    a("v_lshl_add_u32 v10, v11, 3, v10")
    a("v_add_u32 v10, 16384, v10")
    a("v_bfe_u32 v11, v1, 4, 1")
    a("v_lshlrev_b32 v11, 5, v11")
    a("s_mul_i32 s41, s39, 192")
    a("v_add_u32 v3, v10, v11")
    a("v_add_u32 v3, s41, v3")
    a("v_sub_u32 v4, v10, v11")
    a("v_add_u32 v4, s41, v4")
    a("s_lshl_b32 s42, s39, 5")
    a("v_xor_b32 v5, s42, v11")
    a("v_add_u32 v5, v10, v5")
    a("v_add_u32 v5, 384, v5")
    for i in range(112):
        a(f"v_mov_b32 v{ACC+i}, 0")
    a("s_mov_b32 s46, 0")
    a("v_mov_b32 v6, v2"); a("v_mov_b32 v7, v3"); a("v_mov_b32 v8, v4"); a("v_mov_b32 v9, v5")
    def reads(st, kb):
        L = []
        b = SET[st]
        order = [("a", 0), ("w", 0), ("w", 1), ("a", 1), ("w", 2), ("w", 3), ("a", 2), ("w", 4), ("w", 5), ("a", 3), ("w", 6)]
        for kind, i in order:
            if kind == "a":
                L.append(f"ds_read_b128 v[{b+4*i}:{b+4*i+3}], v6 offset:{kb*8192 + i*1024}")
            else:
                for hh in range(2):
                    d = b + 16 + 4 * i + 2 * hh
                    ro = (32 * kb + 16 * hh) * 448
                    if i < 6:
                        L.append(f"ds_read_b64_tr_b16 v[{d}:{d+1}], v{7 + (i & 1)} offset:{ro + i*32}")
                    else:
                        L.append(f"ds_read_b64_tr_b16 v[{d}:{d+1}], v9 offset:{ro}")
        return L
    def mfmas(st):
        b = SET[st]
        L = []
        for f in range(4):
            for nb in range(7):
                c = ACC + (f * 7 + nb) * 4
                L.append(f"v_mfma_f32_16x16x32_bf16 v[{c}:{c+3}], v[{b+16+4*nb}:{b+19+4*nb}], v[{b+4*f}:{b+3+4*f}], v[{c}:{c+3}]")
        return L
    def adv():
        return [f"s_add_u32 s46, s46, {G1_STAGE}", f"s_cmp_eq_u32 s46, {3*G1_STAGE}", "s_cselect_b32 s46, 0, s46",
                "v_add_u32 v6, s46, v2", "v_add_u32 v7, s46, v3", "v_add_u32 v8, s46, v4", "v_add_u32 v9, s46, v5"]
    a("s_barrier")
    for r in reads(0, 0): a(r)
    a("s_mov_b32 s47, 0")
    a.label("g1_c_loop")
    a("s_waitcnt lgkmcnt(0)")
    interleave(a, mfmas(0), reads(1, 1) + adv())
    a("s_waitcnt lgkmcnt(0)")
    a("s_barrier")
    interleave(a, mfmas(1), reads(0, 0))
    a("s_add_u32 s47, s47, 1")
    a("s_cmp_lt_u32 s47, 15")
    a("s_cbranch_scc1 g1_c_loop")
    a("s_waitcnt lgkmcnt(0)")
    interleave(a, mfmas(0), reads(1, 1))
    a("s_waitcnt lgkmcnt(0)")
    interleave(a, mfmas(1), [])
    a(f"s_mov_b32 s60, {f2u(-1.4426950408889634)}")
    a("s_mov_b32 s61, s60")
    a("s_mul_i32 s48, s34, 7")
    a("s_mul_i32 s49, s39, 3")
    a("s_add_u32 s49, s49, s48")
    a("s_add_u32 s49, s49, 16")
    a("s_lshl_b32 s49, s49, 13")
    a("s_add_u32 s50, s49, 8192")
    a("s_add_u32 s51, s49, 16384")
    a("s_add_u32 s52, s48, 22")
    a("s_lshl_b32 s52, s52, 13")
    a("s_lshl_b32 s53, s39, 3")
    a("s_add_u32 s52, s52, s53")
    a.nop(4)
    for f in range(4):
        for pp in range(3):
            c = ACC + (f * 7 + 2 * pp) * 4
            d = 128 + ((f * 3 + pp) & 1) * 4
            silu_many(a, [c, c + 2, c + 4, c + 6], [140, 142, 144, 146], [d, d + 1, d + 2, d + 3])
            a(f"buffer_store_dwordx4 v[{d}:{d+3}], v2, s[20:23], s{49+pp} offen offset:{f*1024}")
        c = ACC + (f * 7 + 6) * 4
        d = 136 + (f & 1) * 2
        silu_many(a, [c, c + 2], [140, 142], [d, d + 1])
        a(f"buffer_store_dwordx2 v[{d}:{d+1}], v2, s[20:23], s52 offen offset:{f*1024}")
    a.label("g1_end")
    a("s_endpgm")

G2_STAGE = 24576
G2_R = 6
def gen_g2(a):
    a.label("g2_kernel")
    a("s_cmp_ge_u32 s2, 256")
    a("s_cbranch_scc1 g2_end")
    a("s_load_dwordx2 s[4:5], s[0:1], 0")
    a("s_load_dwordx4 s[64:67], s[0:1], 56")
    a("s_load_dwordx2 s[10:11], s[0:1], 80")
    a("v_and_b32 v1, 63, v0")
    a("v_lshrrev_b32 v2, 6, v0")
    a("s_nop 0")
    a("v_readfirstlane_b32 s32, v2")
    a("s_and_b32 s33, s2, 3")
    a("s_lshl_b32 s33, s33, 2")
    a("s_bfe_u32 s34, s2, 0x20003")
    a("s_add_u32 s33, s33, s34")
    a("s_bfe_u32 s34, s2, 0x10002")
    a("s_lshl_b32 s34, s34, 3")
    a("s_lshr_b32 s35, s2, 5")
    a("s_add_u32 s34, s34, s35")
    a("s_waitcnt lgkmcnt(0)")
    a("s_lshl_b32 s36, s33, 20")
    a(f"s_add_u32 s36, s36, {HF_OFF}")
    srd(a, 12, 10, 11, MB, "s36")
    a("s_lshr_b32 s35, s33, 1")
    a("s_lshl_b32 s36, s35, 20")
    a(f"s_add_u32 s36, s36, {AP_OFF}")
    srd(a, 16, 10, 11, MB, "s36")
    srd(a, 20, 64, 65, 1024 * 3584 * 2)
    srd(a, 24, 4, 5, 4 * MB)
    srd(a, 28, 66, 67, 4 * MB)
    a("s_and_b32 s37, s32, 3")
    a("s_cmp_ge_u32 s32, 4")
    a("s_cbranch_scc0 g2_consumer")
    a("s_lshl_b32 s38, s37, 12")
    a("v_lshlrev_b32 v2, 4, v1")
    a("v_add_u32 v2, s38, v2")
    a("v_lshrrev_b32 v3, 3, v1")
    a("v_lshlrev_b32 v3, 11, v3")
    a("v_lshrrev_b32 v4, 4, v1")
    a("v_lshlrev_b32 v4, 1, v4")
    a("v_and_b32 v5, 7, v1")
    a("v_xor_b32 v4, v4, v5")
    a("v_lshl_add_u32 v3, v4, 4, v3")
    a("s_lshl_b32 s39, s37, 15")
    a("s_lshl_b32 s40, s34, 7")
    a("s_add_u32 s39, s39, s40")
    a("v_add_u32 v3, s39, v3")
    a("v_add_u32 v4, 16384, v3")
    a("s_lshl_b32 s43, s37, 11")
    a("s_add_u32 s43, s43, 16384")
    a("s_mov_b32 s44, 0")
    a("s_mov_b32 s45, 0")
    a("s_mov_b32 s46, 0")
    def issue(srdB):
        a("s_add_u32 m0, s46, s38")
        a("s_nop 0")
        for q in range(4):
            a(f"buffer_load_dwordx4 v2, s[12:15], s44 offen offset:{1024*q} lds")
        a("s_add_u32 m0, s46, s43")
        a("s_nop 0")
        a(f"buffer_load_dwordx4 v3, {srdB}, s45 offen lds")
        a("s_add_u32 m0, m0, 1024")
        a("s_nop 0")
        a(f"buffer_load_dwordx4 v4, {srdB}, s45 offen lds")
        a("s_add_u32 s44, s44, 16384")
        a("s_add_u32 s45, s45, 131072")
        a(f"s_add_u32 s46, s46, {G2_STAGE}")
        a(f"s_cmp_eq_u32 s46, {G2_R*G2_STAGE}")
        a("s_cselect_b32 s46, 0, s46")
    for _ in range(5): issue("s[16:19]")
    for n in range(3):
        a("s_waitcnt vmcnt(24)")
        a("s_barrier")
        issue("s[16:19]")
    a("s_mov_b32 s45, 0")
    a("s_mov_b32 s47, 3")
    a.label("g2_ld_loop")
    a("s_waitcnt vmcnt(24)")
    a("s_barrier")
    issue("s[20:23]")
    a("s_add_u32 s47, s47, 1")
    a("s_cmp_lt_u32 s47, 59")
    a("s_cbranch_scc1 g2_ld_loop")
    for n in range(59, 64):
        a(f"s_waitcnt vmcnt({(63-n)*6})")
        a("s_barrier")
    a("s_endpgm")
    a.label("g2_consumer")
    ACO = 32
    ACY = 96
    SET = [128, 176]
    XR = 224
    a("s_and_b32 s38, s37, 1")
    a("s_lshr_b32 s39, s37, 1")
    a("s_lshl_b32 s40, s39, 12")
    a("s_lshl_b32 s41, s38, 11")
    a("s_add_u32 s42, s40, s41")
    a("v_lshlrev_b32 v10, 4, v1")
    a("v_add_u32 v2, s42, v10")
    a("s_lshl_b32 s43, s38, 13")
    a("v_add_u32 v3, s43, v2")
    a("s_xor_b32 s41, s41, 2048")
    a("s_add_u32 s42, s40, s41")
    a("s_add_u32 s42, s42, s43")
    a("v_add_u32 v4, s42, v10")
    a("v_lshrrev_b32 v11, 2, v1")
    a("v_lshlrev_b32 v11, 7, v11")
    a("v_and_b32 v12, 3, v1")
    a("v_lshl_add_u32 v11, v12, 3, v11")
    a("v_add_u32 v11, 16384, v11")
    a("v_bfe_u32 v12, v1, 3, 2")
    for nb in range(4):
        a(f"v_xor_b32 v13, {nb}, v12")
        a(f"v_lshl_add_u32 v{5+nb}, v13, 5, v11")
    a("v_and_b32 v9, 7, v1")
    a("v_lshlrev_b32 v9, 19, v9")
    a("v_bfe_u32 v10, v1, 3, 1")
    a("v_lshl_add_u32 v9, v10, 14, v9")
    a("v_bfe_u32 v10, v1, 4, 1")
    a("v_lshl_add_u32 v9, v10, 5, v9")
    a("v_bfe_u32 v10, v1, 5, 1")
    a("v_lshl_add_u32 v9, v10, 4, v9")
    a("s_and_b32 s48, s33, 1")
    a("s_lshl_b32 s48, s48, 4")
    a("s_lshl_b32 s49, s39, 3")
    a("s_add_u32 s48, s48, s49")
    a("s_lshl_b32 s49, s38, 2")
    a("s_add_u32 s48, s48, s49")
    a("s_lshl_b32 s48, s48, 3")
    a("s_add_u32 s48, s48, s35")
    a("s_lshl_b32 s48, s48, 11")
    a("s_lshl_b32 s49, s34, 7")
    a("s_add_u32 s48, s48, s49")
    a(f"s_add_u32 s49, s48, {16*2048}")
    for fp in range(2):
        for pp in range(2):
            d = XR + (fp * 2 + pp) * 4
            a(f"buffer_load_dwordx4 v[{d}:{d+3}], v9, s[24:27], s{48+fp} offen offset:{pp*64}")
    for i in range(96):
        a(f"v_mov_b32 v{ACO+i}, 0")
    a("s_mov_b32 s46, 0")
    a("s_lshl_b32 s50, s38, 12")
    def adv(ytype_next):
        L = [f"s_add_u32 s46, s46, {G2_STAGE}", f"s_cmp_eq_u32 s46, {G2_R*G2_STAGE}", "s_cselect_b32 s46, 0, s46"]
        if ytype_next:
            L += ["v_add_u32 v14, s46, v2"] + [f"v_add_u32 v{16+nb}, s46, v{5+nb}" for nb in range(4)]
        else:
            L += ["v_add_u32 v14, s46, v3", "v_add_u32 v15, s46, v4"] + [f"v_add_u32 v{16+nb}, s46, v{5+nb}" for nb in range(4)]
        return L
    def reads_y(st):
        b = SET[st]; L = []
        for kb in range(2):
            for fp in range(2):
                d = b + kb * 24 + fp * 4
                L.append(f"ds_read_b128 v[{d}:{d+3}], v14 offset:{kb*8192 + fp*1024}")
            for nb in range(4):
                for hh in range(2):
                    d = b + kb * 24 + 8 + nb * 4 + hh * 2
                    L.append(f"ds_read_b64_tr_b16 v[{d}:{d+1}], v{16+nb} offset:{kb*4096 + hh*2048}")
        return L
    def mfmas_y(st):
        b = SET[st]; L = []
        for kb in range(2):
            for fp in range(2):
                for nb in range(4):
                    c = ACY + (fp * 4 + nb) * 4
                    w = b + kb * 24 + 8 + nb * 4; x = b + kb * 24 + fp * 4
                    L.append(f"v_mfma_f32_16x16x32_bf16 v[{c}:{c+3}], v[{w}:{w+3}], v[{x}:{x+3}], v[{c}:{c+3}]")
        return L
    def reads_f(st):
        b = SET[st]; L = []
        for i in range(4):
            d = b + i * 4
            L.append(f"ds_read_b128 v[{d}:{d+3}], v{14 + (i >> 1)} offset:{(i & 1)*1024}")
            for hh in range(2):
                d = b + 16 + i * 4 + hh * 2
                L.append(f"ds_read_b64_tr_b16 v[{d}:{d+1}], v{16+i} offset:{hh*2048}")
        return L
    def mfmas_f(st):
        b = SET[st]; L = []
        for fp in range(4):
            for nb in range(4):
                c = ACO + (fp * 4 + nb) * 4
                w = b + 16 + nb * 4; x = b + fp * 4
                L.append(f"v_mfma_f32_16x16x32_bf16 v[{c}:{c+3}], v[{w}:{w+3}], v[{x}:{x+3}], v[{c}:{c+3}]")
        return L
    a("v_mov_b32 v14, v2")
    for nb in range(4): a(f"v_mov_b32 v{16+nb}, v{5+nb}")
    a("s_barrier")
    for r in reads_y(0): a(r)
    for s in range(8):
        nxt_y = s + 1 < 8
        if not nxt_y:
            for nb in range(4): a(f"v_add_u32 v{5+nb}, s50, v{5+nb}")
        for l in adv(nxt_y): a(l)
        a("s_waitcnt lgkmcnt(0)")
        a("s_barrier")
        interleave(a, mfmas_y(s & 1), reads_y((s + 1) & 1) if nxt_y else reads_f((s + 1) & 1), per=2)
    a("s_mov_b32 s47, 0")
    a.label("g2_c_loop")
    for st in range(2):
        for l in adv(False): a(l)
        a("s_waitcnt lgkmcnt(0)")
        a("s_barrier")
        interleave(a, mfmas_f(st), reads_f(st ^ 1))
    a("s_add_u32 s47, s47, 1")
    a("s_cmp_lt_u32 s47, 27")
    a("s_cbranch_scc1 g2_c_loop")
    for l in adv(False): a(l)
    a("s_waitcnt lgkmcnt(0)")
    a("s_barrier")
    interleave(a, mfmas_f(0), reads_f(1))
    a("s_waitcnt lgkmcnt(0)")
    interleave(a, mfmas_f(1), [])
    a("s_lshl_b32 s51, s37, 13")
    a("v_lshlrev_b32 v10, 4, v1")
    a("v_add_u32 v11, s51, v10")
    a("s_xor_b32 s51, s51, 8192")
    a("v_add_u32 v12, s51, v10")
    a(f"s_mov_b32 s60, {f2u(-1.4426950408889634)}")
    a("s_mov_b32 s61, s60")
    a.nop(4)
    for i in range(8):
        c = ACO + 32 + i * 4
        a(f"ds_write_b128 v11, v[{c}:{c+3}] offset:{i*1024}")
    a("s_waitcnt lgkmcnt(0)")
    a("s_barrier")
    for i in range(8):
        d = 128 + i * 4
        a(f"ds_read_b128 v[{d}:{d+3}], v12 offset:{i*1024}")
    a("s_waitcnt lgkmcnt(0) vmcnt(0)")
    for i in range(16):
        c = ACO + 2 * i; d = 128 + 2 * i
        a(f"v_pk_add_f32 v[{c}:{c+1}], v[{c}:{c+1}], v[{d}:{d+1}]")
    for i in range(16):
        c = ACO + 2 * i
        a(f"v_cvt_pk_bf16_f32 v{c}, v{c}, v{c+1}")
        a(f"v_and_b32 v{c+1}, 0xffff0000, v{c}")
        a(f"v_lshlrev_b32 v{c}, 16, v{c}")
    for h in range(2):
        silu_many(a, [ACO + 2 * i for i in range(8 * h, 8 * h + 8)], [128 + 2 * i for i in range(8)], [160 + i for i in range(8 * h, 8 * h + 8)])
    for i in range(16):
        c = ACY + 2 * i; o = ACO + 2 * i
        a(f"v_cvt_pk_bf16_f32 v{c}, v{c}, v{c+1}")
        a(f"v_and_b32 v{c+1}, 0xffff0000, v{c}")
        a(f"v_lshlrev_b32 v{c}, 16, v{c}")
        a(f"v_and_b32 v{o+1}, 0xffff0000, v{160+i}")
        a(f"v_lshlrev_b32 v{o}, 16, v{160+i}")
        a(f"v_pk_mul_f32 v[{c}:{c+1}], v[{c}:{c+1}], v[{o}:{o+1}]")
        a(f"v_cvt_pk_bf16_f32 v{160+i}, v{c}, v{c+1}")
    a.nop(2)
    for fp in range(2):
        for pp in range(2):
            b0 = 160 + (fp * 4 + 2 * pp) * 2
            a(f"v_permlane16_swap_b32 v{b0}, v{b0+2}")
            a(f"v_permlane16_swap_b32 v{b0+1}, v{b0+3}")
    for q in range(4):
        for i in range(4):
            p = 160 + q * 4 + i; x = XR + q * 4 + i
            a(f"v_lshlrev_b32 v128, 16, v{p}")
            a(f"v_and_b32 v129, 0xffff0000, v{p}")
            a(f"v_lshlrev_b32 v130, 16, v{x}")
            a(f"v_and_b32 v131, 0xffff0000, v{x}")
            a("v_pk_add_f32 v[128:129], v[128:129], v[130:131]")
            a(f"v_cvt_pk_bf16_f32 v{x}, v128, v129")
        d = XR + q * 4
        a(f"buffer_store_dwordx4 v[{d}:{d+3}], v9, s[28:31], s{48+(q>>1)} offen offset:{(q&1)*64}")
    a.label("g2_end")
    a("s_endpgm")

def kd(name, vgpr, sgpr=72):
    return f""".amdhsa_kernel {name}
  .amdhsa_next_free_vgpr {vgpr}
  .amdhsa_next_free_sgpr {sgpr}
  .amdhsa_accum_offset {(vgpr+3)//4*4}
  .amdhsa_group_segment_fixed_size 0
  .amdhsa_kernarg_size 88
  .amdhsa_user_sgpr_count 2
  .amdhsa_user_sgpr_kernarg_segment_ptr 1
  .amdhsa_system_sgpr_workgroup_id_x 1
.end_amdhsa_kernel
"""

def main(out):
    for p in range(448): assert (p * 2341) >> 16 == p // 28
    hdr = f"""; generated by work/gen1.py
; @launch kernel=prep_kernel grid=(256,1,1) block=(512,1,1) lds=34816
; @launch kernel=g1_kernel grid=(256,1,1) block=(512,1,1) lds={3*G1_STAGE}
; @launch kernel=g2_kernel grid=(256,1,1) block=(512,1,1) lds={G2_R*G2_STAGE}
.amdgcn_target "amdgcn-amd-amdhsa--gfx950"
.text
"""
    txt = hdr
    for name, g in (("prep_kernel", gen_prep), ("g1_kernel", gen_g1), ("g2_kernel", gen_g2)):
        a = Asm()
        g(a)
        pr = check(a.lines)
        for p in pr: print(name, "HAZARD", p)
        txt += f".globl {name}\n.p2align 8\n.type {name},@function\n" + a.text()
    txt += '.section .rodata,"a"\n'
    for name, v in (("prep_kernel", 168), ("g1_kernel", 216), ("g2_kernel", 240)):
        txt += ".p2align 6\n" + kd(name, v)
    open(out, "w").write(txt)

if __name__ == "__main__":
    main(sys.argv[1] if len(sys.argv) > 1 else f"cdna_kernels/{NAME}.s")
```

```python
import sys
from asmlib import *

NAME = "recurrent_scan__spectral_fnet__dense_activation_silu__prompt"
MB = 1 << 20
XNF_OFF = 0
HF_OFF = 4 * MB
AP_OFF = 20 * MB

def srd(a, d, lo, hi, size, add=0):
    if add == 0:
        a(f"s_mov_b32 s{d}, s{lo}")
        a(f"s_mov_b32 s{d+1}, s{hi}")
    else:
        a(f"s_add_u32 s{d}, s{lo}, {add}")
        a(f"s_addc_u32 s{d+1}, s{hi}, 0")
    a(f"s_mov_b32 s{d+2}, {size}")
    a(f"s_mov_b32 s{d+3}, 0x20000")

STAMP = False
import os
PERT_SCALE = float(os.environ.get('PS', '1.0'))
PERT_ADD = float(os.environ.get('PA', '0.0'))
NST = 32
def stamp_init(a, vtmp=250):
    if not STAMP: return
    a(f"s_add_u32 s68, s10, {200*MB}")
    a("s_addc_u32 s69, s11, 0")
    a(f"s_mov_b32 s70, {256*NST*4}")
    a("s_mov_b32 s71, 0x20000")
    a(f"s_mul_i32 s72, s2, {NST*4}")
def stamp(a, idx, vtmp=250):
    if not STAMP: return
    lab = a.uid("stamp%d" % idx)
    a("s_cmp_lg_u32 s32, 0")
    a(f"s_cbranch_scc1 {lab}")
    a("s_memrealtime s[74:75]")
    a("s_memtime s[76:77]")
    a("s_waitcnt lgkmcnt(0)")
    a(f"v_mov_b32 v{vtmp}, s76")
    a(f"v_mov_b32 v{vtmp+1}, {idx*4+64}")
    a(f"buffer_store_dword v{vtmp}, v{vtmp+1}, s[68:71], s72 offen")
    a("s_nop 1")
    a(f"v_mov_b32 v{vtmp}, s74")
    a(f"v_mov_b32 v{vtmp+1}, {idx*4}")
    a(f"buffer_store_dword v{vtmp}, v{vtmp+1}, s[68:71], s72 offen")
    a.label(lab)

def f2u(x):
    import struct
    return "0x%08x" % struct.unpack("<I", struct.pack("<f", x))[0]

def wave_sum(a, v, t):
    a.nop(2)
    a(f"v_add_f32_dpp v{v}, v{v}, v{v} quad_perm:[1,0,3,2] row_mask:0xf bank_mask:0xf")
    a.nop(2)
    a(f"v_add_f32_dpp v{v}, v{v}, v{v} quad_perm:[2,3,0,1] row_mask:0xf bank_mask:0xf")
    a.nop(2)
    a(f"v_add_f32_dpp v{v}, v{v}, v{v} row_half_mirror row_mask:0xf bank_mask:0xf")
    a.nop(2)
    a(f"v_add_f32_dpp v{v}, v{v}, v{v} row_mirror row_mask:0xf bank_mask:0xf")
    a(f"v_mov_b32 v{t}, v{v}")
    a.nop(2)
    a(f"v_permlane16_swap_b32 v{t}, v{v}")
    a(f"v_add_f32 v{v}, v{t}, v{v}")
    a(f"v_mov_b32 v{t}, v{v}")
    a.nop(2)
    a(f"v_permlane32_swap_b32 v{t}, v{v}")
    a(f"v_add_f32 v{v}, v{t}, v{v}")

def rne_bf16(a, v):
    a(f"v_cvt_pk_bf16_f32 v{v}, v{v}, v{v}")
    a(f"v_and_b32 v{v}, 0xffff0000, v{v}")

def gen_prep(a):
    a.label("prep_kernel")
    a("s_cmp_ge_u32 s2, 256")
    a("s_cbranch_scc1 prep_end")
    a("s_load_dwordx4 s[4:7], s[0:1], 0")
    a("s_load_dwordx2 s[8:9], s[0:1], 16")
    a("s_load_dwordx2 s[10:11], s[0:1], 80")
    a("v_and_b32 v1, 63, v0")
    a("v_lshrrev_b32 v2, 6, v0")
    a("s_nop 0")
    a("v_readfirstlane_b32 s32, v2")
    a("s_waitcnt lgkmcnt(0)")
    stamp_init(a); stamp(a, 0)
    srd(a, 12, 4, 5, 4 * MB)
    a("s_cmp_ge_u32 s32, 4")
    a("s_cselect_b32 s16, s8, s6")
    a("s_cselect_b32 s17, s9, s7")
    a(f"s_mov_b32 s18, {8*MB}")
    a("s_mov_b32 s19, 0x20000")
    srd(a, 20, 10, 11, 4 * MB, XNF_OFF)
    srd(a, 24, 10, 11, 16 * MB, HF_OFF)
    srd(a, 28, 10, 11, 8 * MB, AP_OFF)
    a("s_lshl_b32 s33, s32, 8")
    a("s_add_u32 s33, s33, s2")
    a("s_lshl_b32 s33, s33, 11")
    a("v_lshlrev_b32 v2, 4, v1")
    a("buffer_load_dwordx4 v[4:7], v2, s[12:15], s33 offen")
    a("buffer_load_dwordx4 v[8:11], v2, s[12:15], s33 offen offset:1024")
    a("v_and_b32 v3, 7, v1")
    a("v_lshlrev_b32 v88, 20, v3")
    a("v_lshrrev_b32 v89, 5, v1")
    a("v_lshl_add_u32 v88, v89, 6, v88")
    a("v_bfe_u32 v90, v1, 3, 2")
    a("v_lshl_add_u32 v88, v90, 3, v88")
    a("s_and_b32 s34, s32, 3")
    a("s_lshl_b32 s34, s34, 7")
    a("s_lshl_b32 s35, s2, 12")
    a("s_add_u32 s34, s34, s35")
    a("buffer_load_dwordx2 v[12:13], v88, s[16:19], s34 offen")
    a("buffer_load_dwordx2 v[14:15], v88, s[16:19], s34 offen offset:32")
    a("s_load_dwordx4 s[56:59], s[0:1], 48")
    a("s_waitcnt lgkmcnt(0)")
    a("s_cmp_ge_u32 s32, 4")
    a("s_cselect_b32 s64, s58, s56")
    a("s_cselect_b32 s65, s59, s57")
    a("s_mul_i32 s62, s2, 28672")
    a("s_add_u32 s64, s64, s62")
    a("s_addc_u32 s65, s65, 0")
    a("s_mov_b32 s66, 28672")
    a("s_mov_b32 s67, 0x20000")
    a("v_and_b32 v168, 255, v0")
    a("v_lshlrev_b32 v168, 7, v168")
    a("buffer_load_dword v169, v168, s[64:67], 0 offen")
    a("v_lshlrev_b32 v91, 4, v3")
    a("v_lshl_add_u32 v91, v89, 13, v91")
    a("v_lshl_add_u32 v91, v90, 8, v91")
    a("s_and_b32 s36, s2, 7")
    a("s_lshl_b32 s37, s36, 1")
    a("s_lshr_b32 s38, s2, 7")
    a("s_add_u32 s37, s37, s38")
    a("s_bfe_u32 s38, s2, 0x30004")
    a("s_lshl_b32 s38, s38, 10")
    a("s_bfe_u32 s39, s2, 0x10003")
    a("s_lshl_b32 s39, s39, 7")
    a("s_add_u32 s38, s38, s39")
    a("s_lshl_b32 s40, s37, 20")
    a("s_lshl_b32 s41, s32, 14")
    a("s_add_u32 s40, s40, s41")
    a("s_add_u32 s40, s40, s38")
    a("s_lshl_b32 s42, s37, 18")
    a("s_add_u32 s42, s42, s38")
    a("s_add_u32 s43, s42, 131072")
    a("v_and_b32 v92, 31, v1")
    a("v_cvt_f32_u32 v92, v92")
    a(f"v_mul_f32 v92, {f2u(1.0/1024)}, v92")
    a("v_lshlrev_b32 v93, 2, v89")
    a("v_cvt_f32_u32 v93, v93")
    a("v_mul_f32 v93, v93, v92")
    for r in range(16):
        K = 8 * (r >> 2) + (r & 3)
        t = 94 + (r & 1) * 3
        a(f"v_fmamk_f32 v{t}, v92, {f2u(float(K))}, v93")
        a(f"v_cos_f32 v{32+r}, v{t}")
        a(f"v_sin_f32 v{48+r}, v{t}")
        a(f"v_mul_f32 v{t}, {f2u(32.0)}, v{t}")
        a(f"v_fract_f32 v{t}, v{t}")
        a(f"v_cos_f32 v{t+1}, v{t}")
        a(f"v_sin_f32 v{t+2}, v{t}")
        if r & 1:
            a("s_nop 0")
            a(f"v_cvt_pk_f16_f32 v{64+(r>>1)}, v95, v98")
            a(f"v_cvt_pk_f16_f32 v{72+(r>>1)}, v96, v99")
            a(f"v_cvt_pk_f16_f32 v{80+(r>>1)}, -v96, -v99")
    a("v_lshrrev_b32 v100, 2, v1")
    a("v_mul_u32_u24 v100, 576, v100")
    a("v_and_b32 v101, 1, v1")
    a("v_mul_u32_u24 v101, 288, v101")
    a("v_add_u32 v100, v100, v101")
    a("v_bfe_u32 v101, v1, 1, 1")
    a("v_lshl_add_u32 v100, v101, 3, v100")
    a("s_lshl_b32 s44, s32, 4")
    a("v_add_u32 v100, s44, v100")
    a("s_waitcnt vmcnt(3)")
    stamp(a, 1)
    for q in range(8):
        a(f"v_lshlrev_b32 v{16+2*q}, 16, v{4+q}")
        a(f"v_and_b32 v{17+2*q}, 0xffff0000, v{4+q}")
    a("v_pk_add_f32 v[94:95], v[16:17], v[18:19]")
    a("v_pk_add_f32 v[96:97], v[20:21], v[22:23]")
    a("v_pk_add_f32 v[94:95], v[94:95], v[24:25]")
    a("v_pk_add_f32 v[96:97], v[96:97], v[26:27]")
    a("v_pk_add_f32 v[94:95], v[94:95], v[28:29]")
    a("v_pk_add_f32 v[96:97], v[96:97], v[30:31]")
    a("v_pk_add_f32 v[94:95], v[94:95], v[96:97]")
    a("v_add_f32 v94, v94, v95")
    wave_sum(a, 94, 95)
    a(f"v_mul_f32 v94, {f2u(1.0/1024)}, v94")
    a("v_mov_b32 v96, 0")
    a("v_mov_b32 v97, 0")
    for q in range(8):
        a(f"v_pk_add_f32 v[98:99], v[{16+2*q}:{17+2*q}], v[94:95] op_sel_hi:[1,0] neg_lo:[0,1] neg_hi:[0,1]")
        a("v_pk_fma_f32 v[96:97], v[98:99], v[98:99], v[96:97]")
    a("v_add_f32 v96, v96, v97")
    wave_sum(a, 96, 97)
    a(f"v_mul_f32 v96, {f2u(1.0/1024)}, v96")
    rne_bf16(a, 94)
    rne_bf16(a, 96)
    a(f"v_add_f32 v96, {f2u(1e-5)}, v96")
    rne_bf16(a, 96)
    a("v_sqrt_f32 v96, v96")
    a("s_nop 0")
    rne_bf16(a, 96)
    a("v_rcp_f32 v96, v96")
    for q in range(8):
        a(f"v_pk_add_f32 v[98:99], v[{16+2*q}:{17+2*q}], v[94:95] op_sel_hi:[1,0] neg_lo:[0,1] neg_hi:[0,1]")
        a("v_cvt_pk_bf16_f32 v98, v98, v99")
        a("v_and_b32 v99, 0xffff0000, v98")
        a("v_lshlrev_b32 v98, 16, v98")
        a("v_pk_mul_f32 v[98:99], v[98:99], v[96:97] op_sel_hi:[1,0]")
        a(f"v_cvt_pk_bf16_f32 v{4+q}, v98, v99")
    a("ds_write_b64 v100, v[4:5]")
    a("ds_write_b64 v100, v[6:7] offset:144")
    a("ds_write_b64 v100, v[8:9] offset:9216")
    a("ds_write_b64 v100, v[10:11] offset:9360")
    a("s_waitcnt vmcnt(1)")
    a("buffer_store_dwordx4 v[12:15], v91, s[24:27], s40 offen")
    a("v_lshrrev_b32 v103, 3, v0")
    a("v_mul_u32_u24 v101, 144, v103")
    a("v_lshl_add_u32 v101, v3, 4, v101")
    a("v_lshrrev_b32 v102, 5, v0")
    a("v_lshlrev_b32 v102, 13, v102")
    a("v_lshl_add_u32 v102, v90, 8, v102")
    a("v_lshl_add_u32 v102, v3, 4, v102")
    a("v_lshrrev_b32 v103, 2, v0")
    a("v_mul_u32_u24 v103, 144, v103")
    a("v_and_b32 v94, 3, v0")
    a("v_lshl_add_u32 v103, v94, 2, v103")
    a("v_lshrrev_b32 v95, 4, v0")
    a("v_lshlrev_b32 v95, 6, v95")
    a("v_bfe_u32 v94, v0, 1, 1")
    a("v_lshl_add_u32 v95, v94, 5, v95")
    a("v_bfe_u32 v94, v0, 2, 2")
    a("v_lshl_add_u32 v95, v94, 3, v95")
    a("v_and_b32 v94, 1, v0")
    a("v_lshl_add_u32 v95, v94, 2, v95")
    a("v_add_u32 v95, 18432, v95")
    a("s_waitcnt lgkmcnt(0)")
    a("s_barrier")
    stamp(a, 2)
    a("ds_read_b128 v[104:107], v101")
    a("ds_read_b128 v[108:111], v101 offset:9216")
    for s1 in range(8):
        a(f"ds_read_b32 v{4+s1}, v103 offset:{16*s1}")
    a("s_waitcnt lgkmcnt(8)")
    a("buffer_store_dwordx4 v[104:107], v102, s[20:23], s42 offen")
    a("buffer_store_dwordx4 v[108:111], v102, s[20:23], s43 offen")
    a("s_waitcnt lgkmcnt(0)")
    for q in range(8):
        a(f"v_lshlrev_b32 v{16+2*q}, 16, v{4+q}")
        a(f"v_and_b32 v{17+2*q}, 0xffff0000, v{4+q}")
    X = lambda s: f"v[{16+2*s}:{17+2*s}]"
    T = lambda i: f"v[{112+2*i}:{113+2*i}]"
    NEG = "neg_lo:[0,1] neg_hi:[0,1]"
    a(f"v_pk_add_f32 {T(0)}, {X(0)}, {X(4)}")
    a(f"v_pk_add_f32 {T(1)}, {X(0)}, {X(4)} {NEG}")
    a(f"v_pk_add_f32 {T(2)}, {X(2)}, {X(6)}")
    a(f"v_pk_add_f32 {T(3)}, {X(2)}, {X(6)} {NEG}")
    a(f"v_pk_add_f32 {T(4)}, {X(1)}, {X(5)}")
    a(f"v_pk_add_f32 {T(5)}, {X(1)}, {X(5)} {NEG}")
    a(f"v_pk_add_f32 {T(6)}, {X(3)}, {X(7)}")
    a(f"v_pk_add_f32 {T(7)}, {X(3)}, {X(7)} {NEG}")
    a(f"v_pk_add_f32 {X(0)}, {T(0)}, {T(2)}")
    a(f"v_pk_add_f32 {X(4)}, {T(0)}, {T(2)} {NEG}")
    a(f"v_pk_add_f32 {X(1)}, {T(4)}, {T(6)}")
    a(f"v_pk_add_f32 {X(5)}, {T(6)}, {T(4)} {NEG}")
    a(f"v_pk_add_f32 {X(2)}, {T(5)}, {T(7)} {NEG}")
    a(f"v_pk_add_f32 {X(3)}, {T(5)}, {T(7)}")
    a(f"s_mov_b32 s46, {f2u(0.7071067811865476)}")
    a("s_mov_b32 s47, s46")
    a(f"v_pk_add_f32 {T(0)}, {X(0)}, {X(1)}")
    a(f"v_pk_add_f32 {T(2)}, {X(0)}, {X(1)} {NEG}")
    a(f"v_pk_fma_f32 {T(4)}, {X(2)}, s[46:47], {T(1)}")
    a(f"v_pk_fma_f32 {T(5)}, {X(3)}, s[46:47], {T(3)} neg_lo:[1,0,1] neg_hi:[1,0,1]")
    a(f"v_pk_fma_f32 {T(6)}, {X(2)}, s[46:47], {T(1)} neg_lo:[1,0,0] neg_hi:[1,0,0]")
    a(f"v_pk_fma_f32 {T(7)}, {X(3)}, s[46:47], {T(3)} neg_lo:[1,0,0] neg_hi:[1,0,0]")
    srcs = [112+0, 112+4, 112+8, 112+10, 16+8, 16+10, 112+12, 112+14]
    for k, s in enumerate(srcs):
        a(f"v_cvt_pk_f16_f32 v{4+k}, v{s}, v{s+1}")
    for k in range(8):
        a(f"ds_write_b32 v95, v{4+k} offset:{2048*k}")
    a("s_sub_u32 s48, 8, s32")
    a("s_cmp_gt_u32 s32, 4")
    a("s_cselect_b32 s48, s48, s32")
    a("s_cselect_b32 s49, 0x80008000, 0")
    a("s_lshl_b32 s50, s48, 1")
    a("s_cmp_eq_u32 s48, 4")
    a("s_cselect_b32 s50, 1, s50")
    a("s_and_b32 s51, s32, 3")
    a("s_cmp_eq_u32 s51, 0")
    a("s_cselect_b32 s51, 0, -1")
    a("s_lshl_b32 s50, s50, 11")
    a("s_add_u32 s50, s50, 18432")
    a("v_lshlrev_b32 v94, 8, v89")
    a("v_bfe_u32 v96, v1, 2, 2")
    a("v_lshl_add_u32 v94, v96, 6, v94")
    a("v_bfe_u32 v96, v1, 4, 1")
    a("v_lshl_add_u32 v94, v96, 5, v94")
    a("v_and_b32 v96, 3, v1")
    a("v_lshl_add_u32 v94, v96, 3, v94")
    a("v_add_u32 v94, s50, v94")
    a("v_and_b32 v97, 31, v1")
    a("v_lshlrev_b32 v97, 6, v97")
    a("v_lshl_add_u32 v97, v89, 4, v97")
    a("s_lshl_b32 s52, s32, 9")
    a("s_add_u32 s52, s52, s2")
    a("s_lshl_b32 s52, s52, 11")
    a(f"s_add_u32 s53, s52, {256*2048}")
    a("s_waitcnt lgkmcnt(0)")
    a("s_barrier")
    for part in range(2):
        for kk in range(2):
            for hh in range(2):
                d = 136 + part * 8 + kk * 4 + hh * 2
                a(f"ds_read_b64_tr_b16 v[{d}:{d+1}], v94 offset:{part*2048 + kk*1024 + hh*512}")
    a("s_waitcnt lgkmcnt(0)")
    for i in range(8):
        a(f"v_and_b32 v{144+i}, s51, v{144+i}")
        a(f"v_xor_b32 v{144+i}, s49, v{144+i}")
    Cc = lambda kk: f"v[{64+4*kk}:{67+4*kk}]"
    Ss = lambda kk: f"v[{72+4*kk}:{75+4*kk}]"
    NS = lambda kk: f"v[{80+4*kk}:{83+4*kk}]"
    def cplx(re_base, im_base, Dre, Dim):
        R = lambda kk: f"v[{re_base+4*kk}:{re_base+3+4*kk}]"
        I = lambda kk: f"v[{im_base+4*kk}:{im_base+3+4*kk}]"
        M = "v_mfma_f32_32x32x16_f16"
        a(f"{M} {Dre}, {R(0)}, {Cc(0)}, 0")
        a(f"{M} {Dim}, {R(0)}, {NS(0)}, 0")
        a(f"{M} {Dre}, {R(1)}, {Cc(1)}, {Dre}")
        a(f"{M} {Dim}, {R(1)}, {NS(1)}, {Dim}")
        a(f"{M} {Dre}, {I(0)}, {Ss(0)}, {Dre}")
        a(f"{M} {Dim}, {I(0)}, {Cc(0)}, {Dim}")
        a(f"{M} {Dre}, {I(1)}, {Ss(1)}, {Dre}")
        a(f"{M} {Dim}, {I(1)}, {Cc(1)}, {Dim}")
    cplx(136, 144, "v[104:119]", "v[120:135]")
    a.nop(12)
    for r in range(0, 16, 2):
        P = lambda b: f"v[{b+r}:{b+r+1}]"
        a(f"v_pk_mul_f32 v[16:17], {P(104)}, {P(32)}")
        a(f"v_pk_mul_f32 v[18:19], {P(120)}, {P(32)}")
        a(f"v_pk_fma_f32 v[16:17], {P(120)}, {P(48)}, v[16:17]")
        a(f"v_pk_fma_f32 v[18:19], {P(104)}, {P(48)}, v[18:19] neg_lo:[1,0,0] neg_hi:[1,0,0]")
        a(f"v_cvt_pk_f16_f32 v{152+(r>>1)}, v16, v17")
        a(f"v_cvt_pk_f16_f32 v{160+(r>>1)}, v18, v19")
    a.nop(2)
    cplx(152, 160, "v[104:119]", "v[120:135]")
    a.nop(12)
    for r in range(0, 16, 2):
        a(f"v_cvt_pk_bf16_f32 v{136+(r>>1)}, v{104+r}, v{105+r}")
        a(f"v_cvt_pk_bf16_f32 v{144+(r>>1)}, -v{120+r}, -v{121+r}")
    a.nop(2)
    for base in (136, 140, 144, 148):
        a(f"v_permlane32_swap_b32 v{base}, v{base+2}")
        a(f"v_permlane32_swap_b32 v{base+1}, v{base+3}")
    a("buffer_store_dwordx4 v[136:139], v97, s[28:31], s52 offen")
    a("buffer_store_dwordx4 v[140:143], v97, s[28:31], s52 offen offset:32")
    a("buffer_store_dwordx4 v[144:147], v97, s[28:31], s53 offen")
    a("buffer_store_dwordx4 v[148:151], v97, s[28:31], s53 offen offset:32")
    if STAMP: a("s_waitcnt vmcnt(0)")
    stamp(a, 3)
    a.label("prep_end")
    a("s_endpgm")

def silu_pair(a, src, t, dst):
    a(f"v_pk_mul_f32 v[{t}:{t+1}], v[{src}:{src+1}], s[60:61]")
    a(f"v_exp_f32 v{t}, v{t}")
    a(f"v_exp_f32 v{t+1}, v{t+1}")
    a("s_nop 0")
    a(f"v_pk_add_f32 v[{t}:{t+1}], v[{t}:{t+1}], 1.0 op_sel_hi:[1,0]")
    a(f"v_rcp_f32 v{t}, v{t}")
    a(f"v_rcp_f32 v{t+1}, v{t+1}")
    a("s_nop 0")
    a(f"v_pk_mul_f32 v[{t}:{t+1}], v[{t}:{t+1}], v[{src}:{src+1}]")
    a(f"v_cvt_pk_bf16_f32 v{dst}, v{t}, v{t+1}")

def silu_many(a, srcs, temps, dsts):
    n = len(srcs)
    for i in range(n):
        a(f"v_pk_mul_f32 v[{temps[i]}:{temps[i]+1}], v[{srcs[i]}:{srcs[i]+1}], s[60:61]")
    for i in range(n):
        a(f"v_exp_f32 v{temps[i]}, v{temps[i]}")
        a(f"v_exp_f32 v{temps[i]+1}, v{temps[i]+1}")
    if n == 1: a("s_nop 0")
    for i in range(n):
        a(f"v_pk_add_f32 v[{temps[i]}:{temps[i]+1}], v[{temps[i]}:{temps[i]+1}], 1.0 op_sel_hi:[1,0]")
    for i in range(n):
        a(f"v_rcp_f32 v{temps[i]}, v{temps[i]}")
        a(f"v_rcp_f32 v{temps[i]+1}, v{temps[i]+1}")
    if n == 1: a("s_nop 0")
    for i in range(n):
        a(f"v_pk_mul_f32 v[{temps[i]}:{temps[i]+1}], v[{temps[i]}:{temps[i]+1}], v[{srcs[i]}:{srcs[i]+1}]")
    for i in range(n):
        a(f"v_cvt_pk_bf16_f32 v{dsts[i]}, v{temps[i]}, v{temps[i]+1}")

def interleave(a, mfmas, others, first=0, per=1):
    oi = 0
    for i, m in enumerate(mfmas):
        a(m)
        if i >= first:
            for _ in range(per):
                if oi < len(others):
                    a(others[oi]); oi += 1
    while oi < len(others):
        a(others[oi]); oi += 1

G1_STAGE = 45056
def gen_g1(a):
    a.label("g1_kernel")
    a("s_cmp_ge_u32 s2, 256")
    a("s_cbranch_scc1 g1_end")
    a("s_load_dwordx2 s[4:5], s[0:1], 48")
    a("s_load_dwordx2 s[10:11], s[0:1], 80")
    a("v_and_b32 v1, 63, v0")
    a("v_lshrrev_b32 v2, 6, v0")
    a("s_nop 0")
    a("v_readfirstlane_b32 s32, v2")
    a("s_and_b32 s33, s2, 1")
    a("s_lshl_b32 s33, s33, 3")
    a("s_bfe_u32 s34, s2, 0x30003")
    a("s_add_u32 s33, s33, s34")
    a("s_bfe_u32 s34, s2, 0x20001")
    a("s_lshl_b32 s34, s34, 2")
    a("s_lshr_b32 s35, s2, 6")
    a("s_add_u32 s34, s34, s35")
    a("s_waitcnt lgkmcnt(0)")
    stamp_init(a); stamp(a, 4)
    a("s_lshl_b32 s36, s33, 18")
    srd(a, 12, 10, 11, 262144, "s36")
    srd(a, 16, 4, 5, 1024 * 3584 * 2)
    a("s_lshl_b32 s36, s33, 20")
    a(f"s_add_u32 s36, s36, {HF_OFF}")
    srd(a, 20, 10, 11, MB, "s36")
    a("s_and_b32 s37, s32, 3")
    a("s_cmp_ge_u32 s32, 4")
    a("s_cbranch_scc0 g1_consumer")
    a("s_lshl_b32 s38, s37, 12")
    a("v_lshlrev_b32 v2, 4, v1")
    a("v_add_u32 v2, s38, v2")
    a("s_mul_i32 s39, s37, 16*7168")
    a("s_mul_i32 s40, s34, 448")
    a("s_add_u32 s39, s39, s40")
    a("s_movk_i32 s41, 2341")
    a("s_movk_i32 s42, 7168")
    for q in range(7):
        a(f"v_add_u32 v10, {64*q}, v1")
        a("v_mul_u32_u24 v11, s41, v10")
        a("v_lshrrev_b32 v11, 16, v11")
        a("v_mul_u32_u24 v12, 28, v11")
        a("v_sub_u32 v12, v10, v12")
        a("v_bfe_u32 v13, v11, 2, 1")
        a("v_lshlrev_b32 v13, 1, v13")
        a("v_xor_b32 v12, v12, v13")
        a("v_mul_u32_u24 v11, s42, v11")
        a("v_lshl_add_u32 v11, v12, 4, v11")
        a(f"v_add_u32 v{3+q}, s39, v11")
    a("s_mul_i32 s43, s37, 7168")
    a("s_add_u32 s43, s43, 16384")
    a("s_mov_b32 s44, 0")
    a("s_mov_b32 s45, 0")
    a("s_mov_b32 s46, 0")
    def issue():
        a("s_add_u32 m0, s46, s38")
        a("s_nop 0")
        for q in range(4):
            a(f"buffer_load_dwordx4 v2, s[12:15], s44 offen offset:{1024*q} lds")
        a("s_add_u32 m0, s46, s43")
        for q in range(7):
            a("s_nop 0")
            a(f"buffer_load_dwordx4 v{3+q}, s[16:19], s45 offen lds")
            if q < 6: a("s_add_u32 m0, m0, 1024")
        a("s_add_u32 s44, s44, 16384")
        a(f"s_add_u32 s45, s45, {64*7168}")
        a(f"s_add_u32 s46, s46, {G1_STAGE}")
        a(f"s_cmp_eq_u32 s46, {3*G1_STAGE}")
        a("s_cselect_b32 s46, 0, s46")
    issue(); issue()
    a("s_mov_b32 s47, 0")
    a.label("g1_ld_loop")
    a("s_waitcnt vmcnt(11)")
    a("s_barrier")
    issue()
    a("s_add_u32 s47, s47, 1")
    a("s_cmp_lt_u32 s47, 14")
    a("s_cbranch_scc1 g1_ld_loop")
    a("s_waitcnt vmcnt(11)")
    a("s_barrier")
    a("s_waitcnt vmcnt(0)")
    a("s_barrier")
    a("s_endpgm")
    a.label("g1_consumer")
    ACC = 16
    SET = [128, 172]
    a("s_lshr_b32 s38, s37, 1")
    a("s_and_b32 s39, s37, 1")
    a("s_lshl_b32 s40, s38, 12")
    a("v_lshlrev_b32 v2, 4, v1")
    a("v_add_u32 v2, s40, v2")
    a("v_lshrrev_b32 v10, 2, v1")
    a("v_mul_u32_u24 v10, 448, v10")
    a("v_and_b32 v11, 3, v1")
    a("v_lshl_add_u32 v10, v11, 3, v10")
    a("v_add_u32 v10, 16384, v10")
    a("v_bfe_u32 v11, v1, 4, 1")
    a("v_lshlrev_b32 v11, 5, v11")
    a("s_mul_i32 s41, s39, 192")
    a("v_add_u32 v3, v10, v11")
    a("v_add_u32 v3, s41, v3")
    a("v_sub_u32 v4, v10, v11")
    a("v_add_u32 v4, s41, v4")
    a("s_lshl_b32 s42, s39, 5")
    a("v_xor_b32 v5, s42, v11")
    a("v_add_u32 v5, v10, v5")
    a("v_add_u32 v5, 384, v5")
    for i in range(112):
        a(f"v_mov_b32 v{ACC+i}, 0")
    a("s_mov_b32 s46, 0")
    a("v_mov_b32 v6, v2"); a("v_mov_b32 v7, v3"); a("v_mov_b32 v8, v4"); a("v_mov_b32 v9, v5")
    def reads(st, kb):
        L = []
        b = SET[st]
        order = [("a", 0), ("w", 0), ("w", 1), ("a", 1), ("w", 2), ("w", 3), ("a", 2), ("w", 4), ("w", 5), ("a", 3), ("w", 6)]
        for kind, i in order:
            if kind == "a":
                L.append(f"ds_read_b128 v[{b+4*i}:{b+4*i+3}], v6 offset:{kb*8192 + i*1024}")
            else:
                for hh in range(2):
                    d = b + 16 + 4 * i + 2 * hh
                    ro = (32 * kb + 16 * hh) * 448
                    if i < 6:
                        L.append(f"ds_read_b64_tr_b16 v[{d}:{d+1}], v{7 + (i & 1)} offset:{ro + i*32}")
                    else:
                        L.append(f"ds_read_b64_tr_b16 v[{d}:{d+1}], v9 offset:{ro}")
        return L
    def mfmas(st):
        b = SET[st]
        L = []
        for f in range(4):
            for nb in range(7):
                c = ACC + (f * 7 + nb) * 4
                L.append(f"v_mfma_f32_16x16x32_bf16 v[{c}:{c+3}], v[{b+16+4*nb}:{b+19+4*nb}], v[{b+4*f}:{b+3+4*f}], v[{c}:{c+3}]")
        return L
    def adv():
        return [f"s_add_u32 s46, s46, {G1_STAGE}", f"s_cmp_eq_u32 s46, {3*G1_STAGE}", "s_cselect_b32 s46, 0, s46",
                "v_add_u32 v6, s46, v2", "v_add_u32 v7, s46, v3", "v_add_u32 v8, s46, v4", "v_add_u32 v9, s46, v5"]
    a("s_barrier")
    stamp(a, 5)
    for r in reads(0, 0): a(r)
    a("s_mov_b32 s47, 0")
    a.label("g1_c_loop")
    a("s_waitcnt lgkmcnt(0)")
    interleave(a, mfmas(0), reads(1, 1) + adv())
    a("s_waitcnt lgkmcnt(0)")
    a("s_barrier")
    interleave(a, mfmas(1), reads(0, 0))
    a("s_add_u32 s47, s47, 1")
    a("s_cmp_lt_u32 s47, 15")
    a("s_cbranch_scc1 g1_c_loop")
    a("s_waitcnt lgkmcnt(0)")
    interleave(a, mfmas(0), reads(1, 1))
    a("s_waitcnt lgkmcnt(0)")
    interleave(a, mfmas(1), [])
    stamp(a, 6)
    a(f"s_mov_b32 s60, {f2u(-1.4426950408889634)}")
    a("s_mov_b32 s61, s60")
    a("s_mul_i32 s48, s34, 7")
    a("s_mul_i32 s49, s39, 3")
    a("s_add_u32 s49, s49, s48")
    a("s_add_u32 s49, s49, 16")
    a("s_lshl_b32 s49, s49, 13")
    a("s_add_u32 s50, s49, 8192")
    a("s_add_u32 s51, s49, 16384")
    a("s_add_u32 s52, s48, 22")
    a("s_lshl_b32 s52, s52, 13")
    a("s_lshl_b32 s53, s39, 3")
    a("s_add_u32 s52, s52, s53")
    a.nop(4)
    for f in range(4):
        for pp in range(3):
            c = ACC + (f * 7 + 2 * pp) * 4
            d = 128 + ((f * 3 + pp) & 1) * 4
            silu_many(a, [c, c + 2, c + 4, c + 6], [140, 142, 144, 146], [d, d + 1, d + 2, d + 3])
            a(f"buffer_store_dwordx4 v[{d}:{d+3}], v2, s[20:23], s{49+pp} offen offset:{f*1024}")
        c = ACC + (f * 7 + 6) * 4
        d = 136 + (f & 1) * 2
        silu_many(a, [c, c + 2], [140, 142], [d, d + 1])
        a(f"buffer_store_dwordx2 v[{d}:{d+1}], v2, s[20:23], s52 offen offset:{f*1024}")
    stamp(a, 13)
    if STAMP: a("s_waitcnt vmcnt(0)")
    stamp(a, 7)
    a.label("g1_end")
    a("s_endpgm")

G2_STAGE = 24576
G2_R = 6
def gen_g2(a):
    a.label("g2_kernel")
    a("s_cmp_ge_u32 s2, 256")
    a("s_cbranch_scc1 g2_end")
    a("s_load_dwordx2 s[4:5], s[0:1], 0")
    a("s_load_dwordx4 s[64:67], s[0:1], 56")
    a("s_load_dwordx2 s[10:11], s[0:1], 80")
    a("v_and_b32 v1, 63, v0")
    a("v_lshrrev_b32 v2, 6, v0")
    a("s_nop 0")
    a("v_readfirstlane_b32 s32, v2")
    a("s_and_b32 s33, s2, 3")
    a("s_lshl_b32 s33, s33, 2")
    a("s_bfe_u32 s34, s2, 0x20003")
    a("s_add_u32 s33, s33, s34")
    a("s_bfe_u32 s34, s2, 0x10002")
    a("s_lshl_b32 s34, s34, 3")
    a("s_lshr_b32 s35, s2, 5")
    a("s_add_u32 s34, s34, s35")
    a("s_waitcnt lgkmcnt(0)")
    stamp_init(a); stamp(a, 8)
    a("s_lshl_b32 s36, s33, 20")
    a(f"s_add_u32 s36, s36, {HF_OFF}")
    srd(a, 12, 10, 11, MB, "s36")
    a("s_lshr_b32 s35, s33, 1")
    a("s_lshl_b32 s36, s35, 20")
    a(f"s_add_u32 s36, s36, {AP_OFF}")
    srd(a, 16, 10, 11, MB, "s36")
    srd(a, 20, 64, 65, 1024 * 3584 * 2)
    srd(a, 24, 4, 5, 4 * MB)
    srd(a, 28, 66, 67, 4 * MB)
    a("s_and_b32 s37, s32, 3")
    a("s_cmp_ge_u32 s32, 4")
    a("s_cbranch_scc0 g2_consumer")
    a("s_lshl_b32 s38, s37, 12")
    a("v_lshlrev_b32 v2, 4, v1")
    a("v_add_u32 v2, s38, v2")
    a("v_lshrrev_b32 v3, 3, v1")
    a("v_lshlrev_b32 v3, 11, v3")
    a("v_lshrrev_b32 v4, 4, v1")
    a("v_lshlrev_b32 v4, 1, v4")
    a("v_and_b32 v5, 7, v1")
    a("v_xor_b32 v4, v4, v5")
    a("v_lshl_add_u32 v3, v4, 4, v3")
    a("s_lshl_b32 s39, s37, 15")
    a("s_lshl_b32 s40, s34, 7")
    a("s_add_u32 s39, s39, s40")
    a("v_add_u32 v3, s39, v3")
    a("v_add_u32 v4, 16384, v3")
    a("s_lshl_b32 s43, s37, 11")
    a("s_add_u32 s43, s43, 16384")
    a("s_mov_b32 s44, 0")
    a("s_mov_b32 s45, 0")
    a("s_mov_b32 s46, 0")
    def issue(srdB):
        a("s_add_u32 m0, s46, s38")
        a("s_nop 0")
        for q in range(4):
            a(f"buffer_load_dwordx4 v2, s[12:15], s44 offen offset:{1024*q} lds")
        a("s_add_u32 m0, s46, s43")
        a("s_nop 0")
        a(f"buffer_load_dwordx4 v3, {srdB}, s45 offen lds")
        a("s_add_u32 m0, m0, 1024")
        a("s_nop 0")
        a(f"buffer_load_dwordx4 v4, {srdB}, s45 offen lds")
        a("s_add_u32 s44, s44, 16384")
        a("s_add_u32 s45, s45, 131072")
        a(f"s_add_u32 s46, s46, {G2_STAGE}")
        a(f"s_cmp_eq_u32 s46, {G2_R*G2_STAGE}")
        a("s_cselect_b32 s46, 0, s46")
    for _ in range(5): issue("s[16:19]")
    for n in range(3):
        a("s_waitcnt vmcnt(24)")
        a("s_barrier")
        issue("s[16:19]")
    a("s_mov_b32 s45, 0")
    a("s_mov_b32 s47, 3")
    a.label("g2_ld_loop")
    a("s_waitcnt vmcnt(24)")
    a("s_barrier")
    issue("s[20:23]")
    a("s_add_u32 s47, s47, 1")
    a("s_cmp_lt_u32 s47, 59")
    a("s_cbranch_scc1 g2_ld_loop")
    for n in range(59, 64):
        a(f"s_waitcnt vmcnt({(63-n)*6})")
        a("s_barrier")
    a("s_endpgm")
    a.label("g2_consumer")
    ACO = 32
    ACY = 96
    SET = [128, 176]
    XR = 224
    a("s_and_b32 s38, s37, 1")
    a("s_lshr_b32 s39, s37, 1")
    a("s_lshl_b32 s40, s39, 12")
    a("s_lshl_b32 s41, s38, 11")
    a("s_add_u32 s42, s40, s41")
    a("v_lshlrev_b32 v10, 4, v1")
    a("v_add_u32 v2, s42, v10")
    a("s_lshl_b32 s43, s38, 13")
    a("v_add_u32 v3, s43, v2")
    a("s_xor_b32 s41, s41, 2048")
    a("s_add_u32 s42, s40, s41")
    a("s_add_u32 s42, s42, s43")
    a("v_add_u32 v4, s42, v10")
    a("v_lshrrev_b32 v11, 2, v1")
    a("v_lshlrev_b32 v11, 7, v11")
    a("v_and_b32 v12, 3, v1")
    a("v_lshl_add_u32 v11, v12, 3, v11")
    a("v_add_u32 v11, 16384, v11")
    a("v_bfe_u32 v12, v1, 3, 2")
    for nb in range(4):
        a(f"v_xor_b32 v13, {nb}, v12")
        a(f"v_lshl_add_u32 v{5+nb}, v13, 5, v11")
    a("v_and_b32 v9, 7, v1")
    a("v_lshlrev_b32 v9, 19, v9")
    a("v_bfe_u32 v10, v1, 3, 1")
    a("v_lshl_add_u32 v9, v10, 14, v9")
    a("v_bfe_u32 v10, v1, 4, 1")
    a("v_lshl_add_u32 v9, v10, 5, v9")
    a("v_bfe_u32 v10, v1, 5, 1")
    a("v_lshl_add_u32 v9, v10, 4, v9")
    a("s_and_b32 s48, s33, 1")
    a("s_lshl_b32 s48, s48, 4")
    a("s_lshl_b32 s49, s39, 3")
    a("s_add_u32 s48, s48, s49")
    a("s_lshl_b32 s49, s38, 2")
    a("s_add_u32 s48, s48, s49")
    a("s_lshl_b32 s48, s48, 3")
    a("s_add_u32 s48, s48, s35")
    a("s_lshl_b32 s48, s48, 11")
    a("s_lshl_b32 s49, s34, 7")
    a("s_add_u32 s48, s48, s49")
    a(f"s_add_u32 s49, s48, {16*2048}")
    for fp in range(2):
        for pp in range(2):
            d = XR + (fp * 2 + pp) * 4
            a(f"buffer_load_dwordx4 v[{d}:{d+3}], v9, s[24:27], s{48+fp} offen offset:{pp*64}")
    for i in range(96):
        a(f"v_mov_b32 v{ACO+i}, 0")
    a("s_mov_b32 s46, 0")
    a("s_lshl_b32 s50, s38, 12")
    def adv(ytype_next):
        L = [f"s_add_u32 s46, s46, {G2_STAGE}", f"s_cmp_eq_u32 s46, {G2_R*G2_STAGE}", "s_cselect_b32 s46, 0, s46"]
        if ytype_next:
            L += ["v_add_u32 v14, s46, v2"] + [f"v_add_u32 v{16+nb}, s46, v{5+nb}" for nb in range(4)]
        else:
            L += ["v_add_u32 v14, s46, v3", "v_add_u32 v15, s46, v4"] + [f"v_add_u32 v{16+nb}, s46, v{5+nb}" for nb in range(4)]
        return L
    def reads_y(st):
        b = SET[st]; L = []
        for kb in range(2):
            for fp in range(2):
                d = b + kb * 24 + fp * 4
                L.append(f"ds_read_b128 v[{d}:{d+3}], v14 offset:{kb*8192 + fp*1024}")
            for nb in range(4):
                for hh in range(2):
                    d = b + kb * 24 + 8 + nb * 4 + hh * 2
                    L.append(f"ds_read_b64_tr_b16 v[{d}:{d+1}], v{16+nb} offset:{kb*4096 + hh*2048}")
        return L
    def mfmas_y(st):
        b = SET[st]; L = []
        for kb in range(2):
            for fp in range(2):
                for nb in range(4):
                    c = ACY + (fp * 4 + nb) * 4
                    w = b + kb * 24 + 8 + nb * 4; x = b + kb * 24 + fp * 4
                    L.append(f"v_mfma_f32_16x16x32_bf16 v[{c}:{c+3}], v[{w}:{w+3}], v[{x}:{x+3}], v[{c}:{c+3}]")
        return L
    def reads_f(st):
        b = SET[st]; L = []
        for i in range(4):
            d = b + i * 4
            L.append(f"ds_read_b128 v[{d}:{d+3}], v{14 + (i >> 1)} offset:{(i & 1)*1024}")
            for hh in range(2):
                d = b + 16 + i * 4 + hh * 2
                L.append(f"ds_read_b64_tr_b16 v[{d}:{d+1}], v{16+i} offset:{hh*2048}")
        return L
    def mfmas_f(st):
        b = SET[st]; L = []
        for fp in range(4):
            for nb in range(4):
                c = ACO + (fp * 4 + nb) * 4
                w = b + 16 + nb * 4; x = b + fp * 4
                L.append(f"v_mfma_f32_16x16x32_bf16 v[{c}:{c+3}], v[{w}:{w+3}], v[{x}:{x+3}], v[{c}:{c+3}]")
        return L
    a("v_mov_b32 v14, v2")
    for nb in range(4): a(f"v_mov_b32 v{16+nb}, v{5+nb}")
    a("s_barrier")
    stamp(a, 9)
    for r in reads_y(0): a(r)
    for s in range(8):
        nxt_y = s + 1 < 8
        if not nxt_y:
            for nb in range(4): a(f"v_add_u32 v{5+nb}, s50, v{5+nb}")
        for l in adv(nxt_y): a(l)
        a("s_waitcnt lgkmcnt(0)")
        a("s_barrier")
        interleave(a, mfmas_y(s & 1), reads_y((s + 1) & 1) if nxt_y else reads_f((s + 1) & 1), per=2)
    stamp(a, 10)
    a("s_mov_b32 s47, 0")
    a.label("g2_c_loop")
    for st in range(2):
        for l in adv(False): a(l)
        a("s_waitcnt lgkmcnt(0)")
        a("s_barrier")
        interleave(a, mfmas_f(st), reads_f(st ^ 1))
    a("s_add_u32 s47, s47, 1")
    a("s_cmp_lt_u32 s47, 27")
    a("s_cbranch_scc1 g2_c_loop")
    for l in adv(False): a(l)
    a("s_waitcnt lgkmcnt(0)")
    a("s_barrier")
    interleave(a, mfmas_f(0), reads_f(1))
    a("s_waitcnt lgkmcnt(0)")
    interleave(a, mfmas_f(1), [])
    stamp(a, 11)
    a("s_lshl_b32 s51, s37, 13")
    a("v_lshlrev_b32 v10, 4, v1")
    a("v_add_u32 v11, s51, v10")
    a("s_xor_b32 s51, s51, 8192")
    a("v_add_u32 v12, s51, v10")
    a(f"s_mov_b32 s60, {f2u(-1.4426950408889634)}")
    a("s_mov_b32 s61, s60")
    a.nop(4)
    for i in range(8):
        c = ACO + 32 + i * 4
        a(f"ds_write_b128 v11, v[{c}:{c+3}] offset:{i*1024}")
    a("s_waitcnt lgkmcnt(0)")
    a("s_barrier")
    for i in range(8):
        d = 128 + i * 4
        a(f"ds_read_b128 v[{d}:{d+3}], v12 offset:{i*1024}")
    a("s_waitcnt lgkmcnt(0) vmcnt(0)")
    for i in range(16):
        c = ACO + 2 * i; d = 128 + 2 * i
        a(f"v_pk_add_f32 v[{c}:{c+1}], v[{c}:{c+1}], v[{d}:{d+1}]")
    for i in range(16):
        c = ACO + 2 * i
        a(f"v_cvt_pk_bf16_f32 v{c}, v{c}, v{c+1}")
        a(f"v_and_b32 v{c+1}, 0xffff0000, v{c}")
        a(f"v_lshlrev_b32 v{c}, 16, v{c}")
    for h in range(2):
        silu_many(a, [ACO + 2 * i for i in range(8 * h, 8 * h + 8)], [128 + 2 * i for i in range(8)], [160 + i for i in range(8 * h, 8 * h + 8)])
    for i in range(16):
        c = ACY + 2 * i; o = ACO + 2 * i
        a(f"v_cvt_pk_bf16_f32 v{c}, v{c}, v{c+1}")
        a(f"v_and_b32 v{c+1}, 0xffff0000, v{c}")
        a(f"v_lshlrev_b32 v{c}, 16, v{c}")
        a(f"v_and_b32 v{o+1}, 0xffff0000, v{160+i}")
        a(f"v_lshlrev_b32 v{o}, 16, v{160+i}")
        a(f"v_pk_mul_f32 v[{c}:{c+1}], v[{c}:{c+1}], v[{o}:{o+1}]")
        a(f"v_cvt_pk_bf16_f32 v{160+i}, v{c}, v{c+1}")
    a.nop(2)
    for fp in range(2):
        for pp in range(2):
            b0 = 160 + (fp * 4 + 2 * pp) * 2
            a(f"v_permlane16_swap_b32 v{b0}, v{b0+2}")
            a(f"v_permlane16_swap_b32 v{b0+1}, v{b0+3}")
    for q in range(4):
        for i in range(4):
            p = 160 + q * 4 + i; x = XR + q * 4 + i
            a(f"v_lshlrev_b32 v128, 16, v{p}")
            a(f"v_and_b32 v129, 0xffff0000, v{p}")
            a(f"v_lshlrev_b32 v130, 16, v{x}")
            a(f"v_and_b32 v131, 0xffff0000, v{x}")
            a("v_pk_add_f32 v[128:129], v[128:129], v[130:131]")
            if PERT_SCALE != 1.0:
                a(f"v_mul_f32 v128, {f2u(PERT_SCALE)}, v128")
                a(f"v_mul_f32 v129, {f2u(PERT_SCALE)}, v129")
            if PERT_ADD != 0.0 and q == 0 and i == 0:
                a("v_or_b32 v130, s2, v0")
                a("v_cmp_eq_u32 vcc, 0, v130")
                a(f"v_mov_b32 v130, {f2u(PERT_ADD)}")
                a("s_nop 1")
                a("v_cndmask_b32 v130, 0, v130, vcc")
                a("v_add_f32 v128, v128, v130")
            a(f"v_cvt_pk_bf16_f32 v{x}, v128, v129")
        d = XR + q * 4
        a(f"buffer_store_dwordx4 v[{d}:{d+3}], v9, s[28:31], s{48+(q>>1)} offen offset:{(q&1)*64}")
    if STAMP: a("s_waitcnt vmcnt(0)")
    stamp(a, 12)
    a.label("g2_end")
    a("s_endpgm")

def kd(name, vgpr, sgpr=80):
    if STAMP: vgpr = 256
    return f""".amdhsa_kernel {name}
  .amdhsa_next_free_vgpr {vgpr}
  .amdhsa_next_free_sgpr {sgpr}
  .amdhsa_accum_offset {(vgpr+3)//4*4}
  .amdhsa_group_segment_fixed_size 0
  .amdhsa_kernarg_size 88
  .amdhsa_user_sgpr_count 2
  .amdhsa_user_sgpr_kernarg_segment_ptr 1
  .amdhsa_system_sgpr_workgroup_id_x 1
.end_amdhsa_kernel
"""

def main(out):
    for p in range(448): assert (p * 2341) >> 16 == p // 28
    hdr = f"""; generated by work/gen1.py
; @launch kernel=prep_kernel grid=(256,1,1) block=(512,1,1) lds=34816
; @launch kernel=g1_kernel grid=(256,1,1) block=(512,1,1) lds={3*G1_STAGE}
; @launch kernel=g2_kernel grid=(256,1,1) block=(512,1,1) lds={G2_R*G2_STAGE}
.amdgcn_target "amdgcn-amd-amdhsa--gfx950"
.text
"""
    txt = hdr
    for name, g in (("prep_kernel", gen_prep), ("g1_kernel", gen_g1), ("g2_kernel", gen_g2)):
        a = Asm()
        g(a)
        pr = check(a.lines)
        for p in pr: print(name, "HAZARD", p)
        txt += f".globl {name}\n.p2align 8\n.type {name},@function\n" + a.text()
    txt += '.section .rodata,"a"\n'
    for name, v in (("prep_kernel", 176), ("g1_kernel", 216), ("g2_kernel", 240)):
        txt += ".p2align 6\n" + kd(name, v)
    open(out, "w").write(txt)

if __name__ == "__main__":
    if "--stamp" in sys.argv:
        STAMP = True; sys.argv.remove("--stamp")
    main(sys.argv[1] if len(sys.argv) > 1 else f"cdna_kernels/{NAME}.s")
```

```python
import sys, os, struct
from asmlib import *

NAME = "recurrent_scan__spectral_fnet__dense_activation_silu__prompt"
MB = 1 << 20
HF_OFF = 0
AP_OFF = 16 * MB
MISC_OFF = 24 * MB
STAT_G = 0
CS_G = 65536
HFLAG_G = 640 * 1024
XCC_G = 656 * 1024
XFLAG_G = 672 * 1024
RS_G = 720 * 1024
RC_G = 724 * 1024
QF_G = 728 * 1024
XB_G = 1 * MB
STAMP = "--stamp" in sys.argv
OPT = dict(x.split("=") for x in sys.argv if "=" in x and not x.startswith("--"))
FORCE_SLOW = OPT.get("slow", "0") == "1"
NST = 32
CPRIO = int(OPT.get('cprio', '2'))
EPRIO = int(OPT.get('eprio', '1'))

def f2u(x): return "0x%08x" % struct.unpack("<I", struct.pack("<f", x))[0]

S_X, S_W1, S_W2, S_OUT, S_CR, S_HF, S_AP, S_MISC, S_DBG, S_CI = 4, 8, 12, 16, 20, 24, 28, 32, 36, 64
def SR(b): return f"s[{b}:{b+3}]"
sWV, sTILE, sKH, sC8, sCT, sT1, sJH, sLW = 3, 40, 41, 42, 43, 44, 45, 46
sSLOT = 47
sSPIN = 73
LOG2E = 1.4426950408889634

G1_STAGE = 45056
L_STAT = 135168
L_CSUM = L_STAT + 1024
L_CS4 = L_CSUM + 1024
L_ST8 = L_CS4 + 4096
L_U = L_ST8 + 256
LDS_TOTAL = L_U + 16384
G2_STAGE = 32768
XFLAG_BAR = 31

def srd(a, d, lo, hi, size, add=0):
    if add == 0:
        a(f"s_mov_b32 s{d}, s{lo}"); a(f"s_mov_b32 s{d+1}, s{hi}")
    else:
        a(f"s_add_u32 s{d}, s{lo}, {add}"); a(f"s_addc_u32 s{d+1}, s{hi}, 0")
    a(f"s_mov_b32 s{d+2}, {size}"); a(f"s_mov_b32 s{d+3}, 0x20000")

def stamp(a, idx, wave=0, vt=250):
    if not STAMP: return
    lab = a.uid("stamp%d" % idx)
    a(f"s_cmp_lg_u32 s{sWV}, {wave}")
    a(f"s_cbranch_scc1 {lab}")
    a("s_memrealtime s[74:75]")
    a("s_memtime s[76:77]")
    a("s_waitcnt lgkmcnt(0)")
    a(f"v_mov_b32 v{vt}, s76")
    a(f"v_mov_b32 v{vt+1}, {idx*4+64}")
    a(f"buffer_store_dword v{vt}, v{vt+1}, s[68:71], s72 offen")
    a("s_nop 1")
    a(f"v_mov_b32 v{vt}, s74")
    a(f"v_mov_b32 v{vt+1}, {idx*4}")
    a(f"buffer_store_dword v{vt}, v{vt+1}, s[68:71], s72 offen")
    a.label(lab)
def trace_mark(a):
    if STAMP: a("s_memtime s[98:99]")
def trace_commit(a):
    if not STAMP: return
    a("s_mov_b32 m0, s97"); a("v_writelane_b32 v249, s98, m0")
    a("s_add_u32 s97, s97, 1")
def trace_store(a):
    if not STAMP: return
    lab = a.uid("trs")
    a(f"s_cmp_lg_u32 s{sWV}, 0")
    a(f"s_cbranch_scc1 {lab}")
    a(f"s_add_u32 s68, s68, {MB}")
    a("s_addc_u32 s69, s69, 0")
    a(f"s_mov_b32 s70, {256*256}")
    a("s_lshl_b32 s72, s2, 8")
    a("v_lshlrev_b32 v250, 2, v1")
    a("buffer_store_dword v249, v250, s[68:71], s72 offen")
    a.label(lab)

HT = [0]
def htrace(a):
    if not STAMP: return
    i = HT[0]; HT[0] += 1
    if i >= 128: return
    a("s_memtime s[98:99]")
    a("s_waitcnt lgkmcnt(0)")
    a(f"v_writelane_b32 v{248 + (i >> 6)}, s98, {i & 63}")
def htrace_store(a):
    if not STAMP: return
    lab = a.uid("htrs")
    a(f"s_cmp_lg_u32 s{sWV}, 4")
    a(f"s_cbranch_scc1 {lab}")
    a(f"s_add_u32 s68, s68, {2*MB}")
    a("s_addc_u32 s69, s69, 0")
    a(f"s_mov_b32 s70, {256*512}")
    a("s_lshl_b32 s72, s2, 9")
    a("v_lshlrev_b32 v250, 2, v1")
    a("buffer_store_dword v248, v250, s[68:71], s72 offen")
    a("buffer_store_dword v249, v250, s[68:71], s72 offen offset:256")
    a.label(lab)

class VM:
    def __init__(self, a): self.a = a; self.ops = []
    def op(self, line, tag): self.a(line); self.ops.append(tag)
    def count(self, tag):
        n = 0
        for t in reversed(self.ops):
            if t == tag: return n
            n += 1
        raise KeyError(tag)
    def wait(self, tag, extra=""):
        n = min(self.count(tag), 63)
        self.a(f"s_waitcnt vmcnt({n}){extra}")

def multi_wave_sum(a, vs, ts):
    assert len(vs) >= 3
    for pat in ("quad_perm:[1,0,3,2]", "quad_perm:[2,3,0,1]", "row_half_mirror", "row_mirror"):
        for v in vs: a(f"v_add_f32_dpp v{v}, v{v}, v{v} {pat} row_mask:0xf bank_mask:0xf")
    for sw in ("v_permlane16_swap_b32", "v_permlane32_swap_b32"):
        for v, t in zip(vs, ts): a(f"v_mov_b32 v{t}, v{v}")
        for v, t in zip(vs, ts): a(f"{sw} v{t}, v{v}")
        for v, t in zip(vs, ts): a(f"v_add_f32 v{v}, v{t}, v{v}")

def interleave(a, mfmas, others, first=0, per=1):
    oi = 0
    for i, m in enumerate(mfmas):
        a(m)
        if i >= first:
            for _ in range(per):
                if oi < len(others): a(others[oi]); oi += 1
    while oi < len(others): a(others[oi]); oi += 1

def spin(a, name, load, check, first_loaded=False):
    L = a.uid(name + "_spin"); D = a.uid(name + "_done")
    a(f"s_mov_b32 s{sSPIN}, 0")
    if first_loaded:
        for l in check: a(l)
        a(f"s_cbranch_scc1 {D}")
    a.label(L)
    for l in load: a(l)
    a("s_waitcnt vmcnt(0)")
    for l in check: a(l)
    a(f"s_cbranch_scc1 {D}")
    a("s_sleep 1")
    a(f"s_add_u32 s{sSPIN}, s{sSPIN}, 1")
    a(f"s_cmp_lt_u32 s{sSPIN}, 0x8000")
    a(f"s_cbranch_scc1 {L}")
    a.label(D)

OOB = 17
def sel_voff(a, dst, src, turn):
    a(f"s_cmp_eq_u32 s{sLW}, {turn}")
    a("s_cselect_b64 s[62:63], -1, 0")
    a(f"v_cndmask_b32 v{dst}, v{OOB}, v{src}, s[62:63]")

def g1_bfrag_addrs(a, nhreg, d0, d1, d2, t0, t1):
    a(f"v_lshrrev_b32 v{t0}, 2, v1")
    a(f"v_mul_u32_u24 v{t0}, 448, v{t0}")
    a(f"v_and_b32 v{t1}, 3, v1")
    a(f"v_lshl_add_u32 v{t0}, v{t1}, 3, v{t0}")
    a(f"v_add_u32 v{t0}, 16384, v{t0}")
    a(f"v_bfe_u32 v{t1}, v1, 4, 1")
    a(f"v_lshlrev_b32 v{t1}, 5, v{t1}")
    a(f"s_mul_i32 s49, s{nhreg}, 192")
    a(f"v_add_u32 v{d0}, v{t0}, v{t1}")
    a(f"v_add_u32 v{d0}, s49, v{d0}")
    a(f"v_sub_u32 v{d1}, v{t0}, v{t1}")
    a(f"v_add_u32 v{d1}, s49, v{d1}")
    a(f"s_lshl_b32 s50, s{nhreg}, 5")
    a(f"v_xor_b32 v{d2}, s50, v{t1}")
    a(f"v_add_u32 v{d2}, v{t0}, v{d2}")
    a(f"v_add_u32 v{d2}, 384, v{d2}")

PX, PC, PF, PT = 128, 136, 140, 172
L_XN = 2 * G1_STAGE

def c_loads(a, srdc):
    a("v_and_b32 v157, 7, v1")
    a("v_lshlrev_b32 v158, 20, v157")
    a("v_lshrrev_b32 v159, 5, v1")
    a("v_lshl_add_u32 v158, v159, 6, v158")
    a("v_bfe_u32 v160, v1, 3, 2")
    a("v_lshl_add_u32 v158, v160, 3, v158")
    a(f"s_lshl_b32 s61, s{sLW}, 7")
    a("s_lshl_b32 s62, s2, 12")
    a("s_add_u32 s61, s61, s62")
    return [f"buffer_load_dwordx2 v[{PC}:{PC+1}], v158, {SR(srdc)}, s61 offen",
            f"buffer_load_dwordx2 v[{PC+2}:{PC+3}], v158, {SR(srdc)}, s61 offen offset:32"]

def common_prep(a):
    a("v_mov_b32 v161, 0x3f803f80")
    for q in range(8):
        a(f"v_dot2_f32_bf16 v162, v{PX+q}, v161, {'0' if q == 0 else 'v162'}")
        a(f"v_dot2_f32_bf16 v163, v{PX+q}, v{PX+q}, {'0' if q == 0 else 'v163'}")
        a(f"v_lshlrev_b32 v{PF+2*q}, 16, v{PX+q}")
        a(f"v_and_b32 v{PF+1+2*q}, 0xffff0000, v{PX+q}")
    fill = ["v_lshrrev_b32 v166, 2, v1", "v_mul_u32_u24 v166, 576, v166", "v_and_b32 v167, 1, v1", "v_mul_u32_u24 v167, 288, v167",
            "v_add_u32 v166, v166, v167", "v_bfe_u32 v167, v1, 1, 1", "v_lshl_add_u32 v166, v167, 3, v166",
            f"s_lshl_b32 s60, s{sWV}, 4", f"s_add_u32 s60, s60, {L_XN}", "v_add_u32 v166, s60, v166",
            "v_lshrrev_b32 v168, 2, v0", "v_mul_u32_u24 v168, 144, v168", "v_and_b32 v167, 3, v0", "v_lshl_add_u32 v168, v167, 2, v168",
            f"v_add_u32 v168, {L_XN}, v168"]
    a(fill.pop(0)); a(fill.pop(0)); a(fill.pop(0))
    for pat in ("quad_perm:[1,0,3,2]", "quad_perm:[2,3,0,1]", "row_half_mirror", "row_mirror"):
        for v in (162, 163): a(f"v_add_f32_dpp v{v}, v{v}, v{v} {pat} row_mask:0xf bank_mask:0xf")
        a(fill.pop(0))
    for sw in ("v_permlane16_swap_b32", "v_permlane32_swap_b32"):
        a("v_mov_b32 v164, v162"); a("v_mov_b32 v165, v163")
        a(fill.pop(0)); a(fill.pop(0))
        a(f"{sw} v164, v162"); a(f"{sw} v165, v163")
        a("v_add_f32 v162, v164, v162"); a("v_add_f32 v163, v165, v163")
    a(f"v_mul_f32 v162, {f2u(1.0/1024)}, v162")
    a(f"v_mul_f32 v163, {f2u(1.0/1024)}, v163")
    a("v_fma_f32 v163, -v162, v162, v163")
    a("v_max_f32 v163, 0, v163")
    a("v_cvt_pk_bf16_f32 v163, v162, v163")
    a("v_lshlrev_b32 v162, 16, v163")
    a("v_and_b32 v163, 0xffff0000, v163")
    a(f"v_add_f32 v163, {f2u(1e-5)}, v163")
    a("v_cvt_pk_bf16_f32 v163, v163, v163")
    a("v_and_b32 v163, 0xffff0000, v163")
    a("v_sqrt_f32 v163, v163")
    a(fill.pop(0))
    a("v_cvt_pk_bf16_f32 v163, v163, v163")
    a("v_and_b32 v163, 0xffff0000, v163")
    a("v_rcp_f32 v164, v163")
    while fill: a(fill.pop(0))
    a("v_mul_f32_e64 v165, -v162, v164")
    a(f"s_lshl_b32 s60, s{sWV}, 3")
    a(f"s_add_u32 s60, s60, {L_ST8}")
    a("v_mov_b32 v167, s60")
    a("ds_write_b64 v167, v[162:163]")
    for q in range(8):
        P = f"v[{PF+2*q}:{PF+2*q+1}]"
        a(f"v_pk_fma_f32 {P}, {P}, v[164:165], v[164:165] op_sel:[0,0,1] op_sel_hi:[1,0,1]")
    for q in range(8): a(f"v_cvt_pk_bf16_f32 v{PX+q}, v{PF+2*q}, v{PF+2*q+1}")
    a(f"ds_write_b64 v166, v[{PX}:{PX+1}]")
    a(f"ds_write_b64 v166, v[{PX+2}:{PX+3}] offset:144")
    a(f"ds_write_b64 v166, v[{PX+4}:{PX+5}] offset:9216")
    a(f"ds_write_b64 v166, v[{PX+6}:{PX+7}] offset:9360")
    a("v_lshrrev_b32 v169, 4, v0")
    a("v_lshlrev_b32 v169, 6, v169")
    a("v_bfe_u32 v167, v0, 1, 1")
    a("v_lshl_add_u32 v169, v167, 5, v169")
    a("v_bfe_u32 v167, v0, 2, 2")
    a("v_lshl_add_u32 v169, v167, 3, v169")
    a("v_and_b32 v167, 1, v0")
    a("v_lshl_add_u32 v169, v167, 2, v169")
    a(f"v_add_u32 v169, {L_U}, v169")
    a("v_lshlrev_b32 v170, 4, v157")
    a("v_lshl_add_u32 v170, v159, 13, v170")
    a("v_lshl_add_u32 v170, v160, 8, v170")
    a("s_and_b32 s60, s2, 7")
    a("s_lshl_b32 s60, s60, 1")
    a("s_lshr_b32 s61, s2, 7")
    a("s_add_u32 s60, s60, s61")
    a("s_lshl_b32 s60, s60, 20")
    a("s_bfe_u32 s61, s2, 0x40003")
    a("s_lshr_b32 s62, s61, 1")
    a("s_lshl_b32 s62, s62, 10")
    a("s_add_u32 s60, s60, s62")
    a("s_and_b32 s61, s61, 1")
    a("s_lshl_b32 s61, s61, 7")
    a("s_add_u32 s60, s60, s61")
    a(f"s_lshl_b32 s61, s{sWV}, 14")
    a("s_add_u32 s60, s60, s61")
    a(f"s_add_u32 s95, s60, {112*8192}")
    a("s_waitcnt lgkmcnt(0)")
    a("s_barrier")
    for s1 in range(8): a(f"ds_read_b32 v{PX+s1}, v168 offset:{16*s1}")
    a(f"s_mov_b32 s60, {f2u(0.7071067811865476)}")
    a("s_mov_b32 s61, s60")
    a("s_waitcnt lgkmcnt(0)")
    for q in range(8):
        a(f"v_lshlrev_b32 v{PF+2*q}, 16, v{PX+q}")
        a(f"v_and_b32 v{PF+1+2*q}, 0xffff0000, v{PX+q}")
    X = lambda s: f"v[{PF+2*s}:{PF+1+2*s}]"
    T = lambda i: f"v[{PT+2*i}:{PT+1+2*i}]"
    NEG = "neg_lo:[0,1] neg_hi:[0,1]"
    for l in [f"v_pk_add_f32 {T(0)}, {X(0)}, {X(4)}", f"v_pk_add_f32 {T(1)}, {X(0)}, {X(4)} {NEG}",
              f"v_pk_add_f32 {T(2)}, {X(2)}, {X(6)}", f"v_pk_add_f32 {T(3)}, {X(2)}, {X(6)} {NEG}",
              f"v_pk_add_f32 {T(4)}, {X(1)}, {X(5)}", f"v_pk_add_f32 {T(5)}, {X(1)}, {X(5)} {NEG}",
              f"v_pk_add_f32 {T(6)}, {X(3)}, {X(7)}", f"v_pk_add_f32 {T(7)}, {X(3)}, {X(7)} {NEG}",
              f"v_pk_add_f32 {X(0)}, {T(0)}, {T(2)}", f"v_pk_add_f32 {X(4)}, {T(0)}, {T(2)} {NEG}",
              f"v_pk_add_f32 {X(1)}, {T(4)}, {T(6)}", f"v_pk_add_f32 {X(5)}, {T(6)}, {T(4)} {NEG}",
              f"v_pk_add_f32 {X(2)}, {T(5)}, {T(7)} {NEG}", f"v_pk_add_f32 {X(3)}, {T(5)}, {T(7)}",
              f"v_pk_add_f32 {T(0)}, {X(0)}, {X(1)}", f"v_pk_add_f32 {T(2)}, {X(0)}, {X(1)} {NEG}",
              f"v_pk_fma_f32 {T(4)}, {X(2)}, s[60:61], {T(1)}",
              f"v_pk_fma_f32 {T(5)}, {X(3)}, s[60:61], {T(3)} neg_lo:[1,0,1] neg_hi:[1,0,1]",
              f"v_pk_fma_f32 {T(6)}, {X(2)}, s[60:61], {T(1)} neg_lo:[1,0,0] neg_hi:[1,0,0]",
              f"v_pk_fma_f32 {T(7)}, {X(3)}, s[60:61], {T(3)} neg_lo:[1,0,0] neg_hi:[1,0,0]"]: a(l)
    srcs = [PT+0, PT+4, PT+8, PT+10, PF+8, PF+10, PT+12, PT+14]
    for k, s in enumerate(srcs):
        a(f"v_cvt_pk_f16_f32 v{PX+k}, v{s}, v{s+1}")
    for k in range(8): a(f"ds_write_b32 v169, v{PX+k} offset:{2048*k}")

CSTORE = f"buffer_store_dwordx4 v[{PC}:{PC+3}], v170, {SR(S_HF)}, s95 offen sc1"

def gen(a):
    a.label(NAME + "_kernel")
    a("s_cmp_ge_u32 s2, 256")
    a("s_cbranch_scc1 L_end")
    a("s_load_dwordx8 s[48:55], s[0:1], 0")
    a("s_load_dwordx8 s[56:63], s[0:1], 48")
    a("s_load_dwordx2 s[78:79], s[0:1], 80")
    a("v_and_b32 v1, 63, v0")
    a("v_lshrrev_b32 v2, 6, v0")
    a("s_nop 0")
    a(f"v_readfirstlane_b32 s{sWV}, v2")
    a(f"s_and_b32 s{sTILE}, s2, 3")
    a(f"s_lshl_b32 s{sTILE}, s{sTILE}, 2")
    a("s_bfe_u32 s80, s2, 0x20003")
    a(f"s_add_u32 s{sTILE}, s{sTILE}, s80")
    a(f"s_bfe_u32 s{sKH}, s2, 0x10002")
    a(f"s_lshr_b32 s{sC8}, s2, 5")
    a(f"s_lshl_b32 s{sCT}, s{sKH}, 3")
    a(f"s_add_u32 s{sCT}, s{sCT}, s{sC8}")
    a(f"s_lshr_b32 s{sT1}, s{sTILE}, 1")
    a(f"s_and_b32 s{sJH}, s{sTILE}, 1")
    a(f"s_and_b32 s{sLW}, s{sWV}, 3")
    a("s_waitcnt lgkmcnt(0)")
    srd(a, S_X, 48, 49, 4 * MB)
    srd(a, S_W1, 56, 57, 1024 * 3584 * 2)
    srd(a, S_W2, 58, 59, 1024 * 3584 * 2)
    srd(a, S_OUT, 60, 61, 4 * MB)
    srd(a, S_CR, 50, 51, 8 * MB)
    srd(a, S_CI, 52, 53, 8 * MB)
    srd(a, S_HF, 78, 79, 16 * MB, HF_OFF)
    srd(a, S_AP, 78, 79, 8 * MB, AP_OFF)
    srd(a, S_MISC, 78, 79, 16 * MB, MISC_OFF)
    srd(a, S_DBG, 62, 63, 256)
    if STAMP:
        srd(a, 68, 78, 79, 256 * NST * 4, 200 * MB)
        a(f"s_mul_i32 s72, s2, {NST*4}")
    a(f"s_lshl_b32 s48, s{sTILE}, 1")
    a(f"s_add_u32 s48, s48, s{sKH}")
    a("s_lshl_b32 s48, s48, 7")
    a(f"s_add_u32 s78, s48, {HFLAG_G}")
    a(f"s_lshl_b32 s48, s{sC8}, 4")
    a("s_add_u32 s79, s78, s48")
    a("s_lshl_b32 s48, s2, 7")
    a(f"s_add_u32 s80, s48, {XFLAG_G}")
    a("s_xor_b32 s81, s80, 512")
    stamp(a, 0)
    a(f"s_lshl_b32 s60, s{sWV}, 8")
    a("s_add_u32 s60, s60, s2")
    a("s_lshl_b32 s60, s60, 11")
    a("v_lshlrev_b32 v156, 4, v1")
    a(f"buffer_load_dwordx4 v[{PX}:{PX+3}], v156, {SR(S_X)}, s60 offen")
    a(f"buffer_load_dwordx4 v[{PX+4}:{PX+7}], v156, {SR(S_X)}, s60 offen offset:1024")
    a(f"s_cmp_ge_u32 s{sWV}, 4")
    a("s_cbranch_scc0 L_consumer")
    gen_helper(a)
    gen_consumer(a)
    a.label("L_end")
    a("s_endpgm")


class BG:
    def __init__(self): self.items = []
    def __call__(self, s): self.items.append(("i", s))
    def nop(self, n): self.items.append(("i", f"s_nop {n-1}"))
    def op(self, line, tag): self.items.append(("op", line, tag))
    def wait(self, tag): self.items.append(("wait", tag))
    def call(self, fn): self.items.append(("call", fn))
    def safe(self): self.items.append(("safe",))
    def fence(self): self.items.append(("fence",))
    fenced = False
    def emit(self, a, vm, budget):
        n = 0
        while self.items and not self.fenced:
            it = self.items.pop(0)
            if it[0] == "i": a(it[1]); n += 1
            elif it[0] == "op": vm.op(it[1], it[2]); n += 1
            elif it[0] == "wait": vm.wait(it[1])
            elif it[0] == "call": it[1](); n += 8
            elif it[0] == "fence": self.fenced = True
            elif it[0] == "safe" and n >= budget: return

sEP = 94
def gen_helper(a):
    vm = VM(a)
    vm.ops = ["x", "x"]
    hook = [lambda: None]
    SLAB = 64 * 7168
    HPRIO = int(OPT.get("hprio", "0"))
    BUDGET = int(OPT.get("budget", "3"))
    if HPRIO: a(f"s_setprio {HPRIO}")
    a(f"s_lshl_b32 s48, s2, 3")
    a(f"s_add_u32 s48, s48, s{sLW}")
    a("s_cmp_lg_u32 s48, 0")
    a("s_cbranch_scc1 L_noepoch")
    a("s_memrealtime s[48:49]")
    a("v_mov_b32 v10, 0")
    a("s_waitcnt lgkmcnt(0)")
    a("s_or_b32 s48, s48, 1")
    a("v_mov_b32 v11, s48")
    a("s_mov_b64 exec, 1")
    a(f"buffer_store_dword v11, v10, {SR(S_DBG)}, 0 offen sc1")
    a("s_mov_b64 exec, -1")
    a.label("L_noepoch")
    a("v_mul_u32_u24 v10, 4682, v1")
    a("v_lshrrev_b32 v10, 16, v10")
    a("v_mul_u32_u24 v11, 14, v10")
    a("v_sub_u32 v11, v1, v11")
    a("v_lshrrev_b32 v12, 1, v10")
    a("v_and_b32 v10, 1, v10")
    a("v_lshl_add_u32 v10, v10, 3, v12")
    a(f"s_mov_b32 s56, {SLAB}")
    a("v_mul_lo_u32 v10, v10, s56")
    a("v_lshl_add_u32 v14, v11, 7, v10")
    a("s_mul_i32 s56, s2, 1792")
    a("v_add_u32 v14, s56, v14")
    a("v_lshlrev_b32 v15, 7, v1")
    a("s_mul_i32 s56, s2, 28672")
    a("v_add_u32 v15, s56, v15")
    a("v_cmp_gt_u32 vcc, 56, v1")
    a(f"v_bfrev_b32 v{OOB}, 1")
    a("s_nop 0")
    a(f"v_cndmask_b32 v14, v{OOB}, v14, vcc")
    a(f"v_cndmask_b32 v15, v{OOB}, v15, vcc")
    def touch(srdb, vreg, turn, soff, fl=""):
        sel_voff(a, 13, vreg, turn)
        a(f"s_mov_b32 s55, {soff}")
        vm.op(f"buffer_load_dword v16, v13, {SR(srdb)}, s55 offen {fl}", "touch")
    touch(S_W1, 14, 0, 0)
    a("v_lshrrev_b32 v10, 3, v1")
    a("v_and_b32 v11, 7, v1")
    a("v_xor_b32 v11, v11, v10")
    a("v_lshlrev_b32 v2, 19, v10")
    a("v_lshl_add_u32 v2, v11, 4, v2")
    a(f"s_lshl_b32 s48, s{sJH}, 4")
    a(f"s_lshl_b32 s49, s{sLW}, 2")
    a("s_add_u32 s48, s48, s49")
    a("s_lshl_b32 s48, s48, 3")
    a(f"s_add_u32 s48, s48, s{sT1}")
    a("s_lshl_b32 s48, s48, 11")
    a(f"s_lshr_b32 s82, s{sTILE}, 3")
    a(f"s_mul_i32 s83, s82, {8*SLAB}")
    a("s_lshl_b32 s82, s82, 10")
    a("s_add_u32 s84, s48, s82")
    a("s_sub_u32 s85, s48, s82")
    a(f"s_lshl_b32 s96, s{sLW}, 12")
    def issueA(n):
        slot = (n % 3) * G1_STAGE
        a(f"s_add_u32 m0, s96, {slot}")
        for q in range(4):
            a(f"s_add_u32 s55, s{84 if n < 8 else 85}, {q*16384 + n*128}")
            vm.op(f"buffer_load_dwordx4 v2, {SR(S_X)}, s55 offen lds", f"st{n}")
            hook[0]()
            if q < 3: a("s_add_u32 m0, m0, 1024")
    issueA(0)
    a(f"s_lshr_b32 s49, s{sLW}, 1")
    a("s_lshl_b32 s49, s49, 5")
    a(f"s_and_b32 s50, s{sLW}, 1")
    a("s_lshl_b32 s50, s50, 2")
    a("s_add_u32 s49, s49, s50")
    a("s_mul_i32 s49, s49, 7168")
    a(f"s_mul_i32 s50, s{sCT}, 448")
    a("s_add_u32 s49, s49, s50")
    a("s_movk_i32 s51, 2341")
    a("s_movk_i32 s52, 7168")
    def baddr(q):
        a(f"v_add_u32 v10, {64*q}, v1")
        a("v_mul_u32_u24 v11, s51, v10")
        a("v_lshrrev_b32 v11, 16, v11")
        a("v_mul_u32_u24 v12, 28, v11")
        a("v_sub_u32 v12, v10, v12")
        a("v_bfe_u32 v13, v11, 2, 1")
        a("v_lshlrev_b32 v13, 1, v13")
        a("v_xor_b32 v12, v12, v13")
        a("v_lshrrev_b32 v13, 2, v11")
        a("v_and_b32 v11, 3, v11")
        a("v_lshl_add_u32 v11, v13, 3, v11")
        a("v_mul_u32_u24 v11, s52, v11")
        a("v_lshl_add_u32 v11, v12, 4, v11")
        a(f"v_add_u32 v{3+q}, s49, v11")
    a(f"s_mul_i32 s54, s{sLW}, 7168")
    a("s_add_u32 s54, s54, 16384")
    def issueB(n, setup=False):
        slot = (n % 3) * G1_STAGE
        a(f"s_add_u32 m0, s54, {slot}")
        if n < 8: a(f"s_add_u32 s55, s83, {n*SLAB}")
        else: a(f"s_sub_u32 s55, {n*SLAB}, s83")
        for q in range(7):
            if setup: baddr(q)
            vm.op(f"buffer_load_dwordx4 v{3+q}, {SR(S_W1)}, s55 offen lds", f"st{n}")
            hook[0]()
            if q < 6:
                a("s_add_u32 m0, m0, 1024")
                if not setup: a("s_nop 0")
    issueB(0, setup=True)
    issueA(1); issueB(1)
    touch(S_W1, 14, 2, 2 * SLAB)
    for l in c_loads(a, S_CI): vm.op(l, "cl")
    touch(S_W1, 14, 3, 4 * SLAB)
    a(f"s_and_b32 s59, s{sLW}, 1")
    g1_bfrag_addrs(a, 59, 36, 37, 38, 10, 11)
    a(f"s_lshr_b32 s60, s{sLW}, 1")
    a(f"s_mul_i32 s61, s60, {32*448}")
    for r in (36, 37, 38): a(f"v_add_u32 v{r}, s61, v{r}")
    a("v_lshrrev_b32 v10, 4, v1")
    a("v_lshlrev_b32 v10, 4, v10")
    a("s_mul_i32 s61, s59, 384")
    a("v_add_u32 v39, s61, v10")
    a("s_lshl_b32 s61, s59, 6")
    a("s_add_u32 s61, s61, 768")
    a("v_add_u32 v40, s61, v10")
    a(f"s_lshl_b32 s86, s{sCT}, 4")
    a(f"s_add_u32 s86, s86, s{sTILE}")
    a("s_lshl_b32 s86, s86, 1")
    a("s_add_u32 s86, s86, s60")
    a("s_mul_i32 s86, s86, 896")
    a(f"s_add_u32 s86, s86, {CS_G}")
    a(f"s_and_b32 s87, s{sTILE}, 7")
    for i in range(4): a(f"v_mov_b32 v{44+i}, 0x3f803f80")
    a("s_getreg_b32 s60, hwreg(HW_REG_XCC_ID)")
    a("s_and_b32 s88, s60, 15")
    a("s_and_b32 s60, s2, 7")
    a("s_lshl_b32 s60, s60, 1")
    a("s_lshr_b32 s61, s2, 7")
    a("s_add_u32 s60, s60, s61")
    a("s_bfe_u32 s61, s2, 0x40003")
    a("s_lshl_b32 s90, s60, 10")
    a("s_lshl_b32 s91, s61, 6")
    a("s_add_u32 s90, s90, s91")
    a("s_lshl_b32 s91, s60, 7")
    a("s_lshl_b32 s61, s61, 2")
    a("s_add_u32 s91, s91, s61")
    a(f"s_add_u32 s91, s91, {RS_G}")
    a(f"s_lshl_b32 s92, s{sCT}, 7")
    a(f"s_lshl_b32 s61, s{sTILE}, 2")
    a("s_add_u32 s92, s92, s61")
    a(f"s_add_u32 s92, s92, {RC_G}")
    TC, TS, CC, SS, NSS = 64, 80, 96, 104, 112
    a("v_and_b32 v60, 31, v1")
    a("v_cvt_f32_u32 v60, v60")
    a(f"v_mul_f32 v60, {f2u(1.0/1024)}, v60")
    a("v_lshrrev_b32 v61, 5, v1")
    a("v_lshlrev_b32 v61, 2, v61")
    a("v_cvt_f32_u32 v61, v61")
    a("v_mul_f32 v61, v61, v60")
    for r in range(16):
        K = 8 * (r >> 2) + (r & 3)
        t = 52 + (r & 1) * 3
        a(f"v_fmamk_f32 v{t}, v60, {f2u(float(K))}, v61")
        a(f"v_cos_f32 v{TC+r}, v{t}")
        a(f"v_sin_f32 v{TS+r}, v{t}")
        a(f"v_mul_f32 v{t}, {f2u(32.0)}, v{t}")
        a(f"v_fract_f32 v{t}, v{t}")
        a(f"v_cos_f32 v{t+1}, v{t}")
        a(f"v_sin_f32 v{t+2}, v{t}")
        if r & 1:
            a("s_nop 0")
            a(f"v_cvt_pk_f16_f32 v{CC+(r>>1)}, v53, v56")
            a(f"v_cvt_pk_f16_f32 v{SS+(r>>1)}, v54, v57")
            a(f"v_cvt_pk_f16_f32 v{NSS+(r>>1)}, -v54, -v57")
    a("v_mov_b32 v58, 0")
    vm.op(f"buffer_load_dword v59, v58, {SR(S_DBG)}, 0 offen sc1", "ep")
    def job_colsum(n):
        lab = a.uid("cs")
        a(f"s_cmp_lg_u32 s87, {n}")
        a(f"s_cbranch_scc1 {lab}")
        slot = (n % 3) * G1_STAGE
        for r in range(3): a(f"v_add_u32 v{41+r}, {slot}, v{36+r}")
        for i in range(7):
            for hh in range(2):
                d = 184 + 4 * i + 2 * hh
                if i < 6: a(f"ds_read_b64_tr_b16 v[{d}:{d+1}], v{41 + (i & 1)} offset:{16*hh*448 + i*32}")
                else: a(f"ds_read_b64_tr_b16 v[{d}:{d+1}], v43 offset:{16*hh*448}")
        a("s_waitcnt lgkmcnt(0)")
        for i in range(7):
            a(f"v_mfma_f32_16x16x32_bf16 v[{212+4*i}:{215+4*i}], v[{184+4*i}:{187+4*i}], v[44:47], 0")
        a("s_mov_b32 exec_lo, 0x00010001")
        a("s_mov_b32 exec_hi, 0x00010001")
        a.nop(6)
        for i in range(6):
            a(f"buffer_store_dwordx4 v[{212+4*i}:{215+4*i}], v39, {SR(S_MISC)}, s86 offen offset:{64*i} sc1")
        a(f"buffer_store_dwordx4 v[236:239], v40, {SR(S_MISC)}, s86 offen sc1")
        a("s_mov_b64 exec, -1")
        a.label(lab)
    vm.wait("x")
    common_prep(a)
    b = BG()
    def job_pub0():
        vm.wait("cl")
        vm.op(CSTORE, "cst")
        a(f"v_lshlrev_b32 v19, 4, v1")
        a(f"v_add_u32 v20, {L_ST8}, v19")
        a("ds_read_b128 v[48:51], v20")
        sel_voff(a, 13, 19, 0)
        a("s_waitcnt lgkmcnt(0)")
        a("s_mov_b64 exec, 15")
        vm.op(f"buffer_store_dwordx4 v[48:51], v13, {SR(S_MISC)}, s90 offen offset:{STAT_G} sc1", "pub")
        a("s_mov_b64 exec, -1")
    def job_epoch():
        vm.wait("ep")
        spin(a, "ep", [f"buffer_load_dword v59, v58, {SR(S_DBG)}, 0 offen sc1"],
             [f"v_readfirstlane_b32 s{sEP}, v59", "s_nop 0", f"s_cmp_lg_u32 s{sEP}, 0"], first_loaded=True)
        a(f"v_mov_b32 v60, s{sEP}")
        a("v_mov_b32 v61, s88")
        a(f"s_lshl_b32 s61, s{sC8}, 3")
        a("s_add_u32 s61, s61, s78")
        a(f"s_add_u32 s61, s61, {XCC_G-HFLAG_G}")
        a(f"v_mov_b32 v57, {L_ST8+68}")
        sel_voff(a, 13, 58, 0)
        a("s_mov_b64 exec, 1")
        vm.op(f"buffer_store_dwordx2 v[60:61], v13, {SR(S_MISC)}, s61 offen sc1", "pub")
        a("ds_write_b32 v57, v60")
        a("s_mov_b64 exec, -1")
    def job_ready():
        sel_voff(a, 13, 58, 0)
        a("s_mov_b64 exec, 1")
        vm.op(f"buffer_store_dword v60, v13, {SR(S_MISC)}, s91 offen sc1", "rdy")
        vm.op(f"buffer_store_dword v60, v13, {SR(S_MISC)}, s92 offen sc1", "rdy")
        a("s_mov_b64 exec, -1")
        a(f"s_lshl_b32 s60, s{sTILE}, 7")
        a(f"s_add_u32 s60, s60, {RS_G}")
        a(f"s_lshl_b32 s61, s{sCT}, 7")
        a(f"s_add_u32 s61, s61, {RC_G}")
        a("v_mov_b32 v62, s60")
        a("v_mov_b32 v63, s61")
        a("v_cmp_gt_u32 vcc, 16, v1")
        a(f"s_add_u32 s60, s78, {XCC_G-HFLAG_G}")
        a("v_and_b32 v10, 15, v1")
        a("v_cndmask_b32 v62, v63, v62, vcc")
        a("v_mov_b32 v63, s60")
        a("v_cmp_gt_u32 vcc, 32, v1")
        a("s_mov_b32 s62, -1")
        a("s_mov_b32 s63, 0x5555")
        a("v_cndmask_b32 v62, v63, v62, vcc")
        a("v_lshl_add_u32 v62, v10, 2, v62")
    CHK_LD = f"buffer_load_dword v63, v62, {SR(S_MISC)}, 0 offen sc1"
    CHK = [f"v_cmp_eq_u32 vcc, s{sEP}, v63", "s_mov_b32 s62, -1", "s_mov_b32 s63, 0x5555", "s_and_b64 vcc, vcc, s[62:63]", "s_cmp_eq_u64 vcc, s[62:63]"]
    def job_pload(): vm.op(CHK_LD, "pl")
    def job_gather():
        vm.wait("pl")
        spin(a, "pp", [CHK_LD], CHK, first_loaded=True)
        a("v_cmp_eq_u32 vcc, s88, v63")
        a(f"s_lshl_b32 s60, s{sTILE}, 10")
        a(f"s_lshl_b32 s61, s{sLW}, 8")
        a("s_and_b32 s93, vcc_hi, 0xaaaa")
        a("s_add_u32 s60, s60, s61")
        a(f"s_add_u32 m0, s61, {L_STAT}")
        a("v_lshlrev_b32 v10, 2, v1")
        vm.op(f"buffer_load_dword v10, {SR(S_MISC)}, s60 offen sc1 lds", "g")
        a(f"s_lshl_b32 s60, s{sCT}, 5")
        a(f"s_lshl_b32 s61, s{sLW}, 3")
        a("s_add_u32 s60, s60, s61")
        a("s_mul_i32 s60, s60, 896")
        a(f"s_add_u32 s60, s60, {CS_G}")
        a(f"s_add_u32 s55, s60, {4*896}")
        a("v_lshlrev_b32 v10, 4, v1")
        for p in range(8):
            vm.op(f"buffer_load_dwordx4 v[{20+4*p}:{23+4*p}], v10, {SR(S_MISC)}, {'s60' if p < 4 else 's55'} offen offset:{896*(p&3)} sc1", "g")
    def job_gather1b():
        a(f"s_mul_i32 s61, s{sLW}, 896")
        a(f"s_add_u32 s61, s61, {L_CS4}")
        a("v_add_u32 v11, s61, v10")
        a("s_cmp_eq_u32 s93, 0xaaaa")
        a(f"s_cselect_b32 s60, {0 if FORCE_SLOW else 1}, 0")
        a("v_mov_b32 v62, s60")
        a(f"v_mov_b32 v12, {L_ST8+64}")
        vm.wait("g")
        for p in range(1, 8):
            a(f"v_pk_add_f32 v[20:21], v[20:21], v[{20+4*p}:{21+4*p}]")
            a(f"v_pk_add_f32 v[22:23], v[22:23], v[{22+4*p}:{23+4*p}]")
        a("s_mov_b32 exec_hi, 0xffffff")
        a("ds_write_b128 v11, v[20:23]")
        a("ds_write_b32 v12, v62")
        a("s_mov_b64 exec, -1")
    def job_gather2():
        a(f"v_add_u32 v11, {L_CS4}, v10")
        for p in range(4): a(f"ds_read_b128 v[{20+4*p}:{23+4*p}], v11 offset:{896*p}")
        a(f"v_add_u32 v11, {L_CSUM}, v10")
        a("s_waitcnt lgkmcnt(0)")
        for p in range(1, 4):
            a(f"v_pk_add_f32 v[20:21], v[20:21], v[{20+4*p}:{21+4*p}]")
            a(f"v_pk_add_f32 v[22:23], v[22:23], v[{22+4*p}:{23+4*p}]")
        a("s_mov_b32 exec_hi, 0xffffff")
        a("ds_write_b128 v11, v[20:23]")
        a("s_mov_b64 exec, -1")
    RDY = 10
    W2S = int(OPT.get('w2s', '8'))
    jobs = {
        0: [lambda: touch(S_W1, 14, 0, 6 * SLAB), job_pub0],
        1: [job_epoch],
        RDY: [job_ready],
        12: [job_pload],
        13: [job_gather],
        14: [job_gather1b],
        15: [job_gather2],
    }
    for k in range(4):
        jobs[W2S + k] = [lambda k=k: touch(S_W2, 15, k, k * 7168)] + jobs.get(W2S + k, [])
    for n in range(16):
        htrace(a)
        vm.wait(f"st{n}", " lgkmcnt(0)")
        htrace(a)
        a("s_barrier")
        htrace(a)
        b.fenced = False
        hook[0] = (lambda: b.emit(a, vm, BUDGET)) if n < 13 else (lambda: None)
        if n + 2 < 16:
            issueA(n + 2); issueB(n + 2)
        hook[0] = lambda: None
        htrace(a)
        if n < 8: job_colsum(n)
        for j in jobs.get(n, []): j()
        if n == RDY - 2: assert "pub" in vm.ops and not any(it[0] == "op" and it[2] == "pub" for it in b.items), "pub not emitted before step RDY-2"
    assert not b.items, len(b.items)
    a("s_waitcnt lgkmcnt(0)")
    a("s_barrier")
    a("v_lshlrev_b32 v232, 4, v1")
    a("v_add_u32 v232, s96, v232")
    a("v_lshrrev_b32 v10, 4, v1")
    a("v_and_b32 v11, 15, v1")
    a("v_lshlrev_b32 v12, 1, v10")
    a("v_xor_b32 v13, v11, v12")
    a("v_lshlrev_b32 v233, 11, v10")
    a("v_lshl_add_u32 v234, v13, 4, v233")
    a("v_xor_b32 v13, 8, v13")
    a("v_lshl_add_u32 v235, v13, 4, v233")
    a(f"v_add_u32 v235, {4*2048}, v235")
    a(f"s_lshl_b32 s60, s{sLW}, 15")
    a(f"s_lshl_b32 s61, s{sC8}, 8")
    a("s_add_u32 s60, s60, s61")
    a("v_add_u32 v233, s60, v234")
    a("v_add_u32 v234, s60, v235")
    a(f"s_mul_i32 s82, s{sKH}, {56*8192}")
    a(f"s_lshl_b32 s60, s{sTILE}, 20")
    a("s_add_u32 s82, s82, s60")
    a(f"s_mul_i32 s83, s{sKH}, {1792*2048}")
    a("s_add_u32 s84, s96, 16384")
    def g2B(slotexpr, srdb, soff, tag, fl=""):
        a(f"s_add_u32 m0, s84, {slotexpr}")
        a(f"s_add_u32 s55, {soff}, 16384")
        for q in range(4):
            so = soff if q < 2 else "s55"
            vm.op(f"buffer_load_dwordx4 v{233 + (q & 1)}, {SR(srdb)}, {so} offen {fl} lds", tag)
            if q < 3:
                a("s_add_u32 m0, m0, 1024"); a("s_nop 0")
    def g2A(slotexpr, tag):
        a(f"s_add_u32 m0, s96, {slotexpr}")
        a("s_nop 0")
        for q in range(4):
            vm.op(f"buffer_load_dwordx4 v232, {SR(S_HF)}, s82 offen offset:{q*1024} {OPT.get('hld', 'sc1').replace('none', '')} lds", tag)
        a("s_add_u32 s82, s82, 16384")
    for n in range(3):
        g2B(n * G2_STAGE, S_W2, "s83", f"B{n}")
        a("s_add_u32 s83, s83, 131072")
    a("v_lshlrev_b32 v14, 7, v1")
    a("s_lshr_b32 s60, s2, 3")
    a("s_lshl_b32 s60, s60, 2")
    a(f"s_add_u32 s60, s60, s{sLW}")
    a("s_lshl_b32 s60, s60, 13")
    a("s_add_u32 s60, s60, s83")
    for k in range(int(OPT.get("w2pf", "1"))):
        vm.op(f"buffer_load_dword v16, v14, {SR(S_W2)}, s60 offen", "touch")
        a(f"s_add_u32 s60, s60, {MB}")
    a("v_lshrrev_b32 v10, 5, v1")
    a("v_lshlrev_b32 v56, 8, v10")
    a("v_bfe_u32 v11, v1, 2, 2")
    a("v_lshl_add_u32 v56, v11, 6, v56")
    a("v_bfe_u32 v11, v1, 4, 1")
    a("v_lshl_add_u32 v56, v11, 5, v56")
    a("v_and_b32 v12, 3, v1")
    a("v_lshl_add_u32 v56, v12, 3, v56")
    a("v_and_b32 v61, 15, v1")
    a("v_lshlrev_b32 v61, 6, v61")
    a("v_lshl_add_u32 v61, v11, 5, v61")
    a("v_lshl_add_u32 v61, v10, 4, v61")
    a("s_lshl_b32 s56, s2, 11")
    a(f"s_cmp_eq_u32 s{sLW}, 0")
    a("s_cselect_b32 s57, 0, -1")
    a(f"s_lshl_b32 s58, s{sLW}, 12")
    a(f"s_add_u32 s58, s58, {L_U}")
    a("s_mov_b32 s59, 0")
    a(f"s_lshl_b32 s60, s{sLW}, 20")
    a("s_add_u32 s60, s60, s56")
    a("s_mov_b32 s85, 0")
    a.label("L_fft")
    a("v_add_u32 v62, s58, v56")
    a(f"s_add_u32 s61, s60, {256*2048}")
    URE, UIM, DRE, DIM, VRE, VIM = 20, 28, 120, 136, 152, 160
    for part in range(2):
        for kk in range(2):
            for hh in range(2):
                d = URE + part * 8 + kk * 4 + hh * 2
                a(f"ds_read_b64_tr_b16 v[{d}:{d+1}], v62 offset:{part*2048 + kk*1024 + hh*512}")
    a("s_waitcnt lgkmcnt(0)")
    for i in range(8):
        a(f"v_and_b32 v{UIM+i}, s57, v{UIM+i}")
        a(f"v_xor_b32 v{UIM+i}, s59, v{UIM+i}")
    Cc = lambda kk: f"v[{CC+4*kk}:{CC+3+4*kk}]"
    Ss = lambda kk: f"v[{SS+4*kk}:{SS+3+4*kk}]"
    NS = lambda kk: f"v[{NSS+4*kk}:{NSS+3+4*kk}]"
    Dre = f"v[{DRE}:{DRE+15}]"; Dim = f"v[{DIM}:{DIM+15}]"
    def cplx(re_base, im_base):
        R = lambda kk: f"v[{re_base+4*kk}:{re_base+3+4*kk}]"
        I = lambda kk: f"v[{im_base+4*kk}:{im_base+3+4*kk}]"
        M = "v_mfma_f32_32x32x16_f16"
        a(f"{M} {Dre}, {R(0)}, {Cc(0)}, 0")
        a(f"{M} {Dim}, {R(0)}, {NS(0)}, 0")
        a(f"{M} {Dre}, {R(1)}, {Cc(1)}, {Dre}")
        a(f"{M} {Dim}, {R(1)}, {NS(1)}, {Dim}")
        a(f"{M} {Dre}, {I(0)}, {Ss(0)}, {Dre}")
        a(f"{M} {Dim}, {I(0)}, {Cc(0)}, {Dim}")
        a(f"{M} {Dre}, {I(1)}, {Ss(1)}, {Dre}")
        a(f"{M} {Dim}, {I(1)}, {Cc(1)}, {Dim}")
    cplx(URE, UIM)
    a.nop(12)
    for r in range(0, 16, 2):
        P = lambda bb: f"v[{bb+r}:{bb+r+1}]"
        t = 48 + (r & 2) * 2
        a(f"v_pk_mul_f32 v[{t}:{t+1}], {P(DRE)}, {P(TC)}")
        a(f"v_pk_mul_f32 v[{t+2}:{t+3}], {P(DIM)}, {P(TC)}")
        a(f"v_pk_fma_f32 v[{t}:{t+1}], {P(DIM)}, {P(TS)}, v[{t}:{t+1}]")
        a(f"v_pk_fma_f32 v[{t+2}:{t+3}], {P(DRE)}, {P(TS)}, v[{t+2}:{t+3}] neg_lo:[1,0,0] neg_hi:[1,0,0]")
        a(f"v_cvt_pk_f16_f32 v{VRE+(r>>1)}, v{t}, v{t+1}")
        a(f"v_cvt_pk_f16_f32 v{VIM+(r>>1)}, v{t+2}, v{t+3}")
    a.nop(2)
    cplx(VRE, VIM)
    a.nop(12)
    O = 168
    for r in range(0, 16, 2):
        a(f"v_cvt_pk_bf16_f32 v{O+(r>>1)}, v{DRE+r}, v{DRE+1+r}")
        a(f"v_cvt_pk_bf16_f32 v{O+8+(r>>1)}, -v{DIM+r}, -v{DIM+1+r}")
    a.nop(2)
    for base in (O, O + 4, O + 8, O + 12):
        a(f"v_permlane32_swap_b32 v{base}, v{base+2}")
        a(f"v_permlane32_swap_b32 v{base+1}, v{base+3}")
    a.nop(1)
    for base in (O, O + 8):
        for i in range(4): a(f"v_permlane16_swap_b32 v{base+i}, v{base+4+i}")
    a(f"buffer_store_dwordx4 v[{O}:{O+3}], v61, {SR(S_AP)}, s60 offen sc1")
    a(f"buffer_store_dwordx4 v[{O+4}:{O+7}], v61, {SR(S_AP)}, s60 offen offset:1024 sc1")
    a(f"buffer_store_dwordx4 v[{O+8}:{O+11}], v61, {SR(S_AP)}, s61 offen sc1")
    a(f"buffer_store_dwordx4 v[{O+12}:{O+15}], v61, {SR(S_AP)}, s61 offen offset:1024 sc1")
    a(f"s_cmp_eq_u32 s{sLW}, 0")
    a(f"s_cselect_b32 s58, {L_U+2048}, s58")
    a("s_cselect_b32 s59, 0, 0x80008000")
    a(f"s_sub_u32 s60, 8, s{sLW}")
    a(f"s_cmp_eq_u32 s{sLW}, 0")
    a("s_cselect_b32 s60, 4, s60")
    a("s_lshl_b32 s60, s60, 20")
    a("s_add_u32 s60, s60, s56")
    a("s_add_u32 s85, s85, 1")
    a("s_cmp_lt_u32 s85, 2")
    a("s_cbranch_scc1 L_fft")
    stamp(a, 14, wave=4)
    a("v_and_b32 v236, 31, v1")
    a("v_lshlrev_b32 v236, 2, v236")
    spin(a, "hp", [f"buffer_load_dword v237, v236, {SR(S_MISC)}, s78 offen sc1"],
         [f"v_cmp_eq_u32 vcc, s{sEP}, v237", "s_nop 1", "s_cmp_eq_u32 vcc_lo, -1"])
    stamp(a, 15, wave=4)
    vm.ops = []
    for n in range(3): g2A(n * G2_STAGE, f"s{n}")
    a(f"s_lshr_b32 s60, s{sLW}, 1")
    a("s_lshl_b32 s85, s60, 13")
    a(f"s_and_b32 s60, s{sLW}, 1")
    a("s_lshl_b32 s60, s60, 12")
    a("s_add_u32 s85, s85, s60")
    a(f"s_lshl_b32 s60, s{sKH}, 11")
    a("s_add_u32 s85, s85, s60")
    a(f"s_lshl_b32 s87, s{sTILE}, 20")
    a("s_add_u32 s87, s87, s85")
    a(f"s_add_u32 s87, s87, {112*8192}")
    a(f"s_lshl_b32 s88, s{sT1}, 20")
    a("v_lshlrev_b32 v235, 4, v1")
    a("v_mov_b32 v236, 0")
    a(f"v_mov_b32 v238, s{sEP}")
    sel_voff(a, 231, 236, 0)
    a("v_lshlrev_b32 v230, 4, v1")
    a("s_lshl_b32 s92, s2, 2")
    a(f"s_add_u32 s92, s92, {QF_G}")
    a(f"s_mov_b32 s93, {QF_G}")
    def g2stage(n, slotexpr):
        g2A(slotexpr, f"s{n}")
        g2B(slotexpr, S_W2, "s83", f"s{n}")
        a("s_add_u32 s83, s83, 131072")
    def ystage(n):
        ys = n - 28
        slot = (n % 4) * G2_STAGE
        a(f"s_add_u32 m0, s85, {slot}")
        a("s_nop 0")
        for q in range(2):
            vm.op(f"buffer_load_dwordx4 v235, {SR(S_HF)}, s87 offen offset:{q*1024} sc1 lds", f"s{n}")
        a("s_add_u32 s87, s87, 16384")
        g2B(slot, S_AP, "s88", f"s{n}", "sc1")
        a("s_add_u32 s88, s88, 131072")
    QLD = f"buffer_load_dwordx4 v[20:23], v230, {SR(S_MISC)}, s93 offen sc1"
    QCHK = [f"v_xor_b32 v20, s{sEP}, v20", f"v_xor_b32 v21, s{sEP}, v21", f"v_xor_b32 v22, s{sEP}, v22", f"v_xor_b32 v23, s{sEP}, v23",
            "v_or_b32 v20, v20, v21", "v_or3_b32 v20, v20, v22, v23", "v_cmp_ne_u32 vcc, 0, v20", "s_nop 1", "s_cmp_eq_u64 vcc, 0"]
    QL, QC = int(OPT.get("ql", "20")), int(OPT.get("qc", "24"))
    for n in range(36):
        vm.wait(f"s{n}")
        a("s_barrier")
        m = n + 3
        if m < 28: g2stage(m, (m % 4) * G2_STAGE)
        elif m < 36: ystage(m)
        if n == 0:
            a("s_mov_b64 exec, 1")
            vm.op(f"buffer_store_dword v238, v231, {SR(S_MISC)}, s92 offen sc1", "qf")
            a("s_mov_b64 exec, -1")
        if n == QL: vm.op(QLD, "q")
        if n == QC:
            vm.wait("q")
            spin(a, "qp", [QLD], QCHK, first_loaded=True)
    htrace_store(a)
    a("s_endpgm")

def gen_consumer(a):
    a.label("L_consumer")
    ACC = 16
    SET = [128, 172]
    sMH, sNH = 89, 90
    for l in c_loads(a, S_CR): a(l)
    a(f"s_lshr_b32 s{sMH}, s{sLW}, 1")
    a(f"s_and_b32 s{sNH}, s{sLW}, 1")
    a("v_and_b32 v10, 15, v1")
    a("v_lshrrev_b32 v11, 4, v1")
    a("v_and_b32 v12, 7, v1")
    a("v_xor_b32 v11, v11, v12")
    a("v_lshlrev_b32 v2, 7, v10")
    a("v_lshl_add_u32 v2, v11, 4, v2")
    a(f"s_lshl_b32 s48, s{sMH}, 13")
    a("v_add_u32 v2, s48, v2")
    a("v_xor_b32 v13, 64, v2")
    g1_bfrag_addrs(a, sNH, 3, 4, 5, 10, 11)
    for i in range(112): a(f"v_mov_b32 v{ACC+i}, 0")
    a(f"s_mov_b32 s{sSLOT}, 0")
    a("v_mov_b32 v6, v2"); a("v_mov_b32 v7, v3"); a("v_mov_b32 v8, v4"); a("v_mov_b32 v9, v5"); a("v_mov_b32 v14, v13")
    def reads(st, kb):
        L = []; b = SET[st]
        order = [("a", 0), ("w", 0), ("w", 1), ("a", 1), ("w", 2), ("w", 3), ("a", 2), ("w", 4), ("w", 5), ("a", 3), ("w", 6)]
        for kind, i in order:
            if kind == "a":
                L.append(f"ds_read_b128 v[{b+4*i}:{b+4*i+3}], v{14 if kb else 6} offset:{i*2048}")
            else:
                for hh in range(2):
                    d = b + 16 + 4 * i + 2 * hh
                    ro = (32 * kb + 16 * hh) * 448
                    if i < 6: L.append(f"ds_read_b64_tr_b16 v[{d}:{d+1}], v{7 + (i & 1)} offset:{ro + i*32}")
                    else: L.append(f"ds_read_b64_tr_b16 v[{d}:{d+1}], v9 offset:{ro}")
        return L
    def mfmas(st):
        b = SET[st]; L = []
        for f in range(4):
            for nb in range(7):
                c = ACC + (f * 7 + nb) * 4
                L.append(f"v_mfma_f32_16x16x32_bf16 v[{c}:{c+3}], v[{b+16+4*nb}:{b+19+4*nb}], v[{b+4*f}:{b+3+4*f}], v[{c}:{c+3}]")
        return L
    def adv():
        return [f"s_add_u32 s{sSLOT}, s{sSLOT}, {G1_STAGE}", f"s_cmp_eq_u32 s{sSLOT}, {3*G1_STAGE}", f"s_cselect_b32 s{sSLOT}, 0, s{sSLOT}",
                f"v_add_u32 v6, s{sSLOT}, v2", f"v_add_u32 v7, s{sSLOT}, v3", f"v_add_u32 v8, s{sSLOT}, v4", f"v_add_u32 v9, s{sSLOT}, v5", f"v_add_u32 v14, s{sSLOT}, v13"]
    a("s_waitcnt vmcnt(2)")
    stamp(a, 11)
    common_prep(a)
    a("s_waitcnt vmcnt(0)")
    a(CSTORE)
    stamp(a, 12)
    a(f"s_setprio {CPRIO}")
    if STAMP: a("s_mov_b32 s97, 0")
    a("s_waitcnt lgkmcnt(0)")
    a("s_barrier")
    stamp(a, 1)
    trace_mark(a)
    for r in reads(0, 0): a(r)
    a("s_mov_b32 s86, 0")
    a.label("L_c_g1loop")
    U1 = 3
    for u in range(U1):
        a("s_waitcnt lgkmcnt(0)")
        trace_commit(a)
        interleave(a, mfmas(0), reads(1, 1) + adv())
        a("s_waitcnt lgkmcnt(0)")
        a("s_barrier")
        trace_mark(a)
        tail = ["s_add_u32 s86, s86, 1", f"s_cmp_lt_u32 s86, {15//U1}"] if u == U1 - 1 else []
        interleave(a, mfmas(1), reads(0, 0) + tail)
    a("s_cbranch_scc1 L_c_g1loop")
    a("s_waitcnt lgkmcnt(0)")
    trace_commit(a)
    interleave(a, mfmas(0), reads(1, 1))
    a("s_waitcnt lgkmcnt(0)")
    ep = [
        "v_lshrrev_b32 v10, 4, v1", "v_lshlrev_b32 v10, 4, v10",
        f"s_mul_i32 s48, s{sNH}, 384", f"s_add_u32 s48, s48, {L_CSUM}", "v_add_u32 v11, s48, v10",
        f"s_lshl_b32 s48, s{sNH}, 6", f"s_add_u32 s48, s48, {L_CSUM+768}", "v_add_u32 v12, s48, v10",
        "v_and_b32 v10, 15, v1", "v_lshlrev_b32 v10, 3, v10",
        f"s_lshl_b32 s48, s{sMH}, 9", f"s_add_u32 s48, s48, {L_STAT}", "v_add_u32 v10, s48, v10",
        "v_lshlrev_b32 v2, 4, v1", f"s_lshl_b32 s48, s{sMH}, 12", "v_add_u32 v2, s48, v2",
        f"s_mul_i32 s48, s{sCT}, 7", f"s_mul_i32 s49, s{sNH}, 3", "s_add_u32 s49, s49, s48",
        "s_lshl_b32 s49, s49, 13", f"s_lshl_b32 s53, s{sTILE}, 20", "s_add_u32 s49, s49, s53",
        "s_add_u32 s50, s49, 8192", "s_add_u32 s51, s49, 16384",
        "s_add_u32 s52, s48, 6", "s_lshl_b32 s52, s52, 13", "s_add_u32 s52, s52, s53",
        f"s_lshl_b32 s53, s{sNH}, 3", "s_add_u32 s52, s52, s53", f"v_mov_b32 v13, {L_ST8+64}"]
    interleave(a, mfmas(1), ep, per=2)
    a("s_barrier")
    stamp(a, 2)
    a(f"s_setprio {EPRIO}")
    CB = 128; SB = 156; RL = 164
    a("ds_read_b64 v[192:193], v13")
    for f in range(4): a(f"ds_read_b64 v[{SB+2*f}:{SB+2*f+1}], v10 offset:{f*128}")
    for nb in range(6): a(f"ds_read_b128 v[{CB+4*nb}:{CB+4*nb+3}], v11 offset:{nb*64}")
    a(f"ds_read_b128 v[{CB+24}:{CB+27}], v12")
    a("s_waitcnt lgkmcnt(7)")
    a("v_readfirstlane_b32 s54, v192")
    a("v_readfirstlane_b32 s96, v193")
    for f in range(4): a(f"v_rcp_f32 v{RL+2*f}, v{SB+2*f+1}")
    a("s_nop 0")
    for f in range(4): a(f"v_mul_f32 v{RL+2*f}, {f2u(-LOG2E)}, v{RL+2*f}")
    a("s_cmp_eq_u32 s54, 1")
    a("s_waitcnt lgkmcnt(0)")
    def silu_ln(f, accs, cs, temps, dsts):
        n = len(accs)
        S = f"v[{SB+2*f}:{SB+2*f+1}]"; R = f"v[{RL+2*f}:{RL+2*f+1}]"
        for i in range(n):
            a(f"v_pk_fma_f32 v[{accs[i]}:{accs[i]+1}], v[{cs[i]}:{cs[i]+1}], {S}, v[{accs[i]}:{accs[i]+1}] op_sel_hi:[1,0,1] neg_lo:[0,1,0] neg_hi:[0,1,0]")
        for i in range(n):
            a(f"v_pk_mul_f32 v[{temps[i]}:{temps[i]+1}], v[{accs[i]}:{accs[i]+1}], {R} op_sel_hi:[1,0]")
        for i in range(n):
            a(f"v_exp_f32 v{temps[i]}, v{temps[i]}"); a(f"v_exp_f32 v{temps[i]+1}, v{temps[i]+1}")
        for i in range(n):
            a(f"v_pk_fma_f32 v[{temps[i]}:{temps[i]+1}], v[{temps[i]}:{temps[i]+1}], {S}, {S} op_sel:[0,1,1] op_sel_hi:[1,1,1]")
        for i in range(n):
            a(f"v_rcp_f32 v{temps[i]}, v{temps[i]}"); a(f"v_rcp_f32 v{temps[i]+1}, v{temps[i]+1}")
        for i in range(n):
            a(f"v_pk_mul_f32 v[{temps[i]}:{temps[i]+1}], v[{temps[i]}:{temps[i]+1}], v[{accs[i]}:{accs[i]+1}]")
        for i in range(n):
            a(f"v_cvt_pk_bf16_f32 v{dsts[i]}, v{temps[i]}, v{temps[i]+1}")
    def hstore(line):
        l1 = a.uid("hs"); l2 = a.uid("hs")
        a(f"s_cbranch_scc1 {l1}")
        a(line + " sc1")
        a(f"s_branch {l2}")
        a.label(l1)
        a(line)
        a.label(l2)
    for f in range(4):
        for pp in range(3):
            c = ACC + (f * 7 + 2 * pp) * 4
            d = 172 + ((f * 3 + pp) & 1) * 4
            cc = CB + 8 * pp
            silu_ln(f, [c, c + 2, c + 4, c + 6], [cc, cc + 2, cc + 4, cc + 6], [184, 186, 188, 190], [d, d + 1, d + 2, d + 3])
            hstore(f"buffer_store_dwordx4 v[{d}:{d+3}], v2, {SR(S_HF)}, s{49+pp} offen offset:{f*1024}")
        c = ACC + (f * 7 + 6) * 4
        d = 180 + (f & 1) * 2
        silu_ln(f, [c, c + 2], [CB + 24, CB + 26], [184, 186], [d, d + 1])
        hstore(f"buffer_store_dwordx2 v[{d}:{d+1}], v2, {SR(S_HF)}, s52 offen offset:{f*1024}")
    stamp(a, 3)
    ACO = 32; ACY = 96; SET2 = [128, 160]; XO = 192; PB = 208
    a("v_lshlrev_b32 v10, 4, v1")
    a(f"s_lshl_b32 s48, s{sMH}, 12")
    a(f"s_lshl_b32 s49, s{sKH}, 11")
    a("s_add_u32 s50, s48, s49")
    a("v_add_u32 v2, s50, v10")
    a("s_xor_b32 s49, s49, 2048")
    a("s_add_u32 s50, s48, s49")
    a("v_add_u32 v3, s50, v10")
    a("v_lshrrev_b32 v11, 2, v1")
    a("v_and_b32 v12, 7, v11")
    a("v_lshlrev_b32 v11, 8, v11")
    a("v_and_b32 v13, 3, v1")
    a("v_lshl_add_u32 v11, v13, 3, v11")
    a("v_add_u32 v11, 16384, v11")
    a(f"s_lshl_b32 s48, s{sNH}, 2")
    a("v_xor_b32 v12, s48, v12")
    for nb in range(4):
        a(f"v_xor_b32 v13, {nb}, v12")
        a(f"v_lshl_add_u32 v{4+nb}, v13, 5, v11")
    a("v_mov_b32 v20, 0"); a("v_mov_b32 v21, v193")
    a(f"s_lshl_b32 s48, s{sLW}, 2")
    a("s_add_u32 s48, s48, s79")
    a("s_waitcnt vmcnt(0)")
    a("s_mov_b64 exec, 1")
    a(f"buffer_store_dword v21, v20, {SR(S_MISC)}, s48 offen sc1")
    a("s_mov_b64 exec, -1")
    stamp(a, 4)
    a("v_and_b32 v9, 7, v1")
    a("v_lshlrev_b32 v9, 19, v9")
    a("v_bfe_u32 v10, v1, 3, 1")
    a("v_lshl_add_u32 v9, v10, 14, v9")
    a("v_bfe_u32 v10, v1, 4, 1")
    a("v_lshl_add_u32 v9, v10, 5, v9")
    a("v_bfe_u32 v10, v1, 5, 1")
    a("v_lshl_add_u32 v9, v10, 4, v9")
    a(f"s_lshl_b32 s48, s{sJH}, 4")
    a(f"s_lshl_b32 s49, s{sMH}, 3")
    a("s_add_u32 s48, s48, s49")
    a(f"s_lshl_b32 s49, s{sKH}, 2")
    a("s_add_u32 s48, s48, s49")
    a("s_lshl_b32 s48, s48, 3")
    a(f"s_add_u32 s48, s48, s{sT1}")
    a("s_lshl_b32 s48, s48, 11")
    a(f"s_lshl_b32 s49, s{sC8}, 8")
    a("s_add_u32 s48, s48, s49")
    a(f"s_lshl_b32 s49, s{sNH}, 7")
    a("s_add_u32 s91, s48, s49")
    a(f"s_add_u32 s92, s91, {16*2048}")
    a("s_lshl_b32 s93, s2, 2")
    a(f"s_add_u32 s93, s93, s{sLW}")
    a("s_lshl_b32 s93, s93, 13")
    a(f"s_add_u32 s93, s93, {XB_G}")
    a(f"s_xor_b32 s94, s93, {4*4*8192}")
    a("v_lshlrev_b32 v8, 4, v1")
    for i in range(96): a(f"v_mov_b32 v{ACO+i}, 0")
    a(f"s_mov_b32 s{sSLOT}, 0")
    a("v_mov_b32 v14, v2"); a("v_mov_b32 v15, v3")
    for nb in range(4): a(f"v_mov_b32 v{16+nb}, v{4+nb}")
    def adv2():
        return [f"s_add_u32 s{sSLOT}, s{sSLOT}, {G2_STAGE}", f"s_and_b32 s{sSLOT}, s{sSLOT}, {4*G2_STAGE-1}",
                f"v_add_u32 v14, s{sSLOT}, v2", f"v_add_u32 v15, s{sSLOT}, v3"] + [f"v_add_u32 v{16+nb}, s{sSLOT}, v{4+nb}" for nb in range(4)]
    def reads2(st, kb, y=False):
        b = SET2[st]; L = []
        for i in range(4):
            if not (y and i >= 2):
                L.append(f"ds_read_b128 v[{b+4*i}:{b+4*i+3}], v{14 + (i >> 1)} offset:{kb*8192 + (i & 1)*1024}")
            for hh in range(2):
                d = b + 16 + i * 4 + hh * 2
                L.append(f"ds_read_b64_tr_b16 v[{d}:{d+1}], v{16+i} offset:{kb*8192 + hh*4096}")
        return L
    def mfmas2(st, y=False):
        b = SET2[st]; L = []
        for fp in range(2 if y else 4):
            for nb in range(4):
                c = (ACY if y else ACO) + (fp * 4 + nb) * 4
                w = b + 16 + nb * 4; x = b + fp * 4
                L.append(f"v_mfma_f32_16x16x32_bf16 v[{c}:{c+3}], v[{w}:{w+3}], v[{x}:{x+3}], v[{c}:{c+3}]")
        return L
    a(f"s_setprio {CPRIO}")
    stamp(a, 5)
    a("s_barrier")
    stamp(a, 6)
    trace_mark(a)
    for r in reads2(0, 0): a(r)
    def step(y_cur, y_next, pre_bar=(), post=(), last=False, e1=()):
        a("s_waitcnt lgkmcnt(0)")
        trace_commit(a)
        interleave(a, mfmas2(0, y_cur), reads2(1, 1, y_cur) + ([] if last else adv2()) + list(e1), per=2)
        a("s_waitcnt lgkmcnt(0)")
        if not last:
            for l in pre_bar: a(l)
            a("s_barrier")
            trace_mark(a)
            interleave(a, mfmas2(1, y_cur), reads2(0, 0, y_next) + list(post), per=2)
        else:
            interleave(a, mfmas2(1, y_cur), [])
    U2 = 3
    a("s_mov_b32 s86, 0")
    a.label("L_c_g2loop")
    for u in range(U2):
        step(False, False, post=(["s_add_u32 s86, s86, 1", f"s_cmp_lt_u32 s86, {27//U2}"] if u == U2 - 1 else []))
    a("s_cbranch_scc1 L_c_g2loop")
    step(False, True)
    stamp(a, 7)
    xs = []
    for i in range(8):
        c = ACO + 32 + i * 4
        xs.append(f"buffer_store_dwordx4 v[{c}:{c+3}], v8, {SR(S_MISC)}, {'s93' if i < 4 else 's95'} offen offset:{(i & 3)*1024} sc1")
    a("s_add_u32 s95, s93, 4096")
    a(f"s_lshl_b32 s48, s{sLW}, 2")
    a("s_add_u32 s80, s80, s48")
    a("s_add_u32 s81, s81, s48")
    xl = []
    for fp in range(2):
        for pp in range(2):
            d = XO + (fp * 2 + pp) * 4
            xl.append(f"buffer_load_dwordx4 v[{d}:{d+3}], v9, {SR(S_X)}, s{91+fp} offen offset:{pp*64}")
    pls = ["s_add_u32 s95, s94, 4096"]
    for i in range(8):
        d = PB + i * 4
        pls.append(f"buffer_load_dwordx4 v[{d}:{d+3}], v8, {SR(S_MISC)}, {'s94' if i < 4 else 's95'} offen offset:{(i & 3)*1024} sc1")
    XF_S, XP_S = int(OPT.get("xfs", "32")), int(OPT.get("xps", "34"))
    XLD = f"buffer_load_dword v22, v20, {SR(S_MISC)}, s81 offen sc1"
    for s in range(28, 36):
        e1 = []; post = []
        if s in (28, 29): e1 = xs[4*(s-28):4*(s-28)+2]; post = xs[4*(s-28)+2:4*(s-28)+4]
        if s == 30: post = xl
        if s == XF_S: e1 = ["s_waitcnt vmcnt(4)", "s_mov_b64 exec, 1", f"buffer_store_dword v21, v20, {SR(S_MISC)}, s80 offen sc1", "s_mov_b64 exec, -1"]
        if s == XP_S - 1: post = [XLD]
        if s == XP_S:
            a("s_waitcnt vmcnt(0)")
            spin(a, "xp", [XLD], ["v_readfirstlane_b32 s60, v22", "s_nop 0", "s_cmp_eq_u32 s60, s96"], first_loaded=True)
            e1 = pls
        step(True, True, post=post, last=(s == 35), e1=e1)
    stamp(a, 8)
    a("s_setprio 0")
    a(f"s_mov_b32 s60, {f2u(-LOG2E)}")
    a("s_mov_b32 s61, s60")
    a("s_waitcnt vmcnt(0)")
    stamp(a, 9)
    for i in range(16):
        c = ACO + 2 * i; d = PB + 2 * i
        a(f"v_pk_add_f32 v[{c}:{c+1}], v[{c}:{c+1}], v[{d}:{d+1}]")
    for i in range(16):
        c = ACO + 2 * i
        a(f"v_cvt_pk_bf16_f32 v{c}, v{c}, v{c+1}")
        a(f"v_and_b32 v{c+1}, 0xffff0000, v{c}")
        a(f"v_lshlrev_b32 v{c}, 16, v{c}")
    for h in range(2):
        srcs = [ACO + 2 * i for i in range(8 * h, 8 * h + 8)]; temps = [128 + 2 * i for i in range(8)]; dsts = [160 + i for i in range(8 * h, 8 * h + 8)]
        for i in range(8): a(f"v_pk_mul_f32 v[{temps[i]}:{temps[i]+1}], v[{srcs[i]}:{srcs[i]+1}], s[60:61]")
        for i in range(8): a(f"v_exp_f32 v{temps[i]}, v{temps[i]}"); a(f"v_exp_f32 v{temps[i]+1}, v{temps[i]+1}")
        for i in range(8): a(f"v_pk_add_f32 v[{temps[i]}:{temps[i]+1}], v[{temps[i]}:{temps[i]+1}], 1.0 op_sel_hi:[1,0]")
        for i in range(8): a(f"v_rcp_f32 v{temps[i]}, v{temps[i]}"); a(f"v_rcp_f32 v{temps[i]+1}, v{temps[i]+1}")
        for i in range(8): a(f"v_pk_mul_f32 v[{temps[i]}:{temps[i]+1}], v[{temps[i]}:{temps[i]+1}], v[{srcs[i]}:{srcs[i]+1}]")
        for i in range(8): a(f"v_cvt_pk_bf16_f32 v{dsts[i]}, v{temps[i]}, v{temps[i]+1}")
    for i in range(16):
        c = ACY + 2 * i; o = ACO + 2 * i
        a(f"v_cvt_pk_bf16_f32 v{c}, v{c}, v{c+1}")
        a(f"v_and_b32 v{c+1}, 0xffff0000, v{c}")
        a(f"v_lshlrev_b32 v{c}, 16, v{c}")
        a(f"v_and_b32 v{o+1}, 0xffff0000, v{160+i}")
        a(f"v_lshlrev_b32 v{o}, 16, v{160+i}")
        a(f"v_pk_mul_f32 v[{c}:{c+1}], v[{c}:{c+1}], v[{o}:{o+1}]")
        a(f"v_cvt_pk_bf16_f32 v{160+i}, v{c}, v{c+1}")
    a.nop(2)
    for fp in range(2):
        for pp in range(2):
            b0 = 160 + (fp * 4 + 2 * pp) * 2
            a(f"v_permlane16_swap_b32 v{b0}, v{b0+2}")
            a(f"v_permlane16_swap_b32 v{b0+1}, v{b0+3}")
    for q in range(4):
        for i in range(4):
            p = 160 + q * 4 + i; x = XO + q * 4 + i
            a(f"v_lshlrev_b32 v128, 16, v{p}")
            a(f"v_and_b32 v129, 0xffff0000, v{p}")
            a(f"v_lshlrev_b32 v130, 16, v{x}")
            a(f"v_and_b32 v131, 0xffff0000, v{x}")
            a("v_pk_add_f32 v[128:129], v[128:129], v[130:131]")
            a(f"v_cvt_pk_bf16_f32 v{x}, v128, v129")
        d = XO + q * 4
        a(f"buffer_store_dwordx4 v[{d}:{d+3}], v9, {SR(S_OUT)}, s{91+(q>>1)} offen offset:{(q&1)*64}")
    if STAMP: a("s_waitcnt vmcnt(0)")
    stamp(a, 10)
    trace_store(a)

def main(out):
    for p in range(448): assert (p * 2341) >> 16 == p // 28
    for p in range(64): assert (p * 4682) >> 16 == p // 14
    a = Asm()
    gen(a)
    for p in check(a.lines): print("HAZARD", p)
    vg = 256 if STAMP else 240
    txt = f"""; generated by work/gen6.py
; @launch grid=(256,1,1) block=(512,1,1) lds={LDS_TOTAL}
.amdgcn_target "amdgcn-amd-amdhsa--gfx950"
.text
.globl {NAME}_kernel
.p2align 8
.type {NAME}_kernel,@function
""" + a.text() + f""".section .rodata,"a"
.p2align 6
.amdhsa_kernel {NAME}_kernel
  .amdhsa_next_free_vgpr {vg}
  .amdhsa_next_free_sgpr 102
  .amdhsa_accum_offset {vg}
  .amdhsa_group_segment_fixed_size 0
  .amdhsa_kernarg_size 88
  .amdhsa_user_sgpr_count 2
  .amdhsa_user_sgpr_kernarg_segment_ptr 1
  .amdhsa_system_sgpr_workgroup_id_x 1
.end_amdhsa_kernel
"""
    open(out, "w").write(txt)
    print("lines", len(a.lines), "lds", LDS_TOTAL)

if __name__ == "__main__":
    args = [x for x in sys.argv[1:] if not x.startswith("--") and "=" not in x]
    main(args[0] if args else f"cdna_kernels/{NAME}.s")
```

```python
import sys, os, struct
from asmlib import *

NAME = "recurrent_scan__spectral_fnet__dense_activation_silu__prompt"
MB = 1 << 20
HF_OFF = 0
AP_OFF = 16 * MB
MISC_OFF = 24 * MB
STAT_G = 0
CS_G = 65536
HFLAG_G = 640 * 1024
XFLAG_G = 672 * 1024
RS_G = 720 * 1024
RC_G = 724 * 1024
QF_G = 728 * 1024
XB_G = 1 * MB
STAMP = "--stamp" in sys.argv
OPT = dict(x.split("=") for x in sys.argv if "=" in x and not x.startswith("--"))
NST = 64
SHARE = OPT.get('share', '0') == '1'
TV = OPT.get('tv', 'a')
HM = int(OPT.get('hm', '11'))
HFS = int(OPT.get('hfs', '1'))
W1F = OPT.get('w1f', 'none').replace('none', '')
W2F = OPT.get('w2f', 'none').replace('none', '')
CPRIO = int(OPT.get('cprio', '2'))
EPRIO = int(OPT.get('eprio', '1'))

def f2u(x): return "0x%08x" % struct.unpack("<I", struct.pack("<f", x))[0]

S_X, S_W1, S_W2, S_OUT, S_CR, S_HF, S_AP, S_MISC, S_DBG, S_CI = 4, 8, 12, 16, 20, 24, 28, 32, 36, 64
def SR(b): return f"s[{b}:{b+3}]"
sWV, sTILE, sKH, sC8, sCT, sT1, sJH, sLW = 3, 40, 41, 42, 43, 44, 45, 46
sSLOT = 47
sSPIN = 73
LOG2E = 1.4426950408889634

G1_STAGE = 45056
L_STAT = 135168
L_CSUM = L_STAT + 1024
L_CS4 = L_CSUM + 1024
L_ST8 = L_CS4 + 4096
L_U = L_ST8 + 256
LDS_TOTAL = L_U + 16384
G2_STAGE = 32768

def srd(a, d, lo, hi, size, add=0):
    if add == 0:
        a(f"s_mov_b32 s{d}, s{lo}"); a(f"s_mov_b32 s{d+1}, s{hi}")
    else:
        a(f"s_add_u32 s{d}, s{lo}, {add}"); a(f"s_addc_u32 s{d+1}, s{hi}, 0")
    a(f"s_mov_b32 s{d+2}, {size}"); a(f"s_mov_b32 s{d+3}, 0x20000")

def stamp(a, idx, wave=0, vt=250):
    if not STAMP: return
    lab = a.uid("stamp%d" % idx)
    a(f"s_cmp_lg_u32 s{sWV}, {wave}")
    a(f"s_cbranch_scc1 {lab}")
    a("s_memrealtime s[74:75]")
    a("s_memtime s[76:77]")
    a("s_waitcnt lgkmcnt(0)")
    a(f"v_mov_b32 v{vt}, s76")
    a(f"v_mov_b32 v{vt+1}, {idx*4+128}")
    a(f"buffer_store_dword v{vt}, v{vt+1}, s[68:71], s72 offen")
    a("s_nop 1")
    a(f"v_mov_b32 v{vt}, s74")
    a(f"v_mov_b32 v{vt+1}, {idx*4}")
    a(f"buffer_store_dword v{vt}, v{vt+1}, s[68:71], s72 offen")
    a.label(lab)
def trace_mark(a):
    if STAMP: a("s_memtime s[98:99]")
def trace_commit(a):
    if not STAMP: return
    a("s_mov_b32 m0, s97"); a("v_writelane_b32 v249, s98, m0")
    a("s_add_u32 s97, s97, 1")
def trace_store(a):
    if not STAMP: return
    lab = a.uid("trs")
    a(f"s_cmp_lg_u32 s{sWV}, 0")
    a(f"s_cbranch_scc1 {lab}")
    a(f"s_add_u32 s68, s68, {MB}")
    a("s_addc_u32 s69, s69, 0")
    a(f"s_mov_b32 s70, {256*256}")
    a("s_lshl_b32 s72, s2, 8")
    a("v_lshlrev_b32 v250, 2, v1")
    a("buffer_store_dword v249, v250, s[68:71], s72 offen")
    a.label(lab)

HT = [0]
def htrace(a):
    if not STAMP or OPT.get("ht", "0") != "1": return
    i = HT[0]; HT[0] += 1
    if i >= 128: return
    a("s_memtime s[98:99]")
    a("s_waitcnt lgkmcnt(0)")
    a(f"v_writelane_b32 v{248 + (i >> 6)}, s98, {i & 63}")
def htrace_store(a):
    if not STAMP: return
    lab = a.uid("htrs")
    a(f"s_cmp_lg_u32 s{sWV}, 4")
    a(f"s_cbranch_scc1 {lab}")
    a(f"s_add_u32 s68, s68, {2*MB}")
    a("s_addc_u32 s69, s69, 0")
    a(f"s_mov_b32 s70, {256*512}")
    a("s_lshl_b32 s72, s2, 9")
    a("v_lshlrev_b32 v250, 2, v1")
    a("buffer_store_dword v248, v250, s[68:71], s72 offen")
    a("buffer_store_dword v249, v250, s[68:71], s72 offen offset:256")
    a.label(lab)

class VM:
    def __init__(self, a): self.a = a; self.ops = []
    def op(self, line, tag): self.a(line); self.ops.append(tag)
    def count(self, tag):
        n = 0
        for t in reversed(self.ops):
            if t == tag: return n
            n += 1
        raise KeyError(tag)
    def wait(self, tag, extra=""):
        n = min(self.count(tag), 63)
        self.a(f"s_waitcnt vmcnt({n}){extra}")

def multi_wave_sum(a, vs, ts):
    assert len(vs) >= 3
    for pat in ("quad_perm:[1,0,3,2]", "quad_perm:[2,3,0,1]", "row_half_mirror", "row_mirror"):
        for v in vs: a(f"v_add_f32_dpp v{v}, v{v}, v{v} {pat} row_mask:0xf bank_mask:0xf")
    for sw in ("v_permlane16_swap_b32", "v_permlane32_swap_b32"):
        for v, t in zip(vs, ts): a(f"v_mov_b32 v{t}, v{v}")
        for v, t in zip(vs, ts): a(f"{sw} v{t}, v{v}")
        for v, t in zip(vs, ts): a(f"v_add_f32 v{v}, v{t}, v{v}")

def interleave(a, mfmas, others, first=0, per=1):
    oi = 0
    for i, m in enumerate(mfmas):
        a(m)
        if i >= first:
            for _ in range(per):
                if oi < len(others): a(others[oi]); oi += 1
    while oi < len(others): a(others[oi]); oi += 1

def spin(a, name, load, check, first_loaded=False):
    L = a.uid(name + "_spin"); D = a.uid(name + "_done")
    a(f"s_mov_b32 s{sSPIN}, 0")
    if first_loaded:
        for l in check: a(l)
        a(f"s_cbranch_scc1 {D}")
    a.label(L)
    for l in load: a(l)
    a("s_waitcnt vmcnt(0)")
    for l in check: a(l)
    a(f"s_cbranch_scc1 {D}")
    a("s_sleep 1")
    a(f"s_add_u32 s{sSPIN}, s{sSPIN}, 1")
    a(f"s_cmp_lt_u32 s{sSPIN}, 0x8000")
    a(f"s_cbranch_scc1 {L}")
    a.label(D)

OOB = 17
def sel_voff(a, dst, src, turn):
    a(f"s_cmp_eq_u32 s{sLW}, {turn}")
    a("s_cselect_b64 s[62:63], -1, 0")
    a(f"v_cndmask_b32 v{dst}, v{OOB}, v{src}, s[62:63]")

def g1_bfrag_addrs(a, nhreg, d0, d1, d2, t0, t1):
    a(f"v_lshrrev_b32 v{t0}, 2, v1")
    a(f"v_mul_u32_u24 v{t0}, 448, v{t0}")
    a(f"v_and_b32 v{t1}, 3, v1")
    a(f"v_lshl_add_u32 v{t0}, v{t1}, 3, v{t0}")
    a(f"v_add_u32 v{t0}, 16384, v{t0}")
    a(f"v_bfe_u32 v{t1}, v1, 4, 1")
    a(f"v_lshlrev_b32 v{t1}, 5, v{t1}")
    a(f"s_mul_i32 s49, s{nhreg}, 192")
    a(f"v_add_u32 v{d0}, v{t0}, v{t1}")
    a(f"v_add_u32 v{d0}, s49, v{d0}")
    a(f"v_sub_u32 v{d1}, v{t0}, v{t1}")
    a(f"v_add_u32 v{d1}, s49, v{d1}")
    a(f"s_lshl_b32 s50, s{nhreg}, 5")
    a(f"v_xor_b32 v{d2}, s50, v{t1}")
    a(f"v_add_u32 v{d2}, v{t0}, v{d2}")
    a(f"v_add_u32 v{d2}, 384, v{d2}")


L_XN = 2 * G1_STAGE
ACC = 16
TC, TS, CC, SS, NSS = 128, 144, 160, 168, 176
PX, PF, PT, PM = 184, 192, 208, 224
DRE, DIM, FR, FT = 184, 200, 216, 232
sEP = 94
sMH, sNH = 100, 101
SLAB = 64 * 7168

L_K = L_XN + 18432
def consts(a):
    a("v_and_b32 v232, 31, v1")
    a("v_cvt_f32_u32 v232, v232")
    a(f"v_mul_f32 v232, {f2u(1.0/1024)}, v232")
    a("v_lshrrev_b32 v233, 5, v1")
    a("v_lshlrev_b32 v233, 2, v233")
    a(f"s_lshr_b32 s60, s{sWV}, 1")
    a("s_lshl_b32 s60, s60, 3")
    a(f"s_and_b32 s61, s{sWV}, 1")
    a("s_lshl_b32 s61, s61, 1")
    a("s_add_u32 s60, s60, s61")
    a("v_add_u32 v233, s60, v233")
    a("v_cvt_f32_u32 v233, v233")
    a("v_mul_f32 v233, v233, v232")
    a("v_add_f32 v232, v233, v232")
    a(f"v_cos_f32 v{TC}, v233"); a(f"v_cos_f32 v{TC+1}, v232")
    a(f"v_sin_f32 v{TS}, v233"); a(f"v_sin_f32 v{TS+1}, v232")
    a(f"v_mul_f32 v233, {f2u(32.0)}, v233"); a(f"v_mul_f32 v232, {f2u(32.0)}, v232")
    a("v_fract_f32 v233, v233"); a("v_fract_f32 v232, v232")
    a("v_cos_f32 v234, v233"); a("v_cos_f32 v235, v232")
    a("v_sin_f32 v236, v233"); a("v_sin_f32 v237, v232")
    a(f"s_lshr_b32 s60, s{sWV}, 1")
    a("s_lshl_b32 s60, s60, 10")
    a("s_lshl_b32 s61, s61, 2")
    a("s_add_u32 s60, s60, s61")
    a(f"s_add_u32 s60, s60, {L_K}")
    a("v_add_u32 v238, s60, v240")
    a(f"s_lshr_b32 s60, s{sWV}, 2")
    a("s_lshl_b32 s60, s60, 10")
    a(f"s_lshl_b32 s61, s{sLW}, 2")
    a("s_add_u32 s60, s60, s61")
    a(f"s_add_u32 s60, s60, {L_K + 8192}")
    a("v_add_u32 v239, s60, v240")
    a("v_cvt_pk_f16_f32 v234, v234, v235")
    a("v_cvt_pk_f16_f32 v235, v236, v237")
    a("v_cvt_pk_f16_f32 v236, -v236, -v237")
    a(f"ds_write_b64 v238, v[{TC}:{TC+1}]")
    a(f"ds_write_b64 v238, v[{TS}:{TS+1}] offset:4096")
    a("ds_write_b32 v239, v234")
    a("ds_write_b32 v239, v235 offset:2048")
    a("ds_write_b32 v239, v236 offset:4096")
    a("v_lshrrev_b32 v10, 2, v1"); a("v_mul_u32_u24 v10, 576, v10")
    a("v_and_b32 v11, 1, v1"); a("v_mul_u32_u24 v11, 288, v11")
    a("v_add_u32 v10, v10, v11"); a("v_bfe_u32 v11, v1, 1, 1"); a("v_lshl_add_u32 v10, v11, 3, v10")
    a(f"s_lshl_b32 s60, s{sWV}, 4"); a(f"s_add_u32 s60, s60, {L_XN}"); a("v_add_u32 v10, s60, v10")
    a("v_lshrrev_b32 v11, 2, v0"); a("v_mul_u32_u24 v11, 144, v11"); a("v_and_b32 v12, 3, v0")
    a("v_lshl_add_u32 v11, v12, 2, v11"); a(f"v_add_u32 v11, {L_XN}, v11")
    a("v_lshrrev_b32 v12, 4, v0"); a("v_lshlrev_b32 v12, 6, v12")
    a("v_bfe_u32 v13, v0, 1, 1"); a("v_lshl_add_u32 v12, v13, 5, v12")
    a("v_bfe_u32 v13, v0, 2, 2"); a("v_lshl_add_u32 v12, v13, 3, v12")
    a("v_and_b32 v13, 1, v0"); a("v_lshl_add_u32 v12, v13, 2, v12"); a(f"v_add_u32 v12, {L_U}, v12")
    a(f"s_sub_u32 s58, 8, s{sWV}")
    a(f"s_cmp_gt_u32 s{sWV}, 4")
    a(f"s_cselect_b32 s58, s58, s{sWV}")
    a("s_cselect_b32 s57, 0x80008000, 0")
    a("s_lshl_b32 s59, s58, 1")
    a("s_cmp_eq_u32 s58, 4")
    a("s_cselect_b32 s59, 1, s59")
    a(f"s_cmp_eq_u32 s{sLW}, 0")
    a("s_cselect_b32 s56, 0, -1")
    a("s_lshl_b32 s59, s59, 11")
    a(f"s_add_u32 s59, s59, {L_U}")
    a("v_lshrrev_b32 v13, 5, v1"); a("v_lshlrev_b32 v13, 8, v13")
    a("v_bfe_u32 v232, v1, 2, 2"); a("v_lshl_add_u32 v13, v232, 6, v13")
    a("v_bfe_u32 v232, v1, 4, 1"); a("v_lshl_add_u32 v13, v232, 5, v13")
    a("v_and_b32 v232, 3, v1"); a("v_lshl_add_u32 v13, v232, 3, v13")
    a("v_add_u32 v13, s59, v13")
    a(f"s_lshl_b32 s60, s{sWV}, 3")
    a(f"s_add_u32 s60, s60, {L_ST8}")
    a(f"v_mov_b32 v{PM+6}, s60")
    a(f"v_mov_b32 v{PM+7}, 0x3f803f80")

def helper_only(a, fn):
    lab = a.uid("ho")
    a(f"s_cmp_lt_u32 s{sWV}, 4")
    a(f"s_cbranch_scc1 {lab}")
    fn()
    a.label(lab)

def startup(a, ins):
    m, s, t0, t1 = PM, PM + 1, PM + 2, PM + 3
    for q in range(8):
        a(f"v_dot2_f32_bf16 v{m}, v{PX+q}, v{PM+7}, {'0' if q == 0 else 'v%d' % m}")
        a(f"v_dot2_f32_bf16 v{s}, v{PX+q}, v{PX+q}, {'0' if q == 0 else 'v%d' % s}")
    fill = []
    for q in range(8):
        fill += [f"v_lshlrev_b32 v{PF+2*q}, 16, v{PX+q}", f"v_and_b32 v{PF+1+2*q}, 0xffff0000, v{PX+q}"]
    for _ in range(3): a(fill.pop(0))
    for pat in ("quad_perm:[1,0,3,2]", "quad_perm:[2,3,0,1]", "row_half_mirror", "row_mirror"):
        for v in (m, s): a(f"v_add_f32_dpp v{v}, v{v}, v{v} {pat} row_mask:0xf bank_mask:0xf")
        a(fill.pop(0))
    for sw in ("v_permlane16_swap_b32", "v_permlane32_swap_b32"):
        a(f"v_mov_b32 v{t0}, v{m}"); a(f"v_mov_b32 v{t1}, v{s}")
        a(fill.pop(0)); a(fill.pop(0))
        a(f"{sw} v{t0}, v{m}"); a(f"{sw} v{t1}, v{s}")
        a(f"v_add_f32 v{m}, v{t0}, v{m}"); a(f"v_add_f32 v{s}, v{t1}, v{s}")
    a(f"v_mul_f32 v{m}, {f2u(1.0/1024)}, v{m}")
    a(f"v_mul_f32 v{s}, {f2u(1.0/1024)}, v{s}")
    a(f"v_fma_f32 v{s}, -v{m}, v{m}, v{s}")
    a(f"v_max_f32 v{s}, 0, v{s}")
    a(f"v_cvt_pk_bf16_f32 v{s}, v{m}, v{s}")
    a(f"v_lshlrev_b32 v{m}, 16, v{s}")
    a(f"v_and_b32 v{s}, 0xffff0000, v{s}")
    a(f"v_add_f32 v{s}, {f2u(1e-5)}, v{s}")
    a(f"v_cvt_pk_bf16_f32 v{s}, v{s}, v{s}")
    a(f"v_and_b32 v{s}, 0xffff0000, v{s}")
    a(f"v_sqrt_f32 v{s}, v{s}")
    a(fill.pop(0))
    a(f"v_cvt_pk_bf16_f32 v{s}, v{s}, v{s}")
    a(f"v_and_b32 v{s}, 0xffff0000, v{s}")
    a(f"v_rcp_f32 v{t0}, v{s}")
    while fill: a(fill.pop(0))
    a(f"v_mul_f32_e64 v{t1}, -v{m}, v{t0}")
    a(f"ds_write_b64 v{PM+6}, v[{m}:{s}]")
    for q in range(8):
        P = f"v[{PF+2*q}:{PF+2*q+1}]"
        a(f"v_pk_fma_f32 {P}, {P}, v[{t0}:{t1}], v[{t0}:{t1}] op_sel:[0,0,1] op_sel_hi:[1,0,1]")
    for q in range(8): a(f"v_cvt_pk_bf16_f32 v{PX+q}, v{PF+2*q}, v{PF+2*q+1}")
    a(f"ds_write_b64 v10, v[{PX}:{PX+1}]")
    a(f"ds_write_b64 v10, v[{PX+2}:{PX+3}] offset:144")
    a(f"ds_write_b64 v10, v[{PX+4}:{PX+5}] offset:9216")
    a(f"ds_write_b64 v10, v[{PX+6}:{PX+7}] offset:9360")
    helper_only(a, ins["ln"])
    a(f"s_mov_b32 s60, {f2u(0.7071067811865476)}")
    a("s_mov_b32 s61, s60")
    a("s_waitcnt lgkmcnt(0)")
    stamp(a, 16); stamp(a, 20, wave=4)
    a("s_barrier")
    for s1 in range(8): a(f"ds_read_b32 v{PX+s1}, v11 offset:{16*s1}")
    a(f"v_add_u32 v11, {L_K}, v240")
    for q in range(7): a(f"ds_read_b128 v[{TC+4*q}:{TC+4*q+3}], v11 offset:{q*1024}")
    a("s_waitcnt lgkmcnt(7)")
    for q in range(7, 14): a(f"ds_read_b128 v[{TC+4*q}:{TC+4*q+3}], v11 offset:{q*1024}")
    for q in range(8):
        a(f"v_lshlrev_b32 v{PF+2*q}, 16, v{PX+q}")
        a(f"v_and_b32 v{PF+1+2*q}, 0xffff0000, v{PX+q}")
    X = lambda s: f"v[{PF+2*s}:{PF+1+2*s}]"
    T = lambda i: f"v[{PT+2*i}:{PT+1+2*i}]"
    NEG = "neg_lo:[0,1] neg_hi:[0,1]"
    for l in [f"v_pk_add_f32 {T(0)}, {X(0)}, {X(4)}", f"v_pk_add_f32 {T(1)}, {X(0)}, {X(4)} {NEG}",
              f"v_pk_add_f32 {T(2)}, {X(2)}, {X(6)}", f"v_pk_add_f32 {T(3)}, {X(2)}, {X(6)} {NEG}",
              f"v_pk_add_f32 {T(4)}, {X(1)}, {X(5)}", f"v_pk_add_f32 {T(5)}, {X(1)}, {X(5)} {NEG}",
              f"v_pk_add_f32 {T(6)}, {X(3)}, {X(7)}", f"v_pk_add_f32 {T(7)}, {X(3)}, {X(7)} {NEG}",
              f"v_pk_add_f32 {X(0)}, {T(0)}, {T(2)}", f"v_pk_add_f32 {X(4)}, {T(0)}, {T(2)} {NEG}",
              f"v_pk_add_f32 {X(1)}, {T(4)}, {T(6)}", f"v_pk_add_f32 {X(5)}, {T(6)}, {T(4)} {NEG}",
              f"v_pk_add_f32 {X(2)}, {T(5)}, {T(7)} {NEG}", f"v_pk_add_f32 {X(3)}, {T(5)}, {T(7)}",
              f"v_pk_add_f32 {T(0)}, {X(0)}, {X(1)}", f"v_pk_add_f32 {T(2)}, {X(0)}, {X(1)} {NEG}",
              f"v_pk_fma_f32 {T(4)}, {X(2)}, s[60:61], {T(1)}",
              f"v_pk_fma_f32 {T(5)}, {X(3)}, s[60:61], {T(3)} neg_lo:[1,0,1] neg_hi:[1,0,1]",
              f"v_pk_fma_f32 {T(6)}, {X(2)}, s[60:61], {T(1)} neg_lo:[1,0,0] neg_hi:[1,0,0]",
              f"v_pk_fma_f32 {T(7)}, {X(3)}, s[60:61], {T(3)} neg_lo:[1,0,0] neg_hi:[1,0,0]"]: a(l)
    srcs = [PT+0, PT+4, PT+8, PT+10, PF+8, PF+10, PT+12, PT+14]
    for k, sx in enumerate(srcs): a(f"v_cvt_pk_f16_f32 v{PX+k}, v{sx}, v{sx+1}")
    for k in range(8): a(f"ds_write_b32 v12, v{PX+k} offset:{2048*k}")
    helper_only(a, ins["r8"])
    a("s_waitcnt lgkmcnt(0)")
    stamp(a, 17); stamp(a, 21, wave=4)
    a("s_barrier")
    URE, UIM = FR, FR + 8
    for part in range(2):
        for kk in range(2):
            for hh in range(2):
                d = URE + part * 8 + kk * 4 + hh * 2
                a(f"ds_read_b64_tr_b16 v[{d}:{d+1}], v13 offset:{part*2048 + kk*1024 + hh*512}")
    a("s_waitcnt lgkmcnt(0)")
    stamp(a, 18); stamp(a, 22, wave=4)
    for i in range(8):
        a(f"v_and_b32 v{UIM+i}, s56, v{UIM+i}")
        a(f"v_xor_b32 v{UIM+i}, s57, v{UIM+i}")
    Cc = lambda kk: f"v[{CC+4*kk}:{CC+3+4*kk}]"
    Ss = lambda kk: f"v[{SS+4*kk}:{SS+3+4*kk}]"
    NS = lambda kk: f"v[{NSS+4*kk}:{NSS+3+4*kk}]"
    Dre = f"v[{DRE}:{DRE+15}]"; Dim = f"v[{DIM}:{DIM+15}]"
    def cplx():
        R = lambda kk: f"v[{URE+4*kk}:{URE+3+4*kk}]"
        I = lambda kk: f"v[{UIM+4*kk}:{UIM+3+4*kk}]"
        M = "v_mfma_f32_32x32x16_f16"
        a(f"{M} {Dre}, {R(0)}, {Cc(0)}, 0")
        a(f"{M} {Dim}, {R(0)}, {NS(0)}, 0")
        a(f"{M} {Dre}, {R(1)}, {Cc(1)}, {Dre}")
        a(f"{M} {Dim}, {R(1)}, {NS(1)}, {Dim}")
        a(f"{M} {Dre}, {I(0)}, {Ss(0)}, {Dre}")
        a(f"{M} {Dim}, {I(0)}, {Cc(0)}, {Dim}")
        a(f"{M} {Dre}, {I(1)}, {Ss(1)}, {Dre}")
        a(f"{M} {Dim}, {I(1)}, {Cc(1)}, {Dim}")
    cplx()
    helper_only(a, ins["f1"])
    a.nop(12)
    for r in range(0, 16, 2):
        P = lambda bb: f"v[{bb+r}:{bb+r+1}]"
        t = FT + (r & 2) * 2
        a(f"v_pk_mul_f32 v[{t}:{t+1}], {P(DRE)}, {P(TC)}")
        a(f"v_pk_mul_f32 v[{t+2}:{t+3}], {P(DIM)}, {P(TC)}")
        a(f"v_pk_fma_f32 v[{t}:{t+1}], {P(DIM)}, {P(TS)}, v[{t}:{t+1}]")
        a(f"v_pk_fma_f32 v[{t+2}:{t+3}], {P(DRE)}, {P(TS)}, v[{t+2}:{t+3}] neg_lo:[1,0,0] neg_hi:[1,0,0]")
        a(f"v_cvt_pk_f16_f32 v{URE+(r>>1)}, v{t}, v{t+1}")
        a(f"v_cvt_pk_f16_f32 v{UIM+(r>>1)}, v{t+2}, v{t+3}")
    a.nop(2)
    cplx()
    helper_only(a, ins["f2"])
    a.nop(12)
    O = FR
    for r in range(0, 16, 2):
        a(f"v_cvt_pk_bf16_f32 v{O+(r>>1)}, v{DRE+r}, v{DRE+1+r}")
        a(f"v_cvt_pk_bf16_f32 v{O+8+(r>>1)}, -v{DIM+r}, -v{DIM+1+r}")
    a.nop(2)
    for base in (O, O + 4, O + 8, O + 12):
        a(f"v_permlane32_swap_b32 v{base}, v{base+2}")
        a(f"v_permlane32_swap_b32 v{base+1}, v{base+3}")
    a.nop(1)
    for base in (O, O + 8):
        for i in range(4): a(f"v_permlane16_swap_b32 v{base+i}, v{base+4+i}")

def gen(a):
    a.label(NAME + "_kernel")
    a("s_cmp_ge_u32 s2, 256")
    a("s_cbranch_scc1 L_end")
    a("s_load_dwordx8 s[48:55], s[0:1], 0")
    a("s_load_dwordx8 s[56:63], s[0:1], 48")
    a("s_load_dwordx2 s[78:79], s[0:1], 80")
    a("s_memrealtime s[98:99]")
    a("v_and_b32 v1, 63, v0")
    a("v_lshrrev_b32 v2, 6, v0")
    a("v_lshlrev_b32 v19, 4, v1")
    a(f"v_readfirstlane_b32 s{sWV}, v2")
    a(f"s_and_b32 s{sTILE}, s2, 3")
    a(f"s_lshl_b32 s{sTILE}, s{sTILE}, 2")
    a("s_bfe_u32 s80, s2, 0x20003")
    a(f"s_add_u32 s{sTILE}, s{sTILE}, s80")
    a(f"s_bfe_u32 s{sKH}, s2, 0x10002")
    a(f"s_lshr_b32 s{sC8}, s2, 5")
    a(f"s_lshl_b32 s{sCT}, s{sKH}, 3")
    a(f"s_add_u32 s{sCT}, s{sCT}, s{sC8}")
    a(f"s_lshr_b32 s{sT1}, s{sTILE}, 1")
    a(f"s_and_b32 s{sJH}, s{sTILE}, 1")
    a(f"s_and_b32 s{sLW}, s{sWV}, 3")
    a(f"s_lshl_b32 s80, s{sWV}, 8")
    a("s_add_u32 s80, s80, s2")
    a("s_lshl_b32 s80, s80, 11")
    a("s_waitcnt lgkmcnt(0)")
    srd(a, S_X, 48, 49, 4 * MB)
    a(f"buffer_load_dwordx4 v[{PX}:{PX+3}], v19, {SR(S_X)}, s80 offen")
    a(f"buffer_load_dwordx4 v[{PX+4}:{PX+7}], v19, {SR(S_X)}, s80 offen offset:1024")
    srd(a, S_W1, 56, 57, 1024 * 3584 * 2)
    a("v_mov_b32 v240, v19")
    srd(a, S_W2, 58, 59, 1024 * 3584 * 2)
    srd(a, S_OUT, 60, 61, 4 * MB)
    srd(a, S_CR, 50, 51, 8 * MB)
    srd(a, S_CI, 52, 53, 8 * MB)
    srd(a, S_HF, 78, 79, 16 * MB, HF_OFF)
    srd(a, S_AP, 78, 79, 8 * MB, AP_OFF)
    srd(a, S_MISC, 78, 79, 16 * MB, MISC_OFF)
    srd(a, S_DBG, 62, 63, 256)
    if STAMP:
        srd(a, 68, 78, 79, 256 * NST * 4, 200 * MB)
        a(f"s_mul_i32 s72, s2, {NST*4}")
    a(f"s_lshl_b32 s48, s{sTILE}, 1")
    a(f"s_add_u32 s48, s48, s{sKH}")
    a("s_lshl_b32 s48, s48, 8")
    a(f"s_add_u32 s78, s48, {HFLAG_G}")
    a(f"s_lshl_b32 s48, s{sC8}, 5")
    a("s_add_u32 s79, s78, s48")
    a(f"s_lshl_b32 s48, s{sWV}, 2")
    a("s_add_u32 s79, s79, s48")
    a(f"s_lshr_b32 s{sMH}, s{sLW}, 1")
    a(f"s_and_b32 s{sNH}, s{sLW}, 1")
    a("v_mov_b32 v242, v19")
    stamp(a, 0)
    a(f"s_cmp_ge_u32 s{sWV}, 4")
    a("s_cbranch_scc1 L_hpre")
    consumer_pre(a)
    a("s_branch L_join")
    a.label("L_hpre")
    H = Helper(a)
    H.pre()
    a.label("L_join")
    consts(a)
    a(f"s_cmp_ge_u32 s{sWV}, 4")
    a("s_cbranch_scc1 L_hw")
    a("s_waitcnt vmcnt(1)")
    a("s_branch L_hw2")
    a.label("L_hw")
    H.after_x()
    a.label("L_hw2")
    stamp(a, 11); stamp(a, 19, wave=4)
    startup(a, H.inserts())
    a(f"s_cmp_ge_u32 s{sWV}, 4")
    a("s_cbranch_scc0 L_consumer")
    H.main()
    shared_epilogue(a)
    gen_consumer(a)
    a.label("L_end")
    a("s_endpgm")

def w1_touch_voff(a, d):
    a("v_mul_u32_u24 v10, 4682, v1")
    a("v_lshrrev_b32 v10, 16, v10")
    a("v_mul_u32_u24 v11, 14, v10")
    a("v_sub_u32 v11, v1, v11")
    a("v_lshrrev_b32 v12, 1, v10")
    a("v_and_b32 v10, 1, v10")
    a("v_lshl_add_u32 v10, v10, 3, v12")
    a(f"s_mov_b32 s56, {SLAB}")
    a("v_mul_lo_u32 v10, v10, s56")
    a(f"v_lshl_add_u32 v{d}, v11, 7, v10")
    a("s_mul_i32 s56, s2, 1792")
    a(f"v_add_u32 v{d}, s56, v{d}")
    a("v_cmp_gt_u32 vcc, 56, v1")
    a("v_bfrev_b32 v10, 1")
    a("s_nop 0")
    a(f"v_cndmask_b32 v{d}, v10, v{d}, vcc")

class Helper:
    def __init__(self, a):
        self.a = a
        self.vm = VM(a)
        self.vm.ops = ["x", "x"] + (["s"] * 0)
    def issueA(self, n, qs=range(4)):
        a, vm = self.a, self.vm
        slot = (n % 3) * G1_STAGE
        for q in qs:
            a(f"s_add_u32 m0, s96, {slot + q*1024}")
            a(f"s_add_u32 s55, s{84 if n < 8 else 85}, {q*16384 + n*128}")
            vm.op(f"buffer_load_dwordx4 v2, {SR(S_X)}, s55 offen lds", f"st{n}")
    def issueB(self, n, qs=range(8)):
        a, vm = self.a, self.vm
        slot = (n % 3) * G1_STAGE
        a("s_mov_b32 exec_hi, 0xffffff")
        for q in qs:
            roff = (8 * (q >> 1) + 2 * (q & 1)) * 7168
            a(f"s_add_u32 m0, s54, {slot + q*896}")
            if n < 8: a(f"s_add_u32 s55, s83, {n*SLAB + roff}")
            else: a(f"s_sub_u32 s55, {n*SLAB + roff}, s83")
            vm.op(f"buffer_load_dwordx4 v{3 + ((q >> 1) & 1)}, {SR(S_W1)}, s55 offen {W1F} lds", f"st{n}")
        a("s_mov_b64 exec, -1")
    def pre(self):
        a, vm = self.a, self.vm
        a("v_lshrrev_b32 v10, 3, v1")
        a("v_and_b32 v11, 7, v1")
        a("v_xor_b32 v11, v11, v10")
        a("v_lshlrev_b32 v2, 19, v10")
        a("v_lshl_add_u32 v2, v11, 4, v2")
        a(f"s_lshl_b32 s48, s{sJH}, 4")
        a(f"s_lshl_b32 s49, s{sLW}, 2")
        a("s_add_u32 s48, s48, s49")
        a("s_lshl_b32 s48, s48, 3")
        a(f"s_add_u32 s48, s48, s{sT1}")
        a("s_lshl_b32 s48, s48, 11")
        a(f"s_lshr_b32 s82, s{sTILE}, 3")
        a(f"s_mul_i32 s83, s82, {8*SLAB}")
        a("s_lshl_b32 s82, s82, 10")
        a("s_add_u32 s84, s48, s82")
        a("s_sub_u32 s85, s48, s82")
        a(f"s_lshl_b32 s96, s{sLW}, 12")
        if TV == 'a': self.issueA(0, range(2))
        a(f"s_lshl_b32 s48, s2, 3")
        a(f"s_add_u32 s48, s48, s{sLW}")
        a("s_cmp_lg_u32 s48, 1")
        a("s_cbranch_scc1 L_noepoch")
        a("v_mov_b32 v10, 0")
        a("s_or_b32 s48, s98, 1")
        a("v_mov_b32 v11, s48")
        a("s_mov_b64 exec, 1")
        a(f"buffer_store_dword v11, v10, {SR(S_DBG)}, 0 offen sc1")
        a("s_mov_b64 exec, -1")
        a.label("L_noepoch")
        a(f"s_lshr_b32 s49, s{sLW}, 1")
        a("s_lshl_b32 s49, s49, 5")
        a(f"s_and_b32 s50, s{sLW}, 1")
        a("s_lshl_b32 s50, s50, 2")
        a("s_add_u32 s49, s49, s50")
        a("s_mul_i32 s49, s49, 7168")
        a(f"s_mul_i32 s50, s{sCT}, 448")
        a("s_add_u32 s49, s49, s50")
        a("v_cmp_lt_u32 vcc, 27, v1")
        a("v_subrev_u32 v10, 28, v1")
        a(f"v_mov_b32 v11, 7168")
        a("v_cndmask_b32 v10, v1, v10, vcc")
        a("v_cndmask_b32 v11, 0, v11, vcc")
        a("v_add_u32 v11, s49, v11")
        a("v_lshl_add_u32 v3, v10, 4, v11")
        a("v_xor_b32 v10, 2, v10")
        a("v_lshl_add_u32 v4, v10, 4, v11")
        a(f"s_mul_i32 s54, s{sLW}, 7168")
        a("s_add_u32 s54, s54, 16384")
        a("v_mov_b32 v58, 0")
        self.late_setup()
    def late_setup(self):
        a = self.a
        a(f"v_bfrev_b32 v{OOB}, 1")
        a("v_lshlrev_b32 v15, 7, v1")
        a("v_cmp_gt_u32 vcc, 56, v1")
        a(f"s_and_b32 s59, s{sLW}, 1")
        a("s_mul_i32 s80, s2, 28672")
        a(f"v_cndmask_b32 v15, v{OOB}, v15, vcc")
        g1_bfrag_addrs(a, 59, 36, 37, 38, 10, 11)
        a(f"s_lshr_b32 s60, s{sLW}, 1")
        a(f"s_mul_i32 s61, s60, {32*448}")
        for r in (36, 37, 38): a(f"v_add_u32 v{r}, s61, v{r}")
        a("v_lshrrev_b32 v10, 4, v1")
        a("v_lshlrev_b32 v10, 4, v10")
        a("s_mul_i32 s60, s60, 896")
        a(f"s_add_u32 s60, s60, {L_CS4}")
        a("s_mul_i32 s61, s59, 384")
        a("s_add_u32 s61, s61, s60")
        a("v_add_u32 v39, s61, v10")
        a("s_lshl_b32 s61, s59, 6")
        a("s_add_u32 s61, s61, 768")
        a("s_add_u32 s61, s61, s60")
        a("v_add_u32 v40, s61, v10")
        a(f"s_lshl_b32 s86, s{sCT}, 4")
        a(f"s_add_u32 s86, s86, s{sTILE}")
        a("s_mul_i32 s86, s86, 896")
        a(f"s_add_u32 s86, s86, {CS_G}")
        a(f"s_and_b32 s87, s{sTILE}, 7")
        for i in range(4): a(f"v_mov_b32 v{44+i}, 0x3f803f80")
        a("s_and_b32 s60, s2, 7")
        a("s_lshl_b32 s60, s60, 1")
        a("s_lshr_b32 s61, s2, 7")
        a("s_add_u32 s60, s60, s61")
        a("s_bfe_u32 s61, s2, 0x40003")
        a("s_lshl_b32 s90, s60, 10")
        a("s_lshl_b32 s91, s61, 6")
        a("s_add_u32 s90, s90, s91")
        a("s_lshl_b32 s95, s60, 20")
        a("s_lshr_b32 s62, s61, 1")
        a("s_lshl_b32 s62, s62, 10")
        a("s_add_u32 s95, s95, s62")
        a("s_and_b32 s62, s61, 1")
        a("s_lshl_b32 s62, s62, 7")
        a("s_add_u32 s95, s95, s62")
        a(f"s_lshl_b32 s62, s{sLW}, 14")
        a("s_add_u32 s95, s95, s62")
        a(f"s_add_u32 s95, s95, {112*8192}")
        a("s_lshl_b32 s91, s60, 7")
        a("s_lshl_b32 s61, s61, 2")
        a("s_add_u32 s91, s91, s61")
        a(f"s_add_u32 s91, s91, {RS_G}")
        a(f"s_lshl_b32 s92, s{sCT}, 7")
        a(f"s_lshl_b32 s61, s{sTILE}, 2")
        a("s_add_u32 s92, s92, s61")
        a(f"s_add_u32 s92, s92, {RC_G}")
        a("s_lshl_b32 s93, s2, 2")
        a(f"s_add_u32 s93, s93, {QF_G}")
        a("v_cmp_gt_u32 vcc, 16, v1")
        a(f"s_lshl_b32 s60, s{sTILE}, 7")
        a(f"s_add_u32 s60, s60, {RS_G}")
        a(f"s_lshl_b32 s61, s{sCT}, 7")
        a(f"s_add_u32 s61, s61, {RC_G}")
        a("v_mov_b32 v62, s60")
        a("v_mov_b32 v63, s61")
        a("v_and_b32 v10, 15, v1")
        a("v_cndmask_b32 v62, v63, v62, vcc")
        a("v_lshl_add_u32 v62, v10, 2, v62")
        a("v_lshlrev_b32 v41, 6, v10")
        a("v_bfe_u32 v10, v1, 4, 1")
        a("v_lshl_add_u32 v41, v10, 5, v41")
        a("v_lshrrev_b32 v11, 5, v1")
        a("v_lshl_add_u32 v41, v11, 4, v41")
        a("v_and_b32 v12, 7, v1")
        a("v_lshlrev_b32 v42, 20, v12")
        a("v_lshl_add_u32 v42, v11, 6, v42")
        a("v_bfe_u32 v10, v1, 3, 2")
        a("v_lshl_add_u32 v42, v10, 3, v42")
        a("v_lshlrev_b32 v43, 4, v12")
        a("v_lshl_add_u32 v43, v11, 13, v43")
        a("v_lshl_add_u32 v43, v10, 8, v43")
        a(f"s_lshl_b32 s89, s{sLW}, 20")
        a("s_lshl_b32 s60, s2, 11")
        a("s_add_u32 s89, s89, s60")
        a(f"s_add_u32 s88, s89, {4*MB}")
    def after_x(self):
        self.vm.wait("x")
        stamp(self.a, 23, wave=4)
        self.issueA(0, range(2 if TV == 'a' else 0, 4))
        self.issueB(0, range(4 if TV == 'a' else 3))
    def inserts(self):
        vm = self.vm
        def f2():
            self.issueB(1, range(4, 8))
            vm.op(f"buffer_load_dword v59, v58, {SR(S_DBG)}, 0 offen sc1", "ep")
        return {"ln": lambda: self.issueB(0, range(4 if TV == 'a' else 3, 8)), "r8": lambda: self.issueA(1),
                "f1": lambda: self.issueB(1, range(4)), "f2": f2}
    def main(self):
        a, vm = self.a, self.vm
        def job_colsum(n):
            lab = a.uid("cs")
            a(f"s_cmp_lg_u32 s87, {n}")
            a(f"s_cbranch_scc1 {lab}")
            slot = (n % 3) * G1_STAGE
            for r in range(3): a(f"v_add_u32 v{10+r}, {slot}, v{36+r}")
            for i in range(7):
                for hh in range(2):
                    d = 128 + 4 * i + 2 * hh
                    if i < 6: a(f"ds_read_b64_tr_b16 v[{d}:{d+1}], v{10 + (i & 1)} offset:{16*hh*448 + i*32}")
                    else: a(f"ds_read_b64_tr_b16 v[{d}:{d+1}], v12 offset:{16*hh*448}")
            a("s_waitcnt lgkmcnt(0)")
            for i in range(7):
                a(f"v_mfma_f32_16x16x32_bf16 v[{156+4*i}:{159+4*i}], v[{128+4*i}:{131+4*i}], v[44:47], 0")
            a("s_mov_b32 exec_lo, 0x00010001")
            a("s_mov_b32 exec_hi, 0x00010001")
            a.nop(6)
            for i in range(6): a(f"ds_write_b128 v39, v[{156+4*i}:{159+4*i}] offset:{64*i}")
            a("ds_write_b128 v40, v[180:183]")
            a("s_mov_b64 exec, -1")
            a.label(lab)
        def job_csstore():
            a(f"v_add_u32 v11, {L_CS4}, v19")
            a("ds_read_b128 v[28:31], v11")
            a("ds_read_b128 v[32:35], v11 offset:896")
            sel_voff(a, 18, 19, 1)
            a("s_waitcnt lgkmcnt(0)")
            a("v_pk_add_f32 v[28:29], v[28:29], v[32:33]")
            a("v_pk_add_f32 v[30:31], v[30:31], v[34:35]")
            a("s_mov_b32 exec_hi, 0xffffff")
            vm.op(f"buffer_store_dwordx4 v[28:31], v18, {SR(S_MISC)}, s86 offen sc1", "pub")
            a("s_mov_b64 exec, -1")
        def job_spf(srdb, sreg, k0, k1):
            for k in range(k0, k1): a(f"s_buffer_load_dword s100, {SR(srdb)}, s{sreg} offset:{k*128}")
        def job_pub0():
            a(f"v_add_u32 v20, {L_ST8}, v19")
            a("ds_read_b128 v[48:51], v20")
            a(f"s_add_u32 s60, s96, {L_XN}")
            a("v_add_u32 v20, s60, v19")
            for q in range(4): a(f"ds_read_b128 v[{184+4*q}:{187+4*q}], v20 offset:{q*1024}")
            a("s_waitcnt lgkmcnt(0)")
        def job_statstore():
            sel_voff(a, 18, 19, 0)
            a("s_mov_b64 exec, 15")
            vm.op(f"buffer_store_dwordx4 v[48:51], v18, {SR(S_MISC)}, s90 offen offset:{STAT_G} sc1", "pub")
            a("s_mov_b64 exec, -1")
        def job_epoch():
            vm.wait("ep")
            spin(a, "ep", [f"buffer_load_dword v59, v58, {SR(S_DBG)}, 0 offen sc1"],
                 [f"v_readfirstlane_b32 s{sEP}, v59", "s_nop 0", f"s_cmp_lg_u32 s{sEP}, 0"], first_loaded=True)
            a(f"v_mov_b32 v60, s{sEP}")
        def job_ap(k):
            reg = (FR if k < 4 else 184) + 4 * (k & 3)
            so = 88 if k < 4 else 89
            if (k & 3) == 2: a(f"s_add_u32 s{so}, s{so}, {256*2048}")
            vm.op(f"buffer_store_dwordx4 v[{reg}:{reg+3}], v41, {SR(S_AP)}, s{so} offen offset:{(k & 1)*1024} sc1", "pub")
        def job_cload():
            a(f"s_lshl_b32 s60, s{sLW}, 7")
            a("s_lshl_b32 s61, s2, 12")
            a("s_add_u32 s60, s60, s61")
            for i, srdc in enumerate((S_CR, S_CI)):
                vm.op(f"buffer_load_dwordx2 v[{20+4*i}:{21+4*i}], v42, {SR(srdc)}, s60 offen nt", "cl")
                vm.op(f"buffer_load_dwordx2 v[{22+4*i}:{23+4*i}], v42, {SR(srdc)}, s60 offen offset:32 nt", "cl")
        def job_cstore():
            vm.wait("cl")
            vm.op(f"buffer_store_dwordx4 v[20:23], v43, {SR(S_HF)}, s95 offen sc1", "pub")
            a("s_add_u32 s95, s95, 65536")
            vm.op(f"buffer_store_dwordx4 v[24:27], v43, {SR(S_HF)}, s95 offen sc1", "pub")
        def job_ready():
            sel_voff(a, 18, 58, 0)
            a("s_mov_b64 exec, 1")
            for sr_ in (91, 92, 93):
                vm.op(f"buffer_store_dword v60, v18, {SR(S_MISC)}, s{sr_} offen sc1", "rdy")
            a("s_mov_b64 exec, -1")
        CHK_LD = [f"buffer_load_dword v63, v62, {SR(S_MISC)}, 0 offen sc1"]
        CHK = [f"v_cmp_ne_u32 vcc, s{sEP}, v63", "s_nop 1", "s_cmp_eq_u64 vcc, 0"]
        QLD = [f"buffer_load_dwordx4 v[52:55], v19, {SR(S_MISC)}, s97 offen sc1"]
        QCHK = [f"v_xor_b32 v{52+i}, s{sEP}, v{52+i}" for i in range(4)] + \
              ["v_or_b32 v52, v52, v53", "v_or3_b32 v52, v52, v54, v55", "v_cmp_ne_u32 vcc, 0, v52", "s_nop 1", "s_cmp_eq_u64 vcc, 0"]
        def job_pload():
            for l in CHK_LD: vm.op(l, "pl")
        def job_gather():
            vm.wait("pl")
            spin(a, "pp", CHK_LD, CHK, first_loaded=True)
            a(f"s_lshl_b32 s60, s{sTILE}, 10")
            a(f"s_lshl_b32 s61, s{sLW}, 8")
            a("s_add_u32 s60, s60, s61")
            a(f"s_add_u32 m0, s61, {L_STAT}")
            a("v_lshlrev_b32 v10, 2, v1")
            vm.op(f"buffer_load_dword v10, {SR(S_MISC)}, s60 offen sc1 lds", "g")
            a("v_lshrrev_b32 v10, 4, v1")
            a("v_mul_u32_u24 v10, 3584, v10")
            a("v_and_b32 v11, 15, v1")
            a("v_lshl_add_u32 v10, v11, 4, v10")
            a(f"s_mul_i32 s60, s{sCT}, {16*896}")
            a(f"s_mul_i32 s61, s{sLW}, 224")
            a("s_add_u32 s60, s60, s61")
            a(f"s_add_u32 s60, s60, {CS_G}")
            for p in range(4):
                vm.op(f"buffer_load_dwordx4 v[{20+4*p}:{23+4*p}], v10, {SR(S_MISC)}, s60 offen offset:{896*p} sc1", "g")
            a(f"s_mov_b32 s97, {QF_G}")
            vm.op(QLD[0], "ql")
            a(f"s_add_u32 s61, s61, {L_CSUM}")
            a("v_lshlrev_b32 v11, 4, v11")
            a("v_add_u32 v11, s61, v11")
        def job_gather2():
            vm.wait("g")
            for p in range(1, 4):
                a(f"v_pk_add_f32 v[20:21], v[20:21], v[{20+4*p}:{21+4*p}]")
                a(f"v_pk_add_f32 v[22:23], v[22:23], v[{22+4*p}:{23+4*p}]")
            for sw in ("v_permlane16_swap_b32", "v_permlane32_swap_b32"):
                for i in range(4): a(f"v_mov_b32 v{24+i}, v{20+i}")
                for i in range(4): a(f"{sw} v{24+i}, v{20+i}")
                a("v_pk_add_f32 v[20:21], v[20:21], v[24:25]")
                a("v_pk_add_f32 v[22:23], v[22:23], v[26:27]")
            a(f"v_mov_b32 v57, {L_ST8+64}")
            a("s_mov_b64 exec, 0x3fff")
            a("ds_write_b128 v11, v[20:23]")
            a("ds_write_b32 v57, v60")
            a("s_mov_b64 exec, -1")
        EV1 = 8
        W2L = [int(x) for x in OPT.get("w2l", "1,3,5,12").split(",")]
        def w2touch(k):
            sel_voff(a, 18, 15, k)
            a(f"s_add_u32 s55, s80, {k*7168}")
            vm.op(f"buffer_load_dword v16, v18, {SR(S_W2)}, s55 offen", "touch")
        before = {0: [job_pub0], 13: [job_pload], 14: [job_gather]}
        after = {2: [job_epoch], 11: [job_ready], 15: [job_gather2]}
        APE = int(OPT.get("ape", "8"))
        after.setdefault(EV1, []).extend([job_csstore, job_statstore, job_cstore])
        for k in range(8): after.setdefault(EV1 if k < APE else int(OPT.get("ap2", "6")), []).append(lambda k=k: job_ap(k))
        for k, n in enumerate(W2L): after.setdefault(n, []).append(lambda k=k: w2touch(k))
        after.setdefault(W2L[1], []).append(job_cload)
        stamp(a, 13, wave=4)
        for n in range(16):
            htrace(a)
            vm.wait(f"st{n}", " lgkmcnt(0)")
            htrace(a)
            a("s_barrier")
            htrace(a)
            for j in before.get(n, []): j()
            if n + 2 < 16:
                self.issueA(n + 2); self.issueB(n + 2)
            htrace(a)
            if n < 8: job_colsum(n)
            for j in after.get(n, []): j()
        a("s_waitcnt lgkmcnt(0)")
        a("s_barrier")
        a("v_add_u32 v232, s96, v19")
        a("v_lshrrev_b32 v10, 4, v1")
        a("v_and_b32 v11, 15, v1")
        a("v_lshlrev_b32 v12, 1, v10")
        a("v_xor_b32 v13, v11, v12")
        a("v_lshlrev_b32 v233, 11, v10")
        a("v_lshl_add_u32 v234, v13, 4, v233")
        a("v_xor_b32 v13, 8, v13")
        a("v_lshl_add_u32 v235, v13, 4, v233")
        a(f"v_add_u32 v235, {4*2048}, v235")
        a(f"s_lshl_b32 s60, s{sLW}, 15")
        a(f"s_lshl_b32 s61, s{sC8}, 8")
        a("s_add_u32 s60, s60, s61")
        a("v_add_u32 v233, s60, v234")
        a("v_add_u32 v234, s60, v235")
        a("s_add_u32 s84, s96, 16384")
        a(f"s_lshr_b32 s60, s{sLW}, 1")
        a("s_lshl_b32 s85, s60, 13")
        a(f"s_and_b32 s60, s{sLW}, 1")
        a("s_lshl_b32 s60, s60, 12")
        a("s_add_u32 s85, s85, s60")
        a(f"s_lshl_b32 s60, s{sKH}, 11")
        a("s_add_u32 s85, s85, s60")
        a(f"s_lshl_b32 s87, s{sTILE}, 20")
        a(f"s_mul_i32 s82, s{sKH}, {56*8192}")
        a("s_add_u32 s82, s82, s87")
        a("s_add_u32 s87, s87, s85")
        a(f"s_add_u32 s87, s87, {112*8192}")
        a(f"s_lshl_b32 s88, s{sT1}, 20")
        a(f"s_mul_i32 s83, s{sKH}, {1792*2048}")
        a(f"s_mul_i32 s90, s{sC8}, 7")
        a(f"s_add_u32 s90, s90, s{sMH}")
        a(f"s_lshl_b32 s60, s{sMH}, 13")
        a("v_subrev_u32 v232, s60, v232")
        a(f"s_lshl_b32 s60, s{sMH}, 16")
        a("v_subrev_u32 v228, s60, v233")
        a("v_subrev_u32 v229, s60, v234")
        vm.wait("ql")
        spin(a, "qp", QLD, QCHK, first_loaded=True)
        vm.ops = []
        def g2B(slot, srdb, soff, tag, fl="", vb=233):
            a(f"s_add_u32 s55, {soff}, 16384")
            for q in range(4):
                a(f"s_add_u32 m0, s84, {slot + q*1024}")
                if q: a("s_nop 0")
                so = soff if q < 2 else "s55"
                if q == 0: a("s_nop 0")
                vm.op(f"buffer_load_dwordx4 v{vb + (q & 1)}, {SR(srdb)}, {so} offen {fl} lds", tag)
            if vb == 233: a(f"s_add_u32 {soff}, {soff}, 131072")
        def stage(n):
            slot = (n % 4) * G2_STAGE
            if n < 8:
                a(f"s_add_u32 m0, s85, {slot}")
                a("s_nop 0")
                for q in range(2):
                    vm.op(f"buffer_load_dwordx4 v240, {SR(S_HF)}, s87 offen offset:{q*1024} sc1 lds", f"s{n}")
                a("s_add_u32 s87, s87, 16384")
                g2B(slot, S_AP, "s88", f"s{n}", "sc1")
            else:
                a("s_lshl_b32 s91, s90, 16")
                a("s_add_u32 s91, s91, s83")
                g2B(slot, S_W2, "s91", f"s{n}", W2F, vb=228)
                a(f"s_add_u32 m0, s96, {slot}")
                a("s_lshl_b32 s91, s90, 13")
                a("s_add_u32 s91, s91, s82")
                for q in range(4):
                    vm.op(f"buffer_load_dwordx4 v232, {SR(S_HF)}, s91 offen offset:{q*1024} sc1 lds", f"s{n}")
                a("s_add_u32 s90, s90, 2")
                a("s_sub_u32 s92, s90, 56")
                a("s_cmp_ge_u32 s90, 56")
                a("s_cselect_b32 s90, s92, s90")
        a("v_lshlrev_b32 v236, 2, v1")
        a("v_mov_b32 v238, 0")
        if SHARE:
            for n in range(2): stage(n)
            a(f"s_lshl_b32 s48, s{sLW}, 14"); a(f"s_add_u32 s48, s48, {L_HAND}"); a("v_add_u32 v5, s48, v240")
            for l in epi_setup(1): a(l)
            a("s_barrier")
            for i in range(14): a(f"ds_read_b128 v[{ACC+4*i}:{ACC+4*i+3}], v5 offset:{i*1024}")
            a("s_waitcnt lgkmcnt(0)")
            a("s_branch L_epi")
            a.label("L_epi_ret_h")
            vm.ops += ["hst"] * 7
            for n in range(2, 4): stage(n)
        else:
            for n in range(4): stage(n)
            a("v_and_b32 v236, 0xfffffff3 + 0, v236") if False else None
            a("v_and_b32 v10, 3, v1"); a("v_lshrrev_b32 v236, 2, v1"); a("v_and_b32 v236, 7, v236")
            a("v_lshlrev_b32 v236, 5, v236"); a("v_lshl_add_u32 v236, v10, 2, v236")
            a("s_barrier")
        HLD = f"buffer_load_dword v237, v236, {SR(S_MISC)}, s78 offen sc1"
        HCHK = [f"v_cmp_ne_u32 vcc, s{sEP}, v237", "s_nop 1", "s_cmp_eq_u64 vcc, 0"]
        LOOP_S, LOOP_E = 12, 32
        n = 0
        while n < 36:
            if n == LOOP_S:
                a("s_mov_b32 s86, 0")
                a.label("L_h_g2loop")
                for u in range(4):
                    a("s_waitcnt vmcnt(16)")
                    a("s_barrier")
                    stage(n + u + 3)
                a("s_add_u32 s86, s86, 1")
                a(f"s_cmp_lt_u32 s86, {(LOOP_E-LOOP_S)//4}")
                a("s_cbranch_scc1 L_h_g2loop")
                vm.ops = ["s32"] * 8 + ["s33"] * 8 + ["s34"] * 8
                n = LOOP_E
                continue
            vm.wait(f"s{n}")
            a("s_barrier")
            m = n + 3
            if m == HM:
                stamp(a, 14, wave=4)
                vm.wait("hl")
                spin(a, "hp", [HLD], HCHK, first_loaded=True)
                stamp(a, 15, wave=4)
            if n == HFS and SHARE:
                vm.wait("hst")
                a("s_mov_b64 exec, 1")
                vm.op(f"buffer_store_dword v241, v238, {SR(S_MISC)}, s79 offen sc1", "hf")
                a("s_mov_b64 exec, -1")
            if 4 <= m < 36: stage(m)
            if m == HM - int(OPT.get("hlead", "3")): vm.op(HLD, "hl")
            n += 1
        htrace_store(a)
        a("s_endpgm")

L_HAND = 2 * G2_STAGE
def epi_setup(role):
    L16 = 240
    return [
        "v_lshrrev_b32 v10, 4, v1", "v_lshlrev_b32 v10, 4, v10",
        f"s_mul_i32 s48, s{sNH}, 384", f"s_add_u32 s48, s48, {L_CSUM}", "v_add_u32 v11, s48, v10",
        f"s_lshl_b32 s48, s{sNH}, 6", f"s_add_u32 s48, s48, {L_CSUM+768}", "v_add_u32 v12, s48, v10",
        "v_and_b32 v10, 15, v1", "v_lshlrev_b32 v10, 3, v10",
        f"s_lshl_b32 s48, s{sMH}, 9", f"s_add_u32 s48, s48, {L_STAT + role*256}", "v_add_u32 v10, s48, v10",
        f"s_lshl_b32 s48, s{sMH}, 12", f"s_add_u32 s48, s48, {role*2048}", f"v_add_u32 v2, s48, v{L16}",
        f"s_add_u32 s48, s48, {L_U}", f"s_lshl_b32 s54, s{sNH}, 3", "s_add_u32 s54, s54, s48", f"v_add_u32 v3, s54, v{L16}",
        f"s_lshl_b32 s54, s{sNH}, {10 if SHARE else 11}", "s_add_u32 s48, s48, s54", f"v_add_u32 v4, s48, v{L16}",
        f"s_mul_i32 s48, s{sCT}, 7", f"s_mul_i32 s49, s{sNH}, 3", "s_add_u32 s49, s49, s48",
        "s_lshl_b32 s49, s49, 13", f"s_lshl_b32 s53, s{sTILE}, 20", "s_add_u32 s49, s49, s53",
        "s_add_u32 s50, s49, 8192", "s_add_u32 s51, s49, 16384",
        "s_add_u32 s52, s48, 6", "s_lshl_b32 s52, s52, 13", "s_add_u32 s52, s52, s53",
        "s_add_u32 s52, s52, s54", f"v_mov_b32 v13, {L_ST8+64}"]

def shared_epilogue(a):
    NF = 2 if SHARE else 4
    a.label("L_epi")
    CB = 128; SB = 156; RL = 164
    a("ds_read_b32 v241, v13")
    for f in range(NF): a(f"ds_read_b64 v[{SB+2*f}:{SB+2*f+1}], v10 offset:{f*128}")
    a(f"ds_read_b128 v[{CB+24}:{CB+27}], v12")
    for nb in range(6): a(f"ds_read_b128 v[{CB+4*nb}:{CB+4*nb+3}], v11 offset:{nb*64}")
    a("s_waitcnt lgkmcnt(7)")
    for f in range(NF): a(f"v_rcp_f32 v{RL+2*f}, v{SB+2*f+1}")
    a("s_nop 0")
    for f in range(NF): a(f"v_mul_f32 v{RL+2*f}, {f2u(-LOG2E)}, v{RL+2*f}")
    a("s_waitcnt lgkmcnt(6)")
    def silu_ln(fs, accs, cs, temps, dsts):
        n = len(accs)
        S = lambda i: f"v[{SB+2*fs[i]}:{SB+2*fs[i]+1}]"
        R = lambda i: f"v[{RL+2*fs[i]}:{RL+2*fs[i]+1}]"
        for i in range(n):
            a(f"v_pk_fma_f32 v[{accs[i]}:{accs[i]+1}], v[{cs[i]}:{cs[i]+1}], {S(i)}, v[{accs[i]}:{accs[i]+1}] op_sel_hi:[1,0,1] neg_lo:[0,1,0] neg_hi:[0,1,0]")
        for i in range(n):
            a(f"v_pk_mul_f32 v[{temps[i]}:{temps[i]+1}], v[{accs[i]}:{accs[i]+1}], {R(i)} op_sel_hi:[1,0]")
        for i in range(n):
            a(f"v_exp_f32 v{temps[i]}, v{temps[i]}"); a(f"v_exp_f32 v{temps[i]+1}, v{temps[i]+1}")
        for i in range(n):
            a(f"v_pk_fma_f32 v[{temps[i]}:{temps[i]+1}], v[{temps[i]}:{temps[i]+1}], {S(i)}, {S(i)} op_sel:[0,1,1] op_sel_hi:[1,1,1]")
        for i in range(n):
            a(f"v_rcp_f32 v{temps[i]}, v{temps[i]}"); a(f"v_rcp_f32 v{temps[i]+1}, v{temps[i]+1}")
        for i in range(n):
            a(f"v_pk_mul_f32 v[{temps[i]}:{temps[i]+1}], v[{temps[i]}:{temps[i]+1}], v[{accs[i]}:{accs[i]+1}]")
        for i in range(n):
            a(f"v_cvt_pk_bf16_f32 v{dsts[i]}, v{temps[i]}, v{temps[i]+1}")
    TM = [184, 186, 188, 190]
    for h in range(NF // 2):
        fs = [2 * h, 2 * h, 2 * h + 1, 2 * h + 1]
        accs = [ACC + (f * 7 + 6) * 4 + 2 * (i & 1) for i, f in enumerate(fs)]
        d = 192 + 4 * h
        silu_ln(fs, accs, [CB + 24, CB + 26, CB + 24, CB + 26], TM, [d, d + 1, d + 2, d + 3])
        a(f"ds_write_b64 v3, v[{d}:{d+1}] offset:{2*h*1024}")
        a(f"ds_write_b64 v3, v[{d+2}:{d+3}] offset:{(2*h+1)*1024}")
    a("s_waitcnt lgkmcnt(0)")
    k = 0
    for pp in range(3):
        for f in range(NF):
            c = ACC + (f * 7 + 2 * pp) * 4
            d = 172 + (k & 1) * 4
            cc = CB + 8 * pp
            silu_ln([f] * 4, [c, c + 2, c + 4, c + 6], [cc, cc + 2, cc + 4, cc + 6], TM, [d, d + 1, d + 2, d + 3])
            a(f"buffer_store_dwordx4 v[{d}:{d+3}], v2, {SR(S_HF)}, s{49+pp} offen offset:{f*1024} sc1")
            k += 1
            if k == 1:
                a("s_barrier")
                for i in range(NF // 2): a(f"ds_read_b128 v[{192+4*i}:{195+4*i}], v4 offset:{i*1024}")
            if k == 2:
                a("s_waitcnt lgkmcnt(0)")
                for i in range(NF // 2): a(f"buffer_store_dwordx4 v[{192+4*i}:{195+4*i}], v2, {SR(S_HF)}, s52 offen offset:{i*1024} sc1")
    if not SHARE:
        a("s_branch L_epi_ret_c")
        return
    a(f"s_cmp_ge_u32 s{sWV}, 4")
    a("s_cbranch_scc1 L_epi_ret_h")
    a("s_branch L_epi_ret_c")

def consumer_pre(a):
    w1_touch_voff(a, 242)
    if TV == "a":
        a(f"s_cmp_eq_u32 s{sLW}, 3")
        a("s_mov_b32 s49, 0")
    else:
        a(f"s_cmp_ge_u32 s{sLW}, 2")
        a(f"s_cselect_b32 s49, 1, 0")
        a(f"s_and_b32 s49, s49, s{sLW}")
        a(f"s_xor_b32 s49, s49, 1")
        a(f"s_mul_i32 s49, s49, {2*SLAB}")
        a(f"s_cmp_ge_u32 s{sLW}, 2")
    a("s_cselect_b64 s[62:63], -1, 0")
    a("v_cndmask_b32 v11, v10, v242, s[62:63]")
    a(f"buffer_load_dword v241, v11, {SR(S_W1)}, s49 offen")
    a("v_and_b32 v10, 15, v1")
    a("v_lshrrev_b32 v11, 4, v1")
    a("v_and_b32 v12, 7, v1")
    a("v_xor_b32 v11, v11, v12")
    a("v_lshlrev_b32 v2, 7, v10")
    a("v_lshl_add_u32 v2, v11, 4, v2")
    a(f"s_lshl_b32 s48, s{sMH}, 13")
    a("v_add_u32 v2, s48, v2")
    a("v_xor_b32 v15, 64, v2")
    g1_bfrag_addrs(a, sNH, 3, 4, 5, 10, 11)
    for i in range(112): a(f"v_mov_b32 v{ACC+i}, 0")
    a(f"s_add_u32 s97, s{sLW}, {1 if TV == 'a' else 2}")
    a(f"s_mul_i32 s97, s97, {2*SLAB}")
    a("v_bfrev_b32 v10, 1")
    a("v_cndmask_b32 v242, v242, v10, s[62:63]")
    a(f"s_mov_b32 s{sSLOT}, 0")
    a("v_mov_b32 v6, v2"); a("v_mov_b32 v7, v3"); a("v_mov_b32 v8, v4"); a("v_mov_b32 v9, v5"); a("v_mov_b32 v14, v15")

def gen_consumer(a):
    a.label("L_consumer")
    SET = [128, 172]
    L16 = 240
    a(f"s_lshl_b32 s48, s{sLW}, 12")
    a(f"s_add_u32 s48, s48, {L_XN}")
    a(f"v_add_u32 v10, s48, v{L16}")
    for q in range(4): a(f"ds_write_b128 v10, v[{FR+4*q}:{FR+4*q+3}] offset:{q*1024}")
    def reads(st, kb):
        L = []; b = SET[st]
        order = [("a", 0), ("w", 0), ("w", 1), ("a", 1), ("w", 2), ("w", 3), ("a", 2), ("w", 4), ("w", 5), ("a", 3), ("w", 6)]
        for kind, i in order:
            if kind == "a":
                L.append(f"ds_read_b128 v[{b+4*i}:{b+4*i+3}], v{14 if kb else 6} offset:{i*2048}")
            else:
                for hh in range(2):
                    d = b + 16 + 4 * i + 2 * hh
                    ro = (32 * kb + 16 * hh) * 448
                    if i < 6: L.append(f"ds_read_b64_tr_b16 v[{d}:{d+1}], v{7 + (i & 1)} offset:{ro + i*32}")
                    else: L.append(f"ds_read_b64_tr_b16 v[{d}:{d+1}], v9 offset:{ro}")
        return L
    def mfmas(st):
        b = SET[st]; L = []
        for f in range(4):
            for nb in range(7):
                c = ACC + (f * 7 + nb) * 4
                L.append(f"v_mfma_f32_16x16x32_bf16 v[{c}:{c+3}], v[{b+16+4*nb}:{b+19+4*nb}], v[{b+4*f}:{b+3+4*f}], v[{c}:{c+3}]")
        return L
    def adv():
        return [f"s_add_u32 s{sSLOT}, s{sSLOT}, {G1_STAGE}", f"s_cmp_eq_u32 s{sSLOT}, {3*G1_STAGE}", f"s_cselect_b32 s{sSLOT}, 0, s{sSLOT}",
                f"v_add_u32 v6, s{sSLOT}, v2", f"v_add_u32 v7, s{sSLOT}, v3", f"v_add_u32 v8, s{sSLOT}, v4", f"v_add_u32 v9, s{sSLOT}, v5", f"v_add_u32 v14, s{sSLOT}, v15"]
    a(f"buffer_load_dword v241, v242, {SR(S_W1)}, s97 offen")
    stamp(a, 12)
    a(f"s_setprio {CPRIO}")
    if STAMP: a("s_mov_b32 s97, 0")
    a("s_waitcnt lgkmcnt(0)")
    a("s_barrier")
    stamp(a, 1)
    trace_mark(a)
    for r in reads(0, 0): a(r)
    a("s_mov_b32 s86, 0")
    a.label("L_c_g1loop")
    U1 = 3
    for u in range(U1):
        a("s_waitcnt lgkmcnt(0)")
        trace_commit(a)
        interleave(a, mfmas(0), reads(1, 1) + adv())
        a("s_waitcnt lgkmcnt(0)")
        a("s_barrier")
        trace_mark(a)
        tail = ["s_add_u32 s86, s86, 1", f"s_cmp_lt_u32 s86, {15//U1}"] if u == U1 - 1 else []
        interleave(a, mfmas(1), reads(0, 0) + tail)
    a("s_cbranch_scc1 L_c_g1loop")
    a("s_waitcnt lgkmcnt(0)")
    trace_commit(a)
    interleave(a, mfmas(0), reads(1, 1))
    a("s_waitcnt lgkmcnt(0)")
    hand = [f"s_lshl_b32 s48, s{sLW}, 14", f"s_add_u32 s48, s48, {L_HAND}", f"v_add_u32 v5, s48, v{L16}"]
    interleave(a, mfmas(1), hand + epi_setup(0), per=2)
    a("s_barrier")
    stamp(a, 2)
    a(f"s_setprio {EPRIO}")
    if SHARE:
        for i in range(14):
            c = ACC + 56 + 4 * i
            a(f"ds_write_b128 v5, v[{c}:{c+3}] offset:{i*1024}")
        a("s_waitcnt lgkmcnt(0)")
        a("s_barrier")
    a("s_branch L_epi")
    a.label("L_epi_ret_c")
    stamp(a, 3)
    a("v_readfirstlane_b32 s96, v241")
    ACO = 32; ACY = 96; SET2 = [128, 160]; XO = 192; PB = 208
    a(f"s_lshl_b32 s48, s{sMH}, 12")
    a(f"s_lshl_b32 s49, s{sKH}, 11")
    a("s_add_u32 s50, s48, s49")
    a(f"v_add_u32 v2, s50, v{L16}")
    a("s_xor_b32 s49, s49, 2048")
    a("s_add_u32 s50, s48, s49")
    a(f"v_add_u32 v3, s50, v{L16}")
    a("v_lshrrev_b32 v11, 2, v1")
    a("v_and_b32 v12, 7, v11")
    a("v_lshlrev_b32 v11, 8, v11")
    a("v_and_b32 v13, 3, v1")
    a("v_lshl_add_u32 v11, v13, 3, v11")
    a("v_add_u32 v11, 16384, v11")
    a(f"s_lshl_b32 s48, s{sNH}, 2")
    a("v_xor_b32 v12, s48, v12")
    for nb in range(4):
        a(f"v_xor_b32 v13, {nb}, v12")
        a(f"v_lshl_add_u32 v{4+nb}, v13, 5, v11")
    for i in range(32): a(f"v_mov_b32 v{ACY+i}, 0")
    a(f"s_mov_b32 s{sSLOT}, 0")
    a("v_mov_b32 v14, v2"); a("v_mov_b32 v15, v3")
    for nb in range(4): a(f"v_mov_b32 v{16+nb}, v{4+nb}")
    late = [
        "v_mov_b32 v20, 0",
        f"s_lshl_b32 s48, s{sLW}, 2",
        "s_lshl_b32 s80, s2, 7", "s_add_u32 s80, s80, s48", f"s_add_u32 s80, s80, {XFLAG_G}", "s_xor_b32 s81, s80, 512",
        "v_and_b32 v9, 7, v1", "v_lshlrev_b32 v9, 19, v9", "v_bfe_u32 v10, v1, 3, 1", "v_lshl_add_u32 v9, v10, 14, v9",
        "v_bfe_u32 v10, v1, 4, 1", "v_lshl_add_u32 v9, v10, 5, v9", "v_bfe_u32 v10, v1, 5, 1", "v_lshl_add_u32 v9, v10, 4, v9",
        f"s_lshl_b32 s48, s{sJH}, 4", f"s_lshl_b32 s49, s{sMH}, 3", "s_add_u32 s48, s48, s49", f"s_lshl_b32 s49, s{sKH}, 2",
        "s_add_u32 s48, s48, s49", "s_lshl_b32 s48, s48, 3", f"s_add_u32 s48, s48, s{sT1}", "s_lshl_b32 s48, s48, 11",
        f"s_lshl_b32 s49, s{sC8}, 8", "s_add_u32 s48, s48, s49", f"s_lshl_b32 s49, s{sNH}, 7", "s_add_u32 s91, s48, s49",
        f"s_add_u32 s92, s91, {16*2048}", "s_lshl_b32 s93, s2, 2", f"s_add_u32 s93, s93, s{sLW}", "s_lshl_b32 s93, s93, 12",
        f"s_add_u32 s93, s93, {XB_G}", f"s_xor_b32 s94, s93, {4*4*4096}"]
    for l in late: a(l)
    zero_o = [f"v_mov_b32 v{ACO+i}, 0" for i in range(64)]
    def adv2():
        return [f"s_add_u32 s{sSLOT}, s{sSLOT}, {G2_STAGE}", f"s_and_b32 s{sSLOT}, s{sSLOT}, {4*G2_STAGE-1}",
                f"v_add_u32 v14, s{sSLOT}, v2", f"v_add_u32 v15, s{sSLOT}, v3"] + [f"v_add_u32 v{16+nb}, s{sSLOT}, v{4+nb}" for nb in range(4)]
    def reads2(st, kb, y=False):
        b = SET2[st]; L = []
        for i in range(4):
            if not (y and i >= 2):
                L.append(f"ds_read_b128 v[{b+4*i}:{b+4*i+3}], v{14 + (i >> 1)} offset:{kb*8192 + (i & 1)*1024}")
            for hh in range(2):
                d = b + 16 + i * 4 + hh * 2
                L.append(f"ds_read_b64_tr_b16 v[{d}:{d+1}], v{16+i} offset:{kb*8192 + hh*4096}")
        return L
    def mfmas2(st, y=False):
        b = SET2[st]; L = []
        for fp in range(2 if y else 4):
            for nb in range(4):
                c = (ACY if y else ACO) + (fp * 4 + nb) * 4
                w = b + 16 + nb * 4; x = b + fp * 4
                L.append(f"v_mfma_f32_16x16x32_bf16 v[{c}:{c+3}], v[{w}:{w+3}], v[{x}:{x+3}], v[{c}:{c+3}]")
        return L
    a(f"s_setprio {CPRIO}")
    stamp(a, 5)
    a("s_barrier")
    stamp(a, 6)
    trace_mark(a)
    for r in reads2(0, 0, True): a(r)
    def step(y_cur, y_next, post=(), last=False, e1=()):
        a("s_waitcnt lgkmcnt(0)")
        trace_commit(a)
        interleave(a, mfmas2(0, y_cur), reads2(1, 1, y_cur) + ([] if last else adv2()) + list(e1), per=2)
        a("s_waitcnt lgkmcnt(0)")
        if not last:
            a("s_barrier")
            trace_mark(a)
            interleave(a, mfmas2(1, y_cur), reads2(0, 0, y_next) + list(post), per=2)
        else:
            interleave(a, mfmas2(1, y_cur), [])
    xl = []
    for fp in range(2):
        for pp in range(2):
            d = XO + (fp * 2 + pp) * 4
            xl.append(f"buffer_load_dwordx4 v[{d}:{d+3}], v9, {SR(S_X)}, s{91+fp} offen offset:{pp*64}")
    for s in range(8):
        e1 = []
        if s == HFS: e1 = ["s_waitcnt vmcnt(0)", "s_mov_b64 exec, 1", f"buffer_store_dword v241, v20, {SR(S_MISC)}, s79 offen sc1", "s_mov_b64 exec, -1"]
        post = zero_o[8*s:8*s+8] + (xl if s == 3 else [])
        step(True, s < 7, post=post, e1=e1)
    stamp(a, 4)
    U2 = 3
    a("s_mov_b32 s86, 0")
    a.label("L_c_g2loop")
    for u in range(U2):
        step(False, False, post=(["s_add_u32 s86, s86, 1", f"s_cmp_lt_u32 s86, {27//U2}"] if u == U2 - 1 else []))
    a("s_cbranch_scc1 L_c_g2loop")
    step(False, False, last=True)
    stamp(a, 7)
    a("s_setprio 0")
    a(f"s_mov_b32 s60, {f2u(-LOG2E)}")
    a("s_mov_b32 s61, s60")
    a.nop(6)
    for q in range(4):
        for i in range(4):
            c = ACO + 32 + q * 8 + 2 * i
            a(f"v_cvt_pk_bf16_f32 v{128+4*q+i}, v{c}, v{c+1}")
        a(f"buffer_store_dwordx4 v[{128+4*q}:{131+4*q}], v{L16}, {SR(S_MISC)}, s93 offen offset:{q*1024} sc1")
    a("s_waitcnt vmcnt(0)")
    a("s_mov_b64 exec, 1")
    a(f"buffer_store_dword v241, v20, {SR(S_MISC)}, s80 offen sc1")
    a("s_mov_b64 exec, -1")
    stamp(a, 8)
    XLD = f"buffer_load_dword v22, v20, {SR(S_MISC)}, s81 offen sc1"
    spin(a, "xp", [XLD], ["v_readfirstlane_b32 s62, v22", "s_nop 0", "s_cmp_eq_u32 s62, s96"])
    for q in range(4):
        a(f"buffer_load_dwordx4 v[{PB+4*q}:{PB+4*q+3}], v{L16}, {SR(S_MISC)}, s94 offen offset:{q*1024} sc1")
    for q in range(4):
        a(f"s_waitcnt vmcnt({3-q})")
        for i in range(4):
            c = ACO + q * 8 + 2 * i; p = PB + 4 * q + i
            a(f"v_lshlrev_b32 v{144+2*i}, 16, v{p}")
            a(f"v_and_b32 v{145+2*i}, 0xffff0000, v{p}")
        for i in range(4):
            c = ACO + q * 8 + 2 * i
            a(f"v_pk_add_f32 v[{c}:{c+1}], v[{c}:{c+1}], v[{144+2*i}:{145+2*i}]")
    stamp(a, 9)
    for h in range(2):
        srcs = [ACO + 2 * i for i in range(8 * h, 8 * h + 8)]; temps = [128 + 2 * i for i in range(8)]
        for i in range(8): a(f"v_pk_mul_f32 v[{temps[i]}:{temps[i]+1}], v[{srcs[i]}:{srcs[i]+1}], s[60:61]")
        for i in range(8): a(f"v_exp_f32 v{temps[i]}, v{temps[i]}"); a(f"v_exp_f32 v{temps[i]+1}, v{temps[i]+1}")
        for i in range(8): a(f"v_pk_add_f32 v[{temps[i]}:{temps[i]+1}], v[{temps[i]}:{temps[i]+1}], 1.0 op_sel_hi:[1,0]")
        for i in range(8): a(f"v_rcp_f32 v{temps[i]}, v{temps[i]}"); a(f"v_rcp_f32 v{temps[i]+1}, v{temps[i]+1}")
        for i in range(8):
            y = ACY + 2 * (8 * h + i)
            a(f"v_pk_mul_f32 v[{srcs[i]}:{srcs[i]+1}], v[{srcs[i]}:{srcs[i]+1}], v[{y}:{y+1}]")
        for i in range(8): a(f"v_pk_mul_f32 v[{temps[i]}:{temps[i]+1}], v[{temps[i]}:{temps[i]+1}], v[{srcs[i]}:{srcs[i]+1}]")
        for i in range(8): a(f"v_cvt_pk_bf16_f32 v{160+8*h+i}, v{temps[i]}, v{temps[i]+1}")
        a.nop(2)
        fp = h
        for pp in range(2):
            b0 = 160 + (fp * 4 + 2 * pp) * 2
            a(f"v_permlane16_swap_b32 v{b0}, v{b0+2}")
            a(f"v_permlane16_swap_b32 v{b0+1}, v{b0+3}")
        for q in (2 * h, 2 * h + 1):
            for i in range(4):
                p = 160 + q * 4 + i; x = XO + q * 4 + i
                t = 144 + 4 * (i & 1)
                a(f"v_lshlrev_b32 v{t}, 16, v{p}")
                a(f"v_and_b32 v{t+1}, 0xffff0000, v{p}")
                a(f"v_lshlrev_b32 v{t+2}, 16, v{x}")
                a(f"v_and_b32 v{t+3}, 0xffff0000, v{x}")
                a(f"v_pk_add_f32 v[{t}:{t+1}], v[{t}:{t+1}], v[{t+2}:{t+3}]")
                a(f"v_cvt_pk_bf16_f32 v{x}, v{t}, v{t+1}")
            d = XO + q * 4
            a(f"buffer_store_dwordx4 v[{d}:{d+3}], v9, {SR(S_OUT)}, s{91+(q>>1)} offen offset:{(q&1)*64}")
    if STAMP: a("s_waitcnt vmcnt(0)")
    stamp(a, 10)
    trace_store(a)

def main(out):
    for p in range(448): assert (p * 2341) >> 16 == p // 28
    for p in range(64): assert (p * 4682) >> 16 == p // 14
    a = Asm()
    gen(a)
    for p in check(a.lines): print("HAZARD", p)
    vg = 256 if STAMP else 244
    txt = f"""; generated by work/gen11.py
; @launch grid=(256,1,1) block=(512,1,1) lds={LDS_TOTAL}
.amdgcn_target "amdgcn-amd-amdhsa--gfx950"
.text
.globl {NAME}_kernel
.p2align 8
.type {NAME}_kernel,@function
""" + a.text() + f""".section .rodata,"a"
.p2align 6
.amdhsa_kernel {NAME}_kernel
  .amdhsa_next_free_vgpr {vg}
  .amdhsa_next_free_sgpr 102
  .amdhsa_accum_offset {vg}
  .amdhsa_group_segment_fixed_size 0
  .amdhsa_kernarg_size 88
  .amdhsa_user_sgpr_count 2
  .amdhsa_user_sgpr_kernarg_segment_ptr 1
  .amdhsa_system_sgpr_workgroup_id_x 1
.end_amdhsa_kernel
"""
    open(out, "w").write(txt)
    print("lines", len(a.lines), "lds", LDS_TOTAL)

if __name__ == "__main__":
    args = [x for x in sys.argv[1:] if not x.startswith("--") and "=" not in x]
    main(args[0] if args else f"cdna_kernels/{NAME}.s")
```

```python
import sys, os, struct
from asmlib import *

NAME = "recurrent_scan__spectral_fnet__dense_activation_silu__prompt"
MB = 1 << 20
HF_OFF = 0
AP_OFF = 16 * MB
MISC_OFF = 24 * MB
STAT_G = 0
CS_G = 65536
HFLAG_G = 640 * 1024
XFLAG_G = 672 * 1024
RS_G = 720 * 1024
RC_G = 724 * 1024
QF_G = 728 * 1024
XB_G = 1 * MB
STAMP = "--stamp" in sys.argv
OPT = dict(x.split("=") for x in sys.argv if "=" in x and not x.startswith("--"))
NST = 64
EK = int(OPT.get('ek', '5'))
TP = OPT.get('tp', 'p2')
SHARE = OPT.get('share', '0') == '1'
TV = OPT.get('tv', 'b')
HM = int(OPT.get('hm', '11'))
HFS = int(OPT.get('hfs', '1'))
W1F = OPT.get('w1f', 'none').replace('none', '')
W2F = OPT.get('w2f', 'none').replace('none', '')
CPRIO = int(OPT.get('cprio', '2'))
EPRIO = int(OPT.get('eprio', '1'))

def f2u(x): return "0x%08x" % struct.unpack("<I", struct.pack("<f", x))[0]

S_X, S_W1, S_W2, S_OUT, S_CR, S_HF, S_AP, S_MISC, S_DBG, S_CI = 4, 8, 12, 16, 20, 24, 28, 32, 36, 64
def SR(b): return f"s[{b}:{b+3}]"
sWV, sTILE, sKH, sC8, sCT, sT1, sJH, sLW = 3, 40, 41, 42, 43, 44, 45, 46
sSLOT = 47
sSPIN = 73
LOG2E = 1.4426950408889634

G1_STAGE = 45056
L_STAT = 135168
L_CSUM = L_STAT + 1024
L_CS4 = L_CSUM + 1024
L_ST8 = L_CS4 + 4096
L_U = L_ST8 + 256
LDS_TOTAL = L_U + 16384
G2_STAGE = 32768

def srd(a, d, lo, hi, size, add=0):
    if add == 0:
        a(f"s_mov_b32 s{d}, s{lo}"); a(f"s_mov_b32 s{d+1}, s{hi}")
    else:
        a(f"s_add_u32 s{d}, s{lo}, {add}"); a(f"s_addc_u32 s{d+1}, s{hi}, 0")
    a(f"s_mov_b32 s{d+2}, {size}"); a(f"s_mov_b32 s{d+3}, 0x20000")

def stamp(a, idx, wave=0, vt=250):
    if not STAMP: return
    lab = a.uid("stamp%d" % idx)
    a(f"s_cmp_lg_u32 s{sWV}, {wave}")
    a(f"s_cbranch_scc1 {lab}")
    a("s_memrealtime s[74:75]")
    a("s_memtime s[76:77]")
    a("s_waitcnt lgkmcnt(0)")
    a(f"v_mov_b32 v{vt}, s76")
    a(f"v_mov_b32 v{vt+1}, {idx*4+128}")
    a(f"buffer_store_dword v{vt}, v{vt+1}, s[68:71], s72 offen")
    a("s_nop 1")
    a(f"v_mov_b32 v{vt}, s74")
    a(f"v_mov_b32 v{vt+1}, {idx*4}")
    a(f"buffer_store_dword v{vt}, v{vt+1}, s[68:71], s72 offen")
    a.label(lab)
def trace_mark(a):
    if STAMP: a("s_memtime s[98:99]")
def trace_commit(a):
    if not STAMP: return
    a("s_mov_b32 m0, s97"); a("v_writelane_b32 v249, s98, m0")
    a("s_add_u32 s97, s97, 1")
def trace_store(a):
    if not STAMP: return
    lab = a.uid("trs")
    a(f"s_cmp_lg_u32 s{sWV}, 0")
    a(f"s_cbranch_scc1 {lab}")
    a(f"s_add_u32 s68, s68, {MB}")
    a("s_addc_u32 s69, s69, 0")
    a(f"s_mov_b32 s70, {256*256}")
    a("s_lshl_b32 s72, s2, 8")
    a("v_lshlrev_b32 v250, 2, v1")
    a("buffer_store_dword v249, v250, s[68:71], s72 offen")
    a.label(lab)

HT = [0]
def htrace(a):
    if not STAMP or OPT.get("ht", "0") != "1": return
    i = HT[0]; HT[0] += 1
    if i >= 128: return
    a("s_memtime s[98:99]")
    a("s_waitcnt lgkmcnt(0)")
    a(f"v_writelane_b32 v{248 + (i >> 6)}, s98, {i & 63}")
def htrace_store(a):
    if not STAMP: return
    lab = a.uid("htrs")
    a(f"s_cmp_lg_u32 s{sWV}, 4")
    a(f"s_cbranch_scc1 {lab}")
    a(f"s_add_u32 s68, s68, {2*MB}")
    a("s_addc_u32 s69, s69, 0")
    a(f"s_mov_b32 s70, {256*512}")
    a("s_lshl_b32 s72, s2, 9")
    a("v_lshlrev_b32 v250, 2, v1")
    a("buffer_store_dword v248, v250, s[68:71], s72 offen")
    a("buffer_store_dword v249, v250, s[68:71], s72 offen offset:256")
    a.label(lab)

class VM:
    def __init__(self, a): self.a = a; self.ops = []
    def op(self, line, tag): self.a(line); self.ops.append(tag)
    def count(self, tag):
        n = 0
        for t in reversed(self.ops):
            if t == tag: return n
            n += 1
        raise KeyError(tag)
    def wait(self, tag, extra=""):
        n = min(self.count(tag), 63)
        self.a(f"s_waitcnt vmcnt({n}){extra}")

def multi_wave_sum(a, vs, ts):
    assert len(vs) >= 3
    for pat in ("quad_perm:[1,0,3,2]", "quad_perm:[2,3,0,1]", "row_half_mirror", "row_mirror"):
        for v in vs: a(f"v_add_f32_dpp v{v}, v{v}, v{v} {pat} row_mask:0xf bank_mask:0xf")
    for sw in ("v_permlane16_swap_b32", "v_permlane32_swap_b32"):
        for v, t in zip(vs, ts): a(f"v_mov_b32 v{t}, v{v}")
        for v, t in zip(vs, ts): a(f"{sw} v{t}, v{v}")
        for v, t in zip(vs, ts): a(f"v_add_f32 v{v}, v{t}, v{v}")

def interleave(a, mfmas, others, first=0, per=1):
    oi = 0
    for i, m in enumerate(mfmas):
        a(m)
        if i >= first:
            for _ in range(per):
                if oi < len(others): a(others[oi]); oi += 1
    while oi < len(others): a(others[oi]); oi += 1

def spin(a, name, load, check, first_loaded=False):
    L = a.uid(name + "_spin"); D = a.uid(name + "_done")
    a(f"s_mov_b32 s{sSPIN}, 0")
    if first_loaded:
        for l in check: a(l)
        a(f"s_cbranch_scc1 {D}")
    a.label(L)
    for l in load: a(l)
    a("s_waitcnt vmcnt(0)")
    for l in check: a(l)
    a(f"s_cbranch_scc1 {D}")
    a("s_sleep 1")
    a(f"s_add_u32 s{sSPIN}, s{sSPIN}, 1")
    a(f"s_cmp_lt_u32 s{sSPIN}, 0x8000")
    a(f"s_cbranch_scc1 {L}")
    a.label(D)

OOB = 17
def sel_voff(a, dst, src, turn):
    a(f"s_cmp_eq_u32 s{sLW}, {turn}")
    a("s_cselect_b64 s[62:63], -1, 0")
    a(f"v_cndmask_b32 v{dst}, v{OOB}, v{src}, s[62:63]")

def g1_bfrag_addrs(a, nhreg, d0, d1, d2, t0, t1):
    a(f"v_lshrrev_b32 v{t0}, 2, v1")
    a(f"v_mul_u32_u24 v{t0}, 448, v{t0}")
    a(f"v_and_b32 v{t1}, 3, v1")
    a(f"v_lshl_add_u32 v{t0}, v{t1}, 3, v{t0}")
    a(f"v_add_u32 v{t0}, 16384, v{t0}")
    a(f"v_bfe_u32 v{t1}, v1, 4, 1")
    a(f"v_lshlrev_b32 v{t1}, 5, v{t1}")
    a(f"s_mul_i32 s49, s{nhreg}, 192")
    a(f"v_add_u32 v{d0}, v{t0}, v{t1}")
    a(f"v_add_u32 v{d0}, s49, v{d0}")
    a(f"v_sub_u32 v{d1}, v{t0}, v{t1}")
    a(f"v_add_u32 v{d1}, s49, v{d1}")
    a(f"s_lshl_b32 s50, s{nhreg}, 5")
    a(f"v_xor_b32 v{d2}, s50, v{t1}")
    a(f"v_add_u32 v{d2}, v{t0}, v{d2}")
    a(f"v_add_u32 v{d2}, 384, v{d2}")


L_XN = 2 * G1_STAGE
ACC = 16
TC, TS, CC, SS, NSS = 128, 144, 160, 168, 176
PX, PF, PT, PM = 184, 192, 208, 224
DRE, DIM, FR, FT = 184, 200, 216, 232
sEP = 94
sMH, sNH = 100, 101
SLAB = 64 * 7168

L_K = L_XN + 18432
def consts(a):
    a("v_and_b32 v232, 31, v1")
    a("v_cvt_f32_u32 v232, v232")
    a(f"v_mul_f32 v232, {f2u(1.0/1024)}, v232")
    a("v_lshrrev_b32 v233, 5, v1")
    a("v_lshlrev_b32 v233, 2, v233")
    a(f"s_lshr_b32 s60, s{sWV}, 1")
    a("s_lshl_b32 s60, s60, 3")
    a(f"s_and_b32 s61, s{sWV}, 1")
    a("s_lshl_b32 s61, s61, 1")
    a("s_add_u32 s60, s60, s61")
    a("v_add_u32 v233, s60, v233")
    a("v_cvt_f32_u32 v233, v233")
    a("v_mul_f32 v233, v233, v232")
    a("v_add_f32 v232, v233, v232")
    a(f"v_cos_f32 v{TC}, v233"); a(f"v_cos_f32 v{TC+1}, v232")
    a(f"v_sin_f32 v{TS}, v233"); a(f"v_sin_f32 v{TS+1}, v232")
    a(f"v_mul_f32 v233, {f2u(32.0)}, v233"); a(f"v_mul_f32 v232, {f2u(32.0)}, v232")
    a("v_fract_f32 v233, v233"); a("v_fract_f32 v232, v232")
    a("v_cos_f32 v234, v233"); a("v_cos_f32 v235, v232")
    a("v_sin_f32 v236, v233"); a("v_sin_f32 v237, v232")
    a(f"s_lshr_b32 s60, s{sWV}, 1")
    a("s_lshl_b32 s60, s60, 10")
    a("s_lshl_b32 s61, s61, 2")
    a("s_add_u32 s60, s60, s61")
    a(f"s_add_u32 s60, s60, {L_K}")
    a("v_add_u32 v238, s60, v240")
    a(f"s_lshr_b32 s60, s{sWV}, 2")
    a("s_lshl_b32 s60, s60, 10")
    a(f"s_lshl_b32 s61, s{sLW}, 2")
    a("s_add_u32 s60, s60, s61")
    a(f"s_add_u32 s60, s60, {L_K + 8192}")
    a("v_add_u32 v239, s60, v240")
    a("v_cvt_pk_f16_f32 v234, v234, v235")
    a("v_cvt_pk_f16_f32 v235, v236, v237")
    a("v_cvt_pk_f16_f32 v236, -v236, -v237")
    a(f"ds_write_b64 v238, v[{TC}:{TC+1}]")
    a(f"ds_write_b64 v238, v[{TS}:{TS+1}] offset:4096")
    a("ds_write_b32 v239, v234")
    a("ds_write_b32 v239, v235 offset:2048")
    a("ds_write_b32 v239, v236 offset:4096")
    a("v_lshrrev_b32 v10, 2, v1"); a("v_mul_u32_u24 v10, 576, v10")
    a("v_and_b32 v11, 1, v1"); a("v_mul_u32_u24 v11, 288, v11")
    a("v_add_u32 v10, v10, v11"); a("v_bfe_u32 v11, v1, 1, 1"); a("v_lshl_add_u32 v10, v11, 3, v10")
    a(f"s_lshl_b32 s60, s{sWV}, 4"); a(f"s_add_u32 s60, s60, {L_XN}"); a("v_add_u32 v10, s60, v10")
    a("v_lshrrev_b32 v11, 2, v0"); a("v_mul_u32_u24 v11, 144, v11"); a("v_and_b32 v12, 3, v0")
    a("v_lshl_add_u32 v11, v12, 2, v11"); a(f"v_add_u32 v11, {L_XN}, v11")
    a("v_lshrrev_b32 v12, 4, v0"); a("v_lshlrev_b32 v12, 6, v12")
    a("v_bfe_u32 v13, v0, 1, 1"); a("v_lshl_add_u32 v12, v13, 5, v12")
    a("v_bfe_u32 v13, v0, 2, 2"); a("v_lshl_add_u32 v12, v13, 3, v12")
    a("v_and_b32 v13, 1, v0"); a("v_lshl_add_u32 v12, v13, 2, v12"); a(f"v_add_u32 v12, {L_U}, v12")
    a(f"s_lshl_b32 s60, s{sWV}, 3")
    a(f"s_add_u32 s60, s60, {L_ST8}")
    a(f"v_mov_b32 v{PM+6}, s60")
    a(f"v_mov_b32 v{PM+7}, 0x3f803f80")

def helper_only(a, fn):
    if fn is None: return
    lab = a.uid("ho")
    a(f"s_cmp_lt_u32 s{sWV}, 4")
    a(f"s_cbranch_scc1 {lab}")
    fn()
    a.label(lab)

def startup(a, ins):
    m, s, t0, t1 = PM, PM + 1, PM + 2, PM + 3
    for q in range(8):
        a(f"v_dot2_f32_bf16 v{m}, v{PX+q}, v{PM+7}, {'0' if q == 0 else 'v%d' % m}")
        a(f"v_dot2_f32_bf16 v{s}, v{PX+q}, v{PX+q}, {'0' if q == 0 else 'v%d' % s}")
    fill = []
    for q in range(8):
        fill += [f"v_lshlrev_b32 v{PF+2*q}, 16, v{PX+q}", f"v_and_b32 v{PF+1+2*q}, 0xffff0000, v{PX+q}"]
    for _ in range(3): a(fill.pop(0))
    for pat in ("quad_perm:[1,0,3,2]", "quad_perm:[2,3,0,1]", "row_half_mirror", "row_mirror"):
        for v in (m, s): a(f"v_add_f32_dpp v{v}, v{v}, v{v} {pat} row_mask:0xf bank_mask:0xf")
        a(fill.pop(0))
    for sw in ("v_permlane16_swap_b32", "v_permlane32_swap_b32"):
        a(f"v_mov_b32 v{t0}, v{m}"); a(f"v_mov_b32 v{t1}, v{s}")
        a(fill.pop(0)); a(fill.pop(0))
        a(f"{sw} v{t0}, v{m}"); a(f"{sw} v{t1}, v{s}")
        a(f"v_add_f32 v{m}, v{t0}, v{m}"); a(f"v_add_f32 v{s}, v{t1}, v{s}")
    a(f"v_mul_f32 v{m}, {f2u(1.0/1024)}, v{m}")
    a(f"v_mul_f32 v{s}, {f2u(1.0/1024)}, v{s}")
    a(f"v_fma_f32 v{s}, -v{m}, v{m}, v{s}")
    a(f"v_max_f32 v{s}, 0, v{s}")
    a(f"v_cvt_pk_bf16_f32 v{s}, v{m}, v{s}")
    a(f"v_lshlrev_b32 v{m}, 16, v{s}")
    a(f"v_and_b32 v{s}, 0xffff0000, v{s}")
    a(f"v_add_f32 v{s}, {f2u(1e-5)}, v{s}")
    a(f"v_cvt_pk_bf16_f32 v{s}, v{s}, v{s}")
    a(f"v_and_b32 v{s}, 0xffff0000, v{s}")
    a(f"v_sqrt_f32 v{s}, v{s}")
    a(fill.pop(0))
    a(f"v_cvt_pk_bf16_f32 v{s}, v{s}, v{s}")
    a(f"v_and_b32 v{s}, 0xffff0000, v{s}")
    a(f"v_rcp_f32 v{t0}, v{s}")
    while fill: a(fill.pop(0))
    a(f"v_mul_f32_e64 v{t1}, -v{m}, v{t0}")
    a(f"ds_write_b64 v{PM+6}, v[{m}:{s}]")
    for q in range(8):
        P = f"v[{PF+2*q}:{PF+2*q+1}]"
        a(f"v_pk_fma_f32 {P}, {P}, v[{t0}:{t1}], v[{t0}:{t1}] op_sel:[0,0,1] op_sel_hi:[1,0,1]")
    for q in range(8): a(f"v_cvt_pk_bf16_f32 v{PX+q}, v{PF+2*q}, v{PF+2*q+1}")
    a(f"ds_write_b64 v10, v[{PX}:{PX+1}]")
    a(f"ds_write_b64 v10, v[{PX+2}:{PX+3}] offset:144")
    a(f"ds_write_b64 v10, v[{PX+4}:{PX+5}] offset:9216")
    a(f"ds_write_b64 v10, v[{PX+6}:{PX+7}] offset:9360")
    helper_only(a, ins["ln"])
    a(f"s_mov_b32 s60, {f2u(0.7071067811865476)}")
    a("s_mov_b32 s61, s60")
    a("s_waitcnt lgkmcnt(0)")
    stamp(a, 16); stamp(a, 20, wave=4)
    a("s_barrier")
    for s1 in range(8): a(f"ds_read_b32 v{PX+s1}, v11 offset:{16*s1}")
    a("s_waitcnt lgkmcnt(0)")
    for q in range(8):
        a(f"v_lshlrev_b32 v{PF+2*q}, 16, v{PX+q}")
        a(f"v_and_b32 v{PF+1+2*q}, 0xffff0000, v{PX+q}")
    X = lambda s: f"v[{PF+2*s}:{PF+1+2*s}]"
    T = lambda i: f"v[{PT+2*i}:{PT+1+2*i}]"
    NEG = "neg_lo:[0,1] neg_hi:[0,1]"
    for l in [f"v_pk_add_f32 {T(0)}, {X(0)}, {X(4)}", f"v_pk_add_f32 {T(1)}, {X(0)}, {X(4)} {NEG}",
              f"v_pk_add_f32 {T(2)}, {X(2)}, {X(6)}", f"v_pk_add_f32 {T(3)}, {X(2)}, {X(6)} {NEG}",
              f"v_pk_add_f32 {T(4)}, {X(1)}, {X(5)}", f"v_pk_add_f32 {T(5)}, {X(1)}, {X(5)} {NEG}",
              f"v_pk_add_f32 {T(6)}, {X(3)}, {X(7)}", f"v_pk_add_f32 {T(7)}, {X(3)}, {X(7)} {NEG}",
              f"v_pk_add_f32 {X(0)}, {T(0)}, {T(2)}", f"v_pk_add_f32 {X(4)}, {T(0)}, {T(2)} {NEG}",
              f"v_pk_add_f32 {X(1)}, {T(4)}, {T(6)}", f"v_pk_add_f32 {X(5)}, {T(6)}, {T(4)} {NEG}",
              f"v_pk_add_f32 {X(2)}, {T(5)}, {T(7)} {NEG}", f"v_pk_add_f32 {X(3)}, {T(5)}, {T(7)}",
              f"v_pk_add_f32 {T(0)}, {X(0)}, {X(1)}", f"v_pk_add_f32 {T(2)}, {X(0)}, {X(1)} {NEG}",
              f"v_pk_fma_f32 {T(4)}, {X(2)}, s[60:61], {T(1)}",
              f"v_pk_fma_f32 {T(5)}, {X(3)}, s[60:61], {T(3)} neg_lo:[1,0,1] neg_hi:[1,0,1]",
              f"v_pk_fma_f32 {T(6)}, {X(2)}, s[60:61], {T(1)} neg_lo:[1,0,0] neg_hi:[1,0,0]",
              f"v_pk_fma_f32 {T(7)}, {X(3)}, s[60:61], {T(3)} neg_lo:[1,0,0] neg_hi:[1,0,0]"]: a(l)
    srcs = [PT+0, PT+4, PT+8, PT+10, PF+8, PF+10, PT+12, PT+14]
    for k, sx in enumerate(srcs): a(f"v_cvt_pk_f16_f32 v{PX+k}, v{sx}, v{sx+1}")
    for k in range(8): a(f"ds_write_b32 v12, v{PX+k} offset:{2048*k}")
    helper_only(a, ins["r8"])

def fft(a):
    URE, UIM = FR, FR + 8
    for part in range(2):
        for kk in range(2):
            for hh in range(2):
                d = URE + part * 8 + kk * 4 + hh * 2
                a(f"ds_read_b64_tr_b16 v[{d}:{d+1}], v13 offset:{part*2048 + kk*1024 + hh*512}")
    a("s_waitcnt lgkmcnt(0)")
    for i in range(8):
        a(f"v_and_b32 v{UIM+i}, s56, v{UIM+i}")
        a(f"v_xor_b32 v{UIM+i}, s57, v{UIM+i}")
    Cc = lambda kk: f"v[{CC+4*kk}:{CC+3+4*kk}]"
    Ss = lambda kk: f"v[{SS+4*kk}:{SS+3+4*kk}]"
    NS = lambda kk: f"v[{NSS+4*kk}:{NSS+3+4*kk}]"
    Dre = f"v[{DRE}:{DRE+15}]"; Dim = f"v[{DIM}:{DIM+15}]"
    def cplx():
        R = lambda kk: f"v[{URE+4*kk}:{URE+3+4*kk}]"
        I = lambda kk: f"v[{UIM+4*kk}:{UIM+3+4*kk}]"
        M = "v_mfma_f32_32x32x16_f16"
        a(f"{M} {Dre}, {R(0)}, {Cc(0)}, 0")
        a(f"{M} {Dim}, {R(0)}, {NS(0)}, 0")
        a(f"{M} {Dre}, {R(1)}, {Cc(1)}, {Dre}")
        a(f"{M} {Dim}, {R(1)}, {NS(1)}, {Dim}")
        a(f"{M} {Dre}, {I(0)}, {Ss(0)}, {Dre}")
        a(f"{M} {Dim}, {I(0)}, {Cc(0)}, {Dim}")
        a(f"{M} {Dre}, {I(1)}, {Ss(1)}, {Dre}")
        a(f"{M} {Dim}, {I(1)}, {Cc(1)}, {Dim}")
    cplx()
    a.nop(12)
    for r in range(0, 16, 2):
        P = lambda bb: f"v[{bb+r}:{bb+r+1}]"
        t = FT + (r & 2) * 2
        a(f"v_pk_mul_f32 v[{t}:{t+1}], {P(DRE)}, {P(TC)}")
        a(f"v_pk_mul_f32 v[{t+2}:{t+3}], {P(DIM)}, {P(TC)}")
        a(f"v_pk_fma_f32 v[{t}:{t+1}], {P(DIM)}, {P(TS)}, v[{t}:{t+1}]")
        a(f"v_pk_fma_f32 v[{t+2}:{t+3}], {P(DRE)}, {P(TS)}, v[{t+2}:{t+3}] neg_lo:[1,0,0] neg_hi:[1,0,0]")
        a(f"v_cvt_pk_f16_f32 v{URE+(r>>1)}, v{t}, v{t+1}")
        a(f"v_cvt_pk_f16_f32 v{UIM+(r>>1)}, v{t+2}, v{t+3}")
    a.nop(2)
    cplx()
    a.nop(12)
    O = FR
    for r in range(0, 16, 2):
        a(f"v_cvt_pk_bf16_f32 v{O+(r>>1)}, v{DRE+r}, v{DRE+1+r}")
        a(f"v_cvt_pk_bf16_f32 v{O+8+(r>>1)}, -v{DIM+r}, -v{DIM+1+r}")
    a.nop(2)
    for base in (O, O + 4, O + 8, O + 12):
        a(f"v_permlane32_swap_b32 v{base}, v{base+2}")
        a(f"v_permlane32_swap_b32 v{base+1}, v{base+3}")
    a.nop(1)
    for base in (O, O + 8):
        for i in range(4): a(f"v_permlane16_swap_b32 v{base+i}, v{base+4+i}")

def gen(a):
    a.label(NAME + "_kernel")
    a("s_cmp_ge_u32 s2, 256")
    a("s_cbranch_scc1 L_end")
    a("s_load_dwordx8 s[48:55], s[0:1], 0")
    if CPF:
        a("s_getpc_b64 s[92:93]")
        a.label("L_pc0")
        a(f"s_sub_u32 s92, s92, L_pc0-{NAME}_kernel")
        a("s_subb_u32 s93, s93, 0")
        a("s_lshr_b32 s94, s2, 3")
        a("s_lshl_b32 s94, s94, 10")
        a("v_lshlrev_b32 v10, 7, v0")
        a("v_add_u32 v10, s94, v10")
        a(f"v_min_u32 v10, L_end-{NAME}_kernel, v10")
        a("v_cmp_gt_u32 vcc, 8, v0")
        a("s_and_saveexec_b64 s[94:95], vcc")
        a("s_cbranch_execz L_noct")
        a("global_load_dword v243, v10, s[92:93]")
        a.label("L_noct")
        a("s_mov_b64 exec, -1")
    a("s_load_dwordx8 s[56:63], s[0:1], 48")
    a("s_load_dwordx2 s[78:79], s[0:1], 80")
    a("s_memrealtime s[98:99]")
    a("v_and_b32 v1, 63, v0")
    a("v_lshrrev_b32 v2, 6, v0")
    a("v_lshlrev_b32 v19, 4, v1")
    a(f"v_readfirstlane_b32 s{sWV}, v2")
    a(f"s_and_b32 s{sTILE}, s2, 3")
    a(f"s_lshl_b32 s{sTILE}, s{sTILE}, 2")
    a("s_bfe_u32 s80, s2, 0x20003")
    a(f"s_add_u32 s{sTILE}, s{sTILE}, s80")
    a(f"s_bfe_u32 s{sKH}, s2, 0x10002")
    a(f"s_lshr_b32 s{sC8}, s2, 5")
    a(f"s_lshl_b32 s{sCT}, s{sKH}, 3")
    a(f"s_add_u32 s{sCT}, s{sCT}, s{sC8}")
    a(f"s_lshr_b32 s{sT1}, s{sTILE}, 1")
    a(f"s_and_b32 s{sJH}, s{sTILE}, 1")
    a(f"s_and_b32 s{sLW}, s{sWV}, 3")
    a(f"s_lshl_b32 s80, s{sWV}, 8")
    a("s_add_u32 s80, s80, s2")
    a("s_lshl_b32 s80, s80, 11")
    a("s_waitcnt lgkmcnt(0)")
    srd(a, S_X, 48, 49, 4 * MB)
    a(f"buffer_load_dwordx4 v[{PX}:{PX+3}], v19, {SR(S_X)}, s80 offen")
    a(f"buffer_load_dwordx4 v[{PX+4}:{PX+7}], v19, {SR(S_X)}, s80 offen offset:1024")
    srd(a, S_W1, 56, 57, 1024 * 3584 * 2)
    a("v_mov_b32 v240, v19")
    srd(a, S_W2, 58, 59, 1024 * 3584 * 2)
    srd(a, S_OUT, 60, 61, 4 * MB)
    srd(a, S_CR, 50, 51, 8 * MB)
    srd(a, S_CI, 52, 53, 8 * MB)
    srd(a, S_HF, 78, 79, 16 * MB, HF_OFF)
    srd(a, S_AP, 78, 79, 8 * MB, AP_OFF)
    srd(a, S_MISC, 78, 79, 16 * MB, MISC_OFF)
    srd(a, S_DBG, 62, 63, 256)
    if STAMP:
        srd(a, 68, 78, 79, 256 * NST * 4, 200 * MB)
        a(f"s_mul_i32 s72, s2, {NST*4}")
    a(f"s_lshl_b32 s48, s{sTILE}, 1")
    a(f"s_add_u32 s48, s48, s{sKH}")
    a("s_lshl_b32 s48, s48, 8")
    a(f"s_add_u32 s78, s48, {HFLAG_G}")
    a(f"s_lshl_b32 s48, s{sC8}, 5")
    a("s_add_u32 s79, s78, s48")
    a(f"s_lshl_b32 s48, s{sWV}, 2")
    a("s_add_u32 s79, s79, s48")
    a(f"s_lshr_b32 s{sMH}, s{sLW}, 1")
    a(f"s_and_b32 s{sNH}, s{sLW}, 1")
    a("v_mov_b32 v242, v19")
    a("v_mov_b32 v58, 0")
    stamp(a, 0)
    a(f"s_cmp_ge_u32 s{sWV}, 4")
    a("s_cbranch_scc1 L_hpre")
    consumer_pre(a)
    a("s_branch L_join")
    a.label("L_hpre")
    H = Helper(a)
    H.pre()
    a.label("L_join")
    consts(a)
    a(f"s_cmp_ge_u32 s{sWV}, 4")
    a("s_cbranch_scc1 L_hw")
    a("s_waitcnt vmcnt(1)")
    a("s_branch L_hw2")
    a.label("L_hw")
    H.after_x()
    a.label("L_hw2")
    stamp(a, 11); stamp(a, 19, wave=4)
    startup(a, H.inserts())
    a(f"s_cmp_ge_u32 s{sWV}, 4")
    a("s_cbranch_scc0 L_consumer")
    H.main()
    shared_epilogue(a)
    gen_consumer(a)
    a.label("L_end")
    a("s_endpgm")

CPF = OPT.get("cpf", "1") == "1"
def code_touch(a, wave, vt=10, vd=243):
    if not CPF: return None
    lab = a.uid("ct")
    a(f"s_cmp_lg_u32 s{sLW}, {wave}")
    a(f"s_cbranch_scc1 {lab}")
    a("s_getpc_b64 s[60:61]")
    here = a.uid("pc")
    a.label(here)
    a(f"s_sub_u32 s60, s60, {here}-{NAME}_kernel")
    a("s_subb_u32 s61, s61, 0")
    a("s_lshr_b32 s62, s2, 3")
    a("s_lshl_b32 s62, s62, 10")
    a(f"v_lshlrev_b32 v{vt}, 7, v1")
    a(f"v_add_u32 v{vt}, s62, v{vt}")
    a(f"v_min_u32 v{vt}, L_end-{NAME}_kernel, v{vt}")
    a("s_mov_b64 exec, 0xff")
    a(f"global_load_dword v{vd}, v{vt}, s[60:61]")
    a("s_mov_b64 exec, -1")
    a.label(lab)

def w1_touch_voff(a, d):
    a("v_mul_u32_u24 v10, 4682, v1")
    a("v_lshrrev_b32 v10, 16, v10")
    a("v_mul_u32_u24 v11, 14, v10")
    a("v_sub_u32 v11, v1, v11")
    a("v_lshrrev_b32 v12, 1, v10")
    a("v_and_b32 v10, 1, v10")
    a("v_lshl_add_u32 v10, v10, 3, v12")
    a(f"s_mov_b32 s56, {SLAB}")
    a("v_mul_lo_u32 v10, v10, s56")
    a(f"v_lshl_add_u32 v{d}, v11, 7, v10")
    a("s_mul_i32 s56, s2, 1792")
    a(f"v_add_u32 v{d}, s56, v{d}")
    a("v_cmp_gt_u32 vcc, 56, v1")
    a("v_bfrev_b32 v10, 1")
    a("s_nop 0")
    a(f"v_cndmask_b32 v{d}, v10, v{d}, vcc")

class Helper:
    def __init__(self, a):
        self.a = a
        self.vm = VM(a)
        self.vm.ops = ["x", "x"] + (["s"] * 0)
    def issueA(self, n, qs=range(4)):
        a, vm = self.a, self.vm
        slot = (n % 3) * G1_STAGE
        for q in qs:
            a(f"s_add_u32 m0, s96, {slot + q*1024}")
            a(f"s_add_u32 s55, s{84 if n < 8 else 85}, {q*16384 + n*128}")
            vm.op(f"buffer_load_dwordx4 v2, {SR(S_X)}, s55 offen lds", f"st{n}")
    def issueB(self, n, qs=range(8)):
        a, vm = self.a, self.vm
        slot = (n % 3) * G1_STAGE
        a("s_mov_b32 exec_hi, 0xffffff")
        for q in qs:
            roff = (8 * (q >> 1) + 2 * (q & 1)) * 7168
            a(f"s_add_u32 m0, s54, {slot + q*896}")
            if n < 8: a(f"s_add_u32 s55, s83, {n*SLAB + roff}")
            else: a(f"s_sub_u32 s55, {n*SLAB + roff}, s83")
            vm.op(f"buffer_load_dwordx4 v{3 + ((q >> 1) & 1)}, {SR(S_W1)}, s55 offen {W1F} lds", f"st{n}")
        a("s_mov_b64 exec, -1")
    def pre(self):
        a, vm = self.a, self.vm
        a("v_lshrrev_b32 v10, 3, v1")
        a("v_and_b32 v11, 7, v1")
        a("v_xor_b32 v11, v11, v10")
        a("v_lshlrev_b32 v2, 19, v10")
        a("v_lshl_add_u32 v2, v11, 4, v2")
        a(f"s_lshl_b32 s48, s{sJH}, 4")
        a(f"s_lshl_b32 s49, s{sLW}, 2")
        a("s_add_u32 s48, s48, s49")
        a("s_lshl_b32 s48, s48, 3")
        a(f"s_add_u32 s48, s48, s{sT1}")
        a("s_lshl_b32 s48, s48, 11")
        a(f"s_lshr_b32 s82, s{sTILE}, 3")
        a(f"s_mul_i32 s83, s82, {8*SLAB}")
        a("s_lshl_b32 s82, s82, 10")
        a("s_add_u32 s84, s48, s82")
        a("s_sub_u32 s85, s48, s82")
        a(f"s_lshl_b32 s96, s{sLW}, 12")
        if TV == 'a': self.issueA(0, range(2))
        a(f"s_lshl_b32 s48, s2, 3")
        a(f"s_add_u32 s48, s48, s{sLW}")
        a("s_cmp_lg_u32 s48, 1")
        a("s_cbranch_scc1 L_noepoch")
        a("v_mov_b32 v10, 0")
        a("s_or_b32 s48, s98, 1")
        a("v_mov_b32 v11, s48")
        a("s_mov_b64 exec, 1")
        a(f"buffer_store_dword v11, v10, {SR(S_DBG)}, 0 offen sc1")
        a("s_mov_b64 exec, -1")
        a.label("L_noepoch")
        a(f"s_lshr_b32 s49, s{sLW}, 1")
        a("s_lshl_b32 s49, s49, 5")
        a(f"s_and_b32 s50, s{sLW}, 1")
        a("s_lshl_b32 s50, s50, 2")
        a("s_add_u32 s49, s49, s50")
        a("s_mul_i32 s49, s49, 7168")
        a(f"s_mul_i32 s50, s{sCT}, 448")
        a("s_add_u32 s49, s49, s50")
        a("v_cmp_lt_u32 vcc, 27, v1")
        a("v_subrev_u32 v10, 28, v1")
        a(f"v_mov_b32 v11, 7168")
        a("v_cndmask_b32 v10, v1, v10, vcc")
        a("v_cndmask_b32 v11, 0, v11, vcc")
        a("v_add_u32 v11, s49, v11")
        a("v_lshl_add_u32 v3, v10, 4, v11")
        a("v_xor_b32 v10, 2, v10")
        a("v_lshl_add_u32 v4, v10, 4, v11")
        a(f"s_mul_i32 s54, s{sLW}, 7168")
        a("s_add_u32 s54, s54, 16384")
        a(f"s_and_b32 s87, s{sTILE}, 7")
    def late_setup(self):
        a = self.a
        w1_touch_voff(a, 14)
        a(f"v_bfrev_b32 v{OOB}, 1")
        a("v_lshlrev_b32 v15, 7, v1")
        a("v_cmp_gt_u32 vcc, 56, v1")
        a(f"s_and_b32 s59, s{sLW}, 1")
        a("s_mul_i32 s80, s2, 28672")
        a(f"v_cndmask_b32 v15, v{OOB}, v15, vcc")
        g1_bfrag_addrs(a, 59, 36, 37, 38, 10, 11)
        a(f"s_lshr_b32 s60, s{sLW}, 1")
        a(f"s_mul_i32 s61, s60, {32*448}")
        for r in (36, 37, 38): a(f"v_add_u32 v{r}, s61, v{r}")
        a("v_lshrrev_b32 v10, 4, v1")
        a("v_lshlrev_b32 v10, 4, v10")
        a("s_mul_i32 s60, s60, 896")
        a(f"s_add_u32 s60, s60, {L_CS4}")
        a("s_mul_i32 s61, s59, 384")
        a("s_add_u32 s61, s61, s60")
        a("v_add_u32 v39, s61, v10")
        a("s_lshl_b32 s61, s59, 6")
        a("s_add_u32 s61, s61, 768")
        a("s_add_u32 s61, s61, s60")
        a("v_add_u32 v40, s61, v10")
        a(f"s_lshl_b32 s86, s{sCT}, 4")
        a(f"s_add_u32 s86, s86, s{sTILE}")
        a("s_mul_i32 s86, s86, 896")
        a(f"s_add_u32 s86, s86, {CS_G}")
        a(f"s_and_b32 s87, s{sTILE}, 7")
        for i in range(4): a(f"v_mov_b32 v{44+i}, 0x3f803f80")
        a("s_and_b32 s60, s2, 7")
        a("s_lshl_b32 s60, s60, 1")
        a("s_lshr_b32 s61, s2, 7")
        a("s_add_u32 s60, s60, s61")
        a("s_bfe_u32 s61, s2, 0x40003")
        a("s_lshl_b32 s90, s60, 10")
        a("s_lshl_b32 s91, s61, 6")
        a("s_add_u32 s90, s90, s91")
        a("s_lshl_b32 s95, s60, 20")
        a("s_lshr_b32 s62, s61, 1")
        a("s_lshl_b32 s62, s62, 10")
        a("s_add_u32 s95, s95, s62")
        a("s_and_b32 s62, s61, 1")
        a("s_lshl_b32 s62, s62, 7")
        a("s_add_u32 s95, s95, s62")
        a(f"s_lshl_b32 s62, s{sLW}, 14")
        a("s_add_u32 s95, s95, s62")
        a(f"s_add_u32 s95, s95, {112*8192}")
        a("s_lshl_b32 s91, s60, 7")
        a("s_lshl_b32 s61, s61, 2")
        a("s_add_u32 s91, s91, s61")
        a(f"s_add_u32 s91, s91, {RS_G}")
        a(f"s_lshl_b32 s92, s{sCT}, 7")
        a(f"s_lshl_b32 s61, s{sTILE}, 2")
        a("s_add_u32 s92, s92, s61")
        a(f"s_add_u32 s92, s92, {RC_G}")
        a("s_lshl_b32 s93, s2, 2")
        a(f"s_add_u32 s93, s93, {QF_G}")
        a("v_cmp_gt_u32 vcc, 16, v1")
        a(f"s_lshl_b32 s60, s{sTILE}, 7")
        a(f"s_add_u32 s60, s60, {RS_G}")
        a(f"s_lshl_b32 s61, s{sCT}, 7")
        a(f"s_add_u32 s61, s61, {RC_G}")
        a("v_mov_b32 v62, s60")
        a("v_mov_b32 v63, s61")
        a("v_and_b32 v10, 15, v1")
        a("v_cndmask_b32 v62, v63, v62, vcc")
        a("v_lshl_add_u32 v62, v10, 2, v62")
        a("v_lshlrev_b32 v41, 6, v10")
        a("v_bfe_u32 v10, v1, 4, 1")
        a("v_lshl_add_u32 v41, v10, 5, v41")
        a("v_lshrrev_b32 v11, 5, v1")
        a("v_lshl_add_u32 v41, v11, 4, v41")
        a("v_and_b32 v12, 7, v1")
        a("v_lshlrev_b32 v42, 20, v12")
        a("v_lshl_add_u32 v42, v11, 6, v42")
        a("v_bfe_u32 v10, v1, 3, 2")
        a("v_lshl_add_u32 v42, v10, 3, v42")
        a("v_lshlrev_b32 v43, 4, v12")
        a("v_lshl_add_u32 v43, v11, 13, v43")
        a("v_lshl_add_u32 v43, v10, 8, v43")
        a(f"s_lshl_b32 s89, s{sLW}, 20")
        a("s_lshl_b32 s60, s2, 11")
        a("s_add_u32 s89, s89, s60")
        a(f"s_add_u32 s88, s89, {4*MB}")
    def after_x(self):
        self.vm.wait("x")
        stamp(self.a, 23, wave=4)
        self.issueA(0, range(2 if TV == 'a' else 0, 4))
        self.issueB(0, range(4 if TV == 'a' else 3))
    def inserts(self):
        vm = self.vm; a = self.a
        def r8():
            a(f"v_add_u32 v11, {L_K}, v240")
            for q in range(14): a(f"ds_read_b128 v[{TC+4*q}:{TC+4*q+3}], v11 offset:{q*1024}")
            self.issueA(1); self.issueB(1)
            vm.op(f"buffer_load_dword v59, v58, {SR(S_DBG)}, 0 offen sc1", "ep")
        return {"ln": lambda: self.issueB(0, range(4 if TV == 'a' else 3, 8)), "r8": r8}
    def main(self):
        a, vm = self.a, self.vm
        def job_colsum(n):
            lab = a.uid("cs")
            a(f"s_cmp_lg_u32 s87, {n}")
            a(f"s_cbranch_scc1 {lab}")
            slot = (n % 3) * G1_STAGE
            for r in range(3): a(f"v_add_u32 v{10+r}, {slot}, v{36+r}")
            for i in range(7):
                for hh in range(2):
                    d = 64 + 4 * i + 2 * hh
                    if i < 6: a(f"ds_read_b64_tr_b16 v[{d}:{d+1}], v{10 + (i & 1)} offset:{16*hh*448 + i*32}")
                    else: a(f"ds_read_b64_tr_b16 v[{d}:{d+1}], v12 offset:{16*hh*448}")
            a("s_waitcnt lgkmcnt(0)")
            for i in range(7):
                a(f"v_mfma_f32_16x16x32_bf16 v[{92+4*i}:{95+4*i}], v[{64+4*i}:{67+4*i}], v[44:47], 0")
            a("s_mov_b32 exec_lo, 0x00010001")
            a("s_mov_b32 exec_hi, 0x00010001")
            a.nop(6)
            for i in range(6): a(f"ds_write_b128 v39, v[{92+4*i}:{95+4*i}] offset:{64*i}")
            a("ds_write_b128 v40, v[116:119]")
            a("s_mov_b64 exec, -1")
            a.label(lab)
        def job_csstore():
            a(f"v_add_u32 v11, {L_CS4}, v19")
            a("ds_read_b128 v[28:31], v11")
            a("ds_read_b128 v[32:35], v11 offset:896")
            sel_voff(a, 18, 19, 1)
            a("s_waitcnt lgkmcnt(0)")
            a("v_pk_add_f32 v[28:29], v[28:29], v[32:33]")
            a("v_pk_add_f32 v[30:31], v[30:31], v[34:35]")
            a("s_mov_b32 exec_hi, 0xffffff")
            vm.op(f"buffer_store_dwordx4 v[28:31], v18, {SR(S_MISC)}, s86 offen sc1", "pub")
            a("s_mov_b64 exec, -1")
        def job_spf(srdb, sreg, k0, k1):
            for k in range(k0, k1): a(f"s_buffer_load_dword s100, {SR(srdb)}, s{sreg} offset:{k*128}")
        def job_pub0():
            a(f"v_add_u32 v20, {L_ST8}, v19")
            a("ds_read_b128 v[48:51], v20")
            a("s_waitcnt lgkmcnt(0)")
        def job_statstore():
            sel_voff(a, 18, 19, 0)
            a("s_mov_b64 exec, 15")
            vm.op(f"buffer_store_dwordx4 v[48:51], v18, {SR(S_MISC)}, s90 offen offset:{STAT_G} sc1", "pub")
            a("s_mov_b64 exec, -1")
        def job_epoch():
            vm.wait("ep")
            spin(a, "ep", [f"buffer_load_dword v59, v58, {SR(S_DBG)}, 0 offen sc1"],
                 [f"v_readfirstlane_b32 s{sEP}, v59", "s_nop 0", f"s_cmp_lg_u32 s{sEP}, 0"], first_loaded=True)
            a(f"v_mov_b32 v60, s{sEP}")
        def job_ap(k):
            reg = (FR if k < 4 else 184) + 4 * (k & 3)
            so = 88 if k < 4 else 89
            if (k & 3) == 2: a(f"s_add_u32 s{so}, s{so}, {256*2048}")
            vm.op(f"buffer_store_dwordx4 v[{reg}:{reg+3}], v41, {SR(S_AP)}, s{so} offen offset:{(k & 1)*1024} sc1", "pub")
        def job_cload():
            a(f"s_lshl_b32 s60, s{sLW}, 7")
            a("s_lshl_b32 s61, s2, 12")
            a("s_add_u32 s60, s60, s61")
            for i, srdc in enumerate((S_CR, S_CI)):
                vm.op(f"buffer_load_dwordx2 v[{20+4*i}:{21+4*i}], v42, {SR(srdc)}, s60 offen nt", "cl")
                vm.op(f"buffer_load_dwordx2 v[{22+4*i}:{23+4*i}], v42, {SR(srdc)}, s60 offen offset:32 nt", "cl")
        def job_cstore():
            vm.wait("cl")
            vm.op(f"buffer_store_dwordx4 v[20:23], v43, {SR(S_HF)}, s95 offen sc1", "pub")
            a("s_add_u32 s95, s95, 65536")
            vm.op(f"buffer_store_dwordx4 v[24:27], v43, {SR(S_HF)}, s95 offen sc1", "pub")
        def job_ready():
            li = lambda t: max(i for i, x in enumerate(vm.ops) if x == t)
            assert li("pub") < li(f"st{EV[2]}"), "pub not covered"
            sel_voff(a, 18, 58, 0)
            a("s_mov_b64 exec, 1")
            for sr_ in (91, 92):
                vm.op(f"buffer_store_dword v60, v18, {SR(S_MISC)}, s{sr_} offen sc1", "rdy")
            a("s_mov_b64 exec, -1")
        CHK_LD = [f"buffer_load_dword v63, v62, {SR(S_MISC)}, 0 offen sc1"]
        CHK = [f"v_cmp_ne_u32 vcc, s{sEP}, v63", "s_nop 1", "s_cmp_eq_u64 vcc, 0"]
        QLD = [f"buffer_load_dwordx4 v[52:55], v19, {SR(S_MISC)}, s97 offen sc1"]
        QCHK = [f"v_xor_b32 v{52+i}, s{sEP}, v{52+i}" for i in range(4)] + \
              ["v_or_b32 v52, v52, v53", "v_or3_b32 v52, v52, v54, v55", "v_cmp_ne_u32 vcc, 0, v52", "s_nop 1", "s_cmp_eq_u64 vcc, 0"]
        def job_pload():
            for l in CHK_LD: vm.op(l, "pl")
        def job_gather():
            vm.wait("pl")
            spin(a, "pp", CHK_LD, CHK, first_loaded=True)
            a(f"s_lshl_b32 s60, s{sTILE}, 10")
            a(f"s_lshl_b32 s61, s{sLW}, 8")
            a("s_add_u32 s60, s60, s61")
            a(f"s_add_u32 m0, s61, {L_STAT}")
            a("v_lshlrev_b32 v10, 2, v1")
            vm.op(f"buffer_load_dword v10, {SR(S_MISC)}, s60 offen sc1 lds", "g")
            a("v_lshrrev_b32 v10, 4, v1")
            a("v_mul_u32_u24 v10, 3584, v10")
            a("v_and_b32 v11, 15, v1")
            a("v_lshl_add_u32 v10, v11, 4, v10")
            a(f"s_mul_i32 s60, s{sCT}, {16*896}")
            a(f"s_mul_i32 s61, s{sLW}, 224")
            a("s_add_u32 s60, s60, s61")
            a(f"s_add_u32 s60, s60, {CS_G}")
            for p in range(4):
                vm.op(f"buffer_load_dwordx4 v[{20+4*p}:{23+4*p}], v10, {SR(S_MISC)}, s60 offen offset:{896*p} sc1", "g")
            a(f"s_add_u32 s61, s61, {L_CSUM}")
            a("v_lshlrev_b32 v11, 4, v11")
            a("v_add_u32 v11, s61, v11")
        def job_gather2():
            vm.wait("g")
            for p in range(1, 4):
                a(f"v_pk_add_f32 v[20:21], v[20:21], v[{20+4*p}:{21+4*p}]")
                a(f"v_pk_add_f32 v[22:23], v[22:23], v[{22+4*p}:{23+4*p}]")
            for sw in ("v_permlane16_swap_b32", "v_permlane32_swap_b32"):
                for i in range(4): a(f"v_mov_b32 v{24+i}, v{20+i}")
                for i in range(4): a(f"{sw} v{24+i}, v{20+i}")
                a("v_pk_add_f32 v[20:21], v[20:21], v[24:25]")
                a("v_pk_add_f32 v[22:23], v[22:23], v[26:27]")
            a(f"v_mov_b32 v57, {L_ST8+64}")
            a("s_mov_b64 exec, 0x3fff")
            a("ds_write_b128 v11, v[20:23]")
            a("ds_write_b32 v57, v60")
            a("s_mov_b64 exec, -1")
        EV = [int(x) for x in OPT.get("ev", "4,6,11").split(",")]
        CATCH = int(OPT.get("catch", "15"))
        def w2touch(k):
            sel_voff(a, 18, 15, k)
            a(f"s_add_u32 s55, s80, {k*7168}")
            vm.op(f"buffer_load_dword v16, v18, {SR(S_W2)}, s55 offen", "touch")
        before = {0: [job_pub0], 13: [job_pload], 14: [job_gather]}
        after = {2: [job_epoch], 15: [job_gather2]}
        after.setdefault(EV[0], []).extend([lambda: w2touch(0), lambda: w2touch(1), job_cload])
        after.setdefault(8, []).extend([job_csstore, job_statstore, job_cstore])
        after.setdefault(EV[1], []).extend([lambda: w2touch(2)])
        after.setdefault(EV[2], []).extend([job_ready, lambda: w2touch(3), lambda: code_touch(a, 2, 10, 16)])
        assert EV[2] >= 11 and EV[1] <= 8
        units = [(st, i) for st in range(2, 16) for i in range(12)]
        skip = set(x + 1 for x in EV) if OPT.get("elastic", "0") == "1" else set()
        def issue_units(n):
            q = 0 if n in skip else CATCH
            todo = []
            while units and units[0][0] <= n + 2 and (len(todo) < q or units[0][0] <= n + 1):
                todo.append(units.pop(0))
            for st in sorted(set(t[0] for t in todo)):
                A = [i for s_, i in todo if s_ == st and i < 4]; B = [i - 4 for s_, i in todo if s_ == st and i >= 4]
                if A: self.issueA(st, A)
                if B: self.issueB(st, B)
        T2S = [int(x) for x in OPT.get("t2s", "0,2").split(",")]
        def w1t(k):
            sel_voff(a, 18, 14, k)
            a(f"s_mov_b32 s55, {(4 + 2*k)*SLAB}")
            vm.op(f"buffer_load_dword v16, v18, {SR(S_W1)}, s55 offen", "touch")
        for k in range(2): after.setdefault(T2S[k], []).insert(0, lambda k=k: w1t(k))
        after[0].insert(0, self.late_setup)
        after[0].append(lambda: job_colsum(0))
        stamp(a, 13, wave=4)
        for n in range(16):
            htrace(a)
            vm.wait(f"st{n}", " lgkmcnt(0)")
            htrace(a)
            a("s_barrier")
            htrace(a)
            for j in before.get(n, []): j()
            issue_units(n)
            htrace(a)
            if 0 < n < 8: job_colsum(n)
            for j in after.get(n, []): j()
        a("s_waitcnt lgkmcnt(0)")
        a("s_barrier")
        def g2_addr():
            a("v_add_u32 v232, s96, v240")
            a("v_lshrrev_b32 v10, 4, v1")
            a("v_and_b32 v11, 15, v1")
            a("v_lshlrev_b32 v12, 1, v10")
            a("v_xor_b32 v13, v11, v12")
            a("v_lshlrev_b32 v233, 11, v10")
            a("v_lshl_add_u32 v234, v13, 4, v233")
            a("v_xor_b32 v13, 8, v13")
            a("v_lshl_add_u32 v235, v13, 4, v233")
            a(f"v_add_u32 v235, {4*2048}, v235")
            a(f"s_lshl_b32 s60, s{sLW}, 15")
            a(f"s_lshl_b32 s61, s{sC8}, 8")
            a("s_add_u32 s60, s60, s61")
            a("v_add_u32 v233, s60, v234")
            a("v_add_u32 v234, s60, v235")
            a(f"s_lshl_b32 s60, s{sMH}, 13")
            a("v_subrev_u32 v232, s60, v232")
            a(f"s_lshl_b32 s60, s{sMH}, 16")
            a("v_subrev_u32 v228, s60, v233")
            a("v_subrev_u32 v229, s60, v234")
        a("s_add_u32 s84, s96, 16384")
        a(f"s_lshr_b32 s60, s{sLW}, 1")
        a("s_lshl_b32 s85, s60, 13")
        a(f"s_and_b32 s60, s{sLW}, 1")
        a("s_lshl_b32 s60, s60, 12")
        a("s_add_u32 s85, s85, s60")
        a(f"s_lshl_b32 s60, s{sKH}, 11")
        a("s_add_u32 s85, s85, s60")
        a(f"s_lshl_b32 s87, s{sTILE}, 20")
        a(f"s_mul_i32 s82, s{sKH}, {56*8192}")
        a("s_add_u32 s82, s82, s87")
        a("s_add_u32 s87, s87, s85")
        a(f"s_add_u32 s87, s87, {112*8192}")
        a(f"s_lshl_b32 s88, s{sT1}, 20")
        a(f"s_mul_i32 s83, s{sKH}, {1792*2048}")
        a(f"s_mul_i32 s90, s{sC8}, 7")
        a(f"s_add_u32 s90, s90, s{sMH}")
        vm.ops = []
        def g2B(slot, srdb, soff, tag, fl="", vb=233):
            a(f"s_add_u32 s55, {soff}, 16384")
            for q in range(4):
                a(f"s_add_u32 m0, s84, {slot + q*1024}")
                if q: a("s_nop 0")
                so = soff if q < 2 else "s55"
                if q == 0: a("s_nop 0")
                vm.op(f"buffer_load_dwordx4 v{vb + (q & 1)}, {SR(srdb)}, {so} offen {fl} lds", tag)
            if vb == 233: a(f"s_add_u32 {soff}, {soff}, 131072")
        def stB(n):
            a("s_lshl_b32 s91, s89, 16")
            a("s_add_u32 s91, s91, s83")
            g2B((n % 4) * G2_STAGE, S_W2, "s91", f"s{n}", W2F, vb=228)
            a("s_add_u32 s89, s89, 2")
            a("s_sub_u32 s92, s89, 56")
            a("s_cmp_ge_u32 s89, 56")
            a("s_cselect_b32 s89, s92, s89")
        def stA(n):
            a(f"s_add_u32 m0, s96, {(n % 4) * G2_STAGE}")
            a("s_lshl_b32 s91, s90, 13")
            a("s_add_u32 s91, s91, s82")
            for q in range(4):
                vm.op(f"buffer_load_dwordx4 v232, {SR(S_HF)}, s91 offen offset:{q*1024} sc1 lds", f"s{n}")
            a("s_add_u32 s90, s90, 2")
            a("s_sub_u32 s92, s90, 56")
            a("s_cmp_ge_u32 s90, 56")
            a("s_cselect_b32 s90, s92, s90")
        def stage(n):
            slot = (n % 4) * G2_STAGE
            if n >= 28:
                a(f"s_add_u32 m0, s85, {slot}")
                a("s_nop 0")
                for q in range(2):
                    vm.op(f"buffer_load_dwordx4 v240, {SR(S_HF)}, s87 offen offset:{q*1024} sc1 lds", f"s{n}")
                a("s_add_u32 s87, s87, 16384")
                g2B(slot, S_AP, "s88", f"s{n}", "sc1")
            else:
                stB(n); stA(n)
        a("s_mov_b32 s89, s90")
        a("v_lshrrev_b32 v12, 5, v1"); a("v_lshlrev_b32 v12, 8, v12")
        a("v_bfe_u32 v10, v1, 2, 2"); a("v_lshl_add_u32 v12, v10, 6, v12")
        a("v_bfe_u32 v10, v1, 4, 1"); a("v_lshl_add_u32 v12, v10, 5, v12")
        a("v_and_b32 v10, 3, v1"); a("v_lshl_add_u32 v12, v10, 3, v12")
        a(f"s_cmp_eq_u32 s{sLW}, 0")
        a("s_cselect_b32 s56, 0, -1")
        a(f"s_lshl_b32 s58, s{sLW}, 12")
        a(f"s_add_u32 s58, s58, {L_U}")
        a("s_mov_b32 s57, 0")
        a("s_lshl_b32 s59, s2, 11")
        a(f"s_lshl_b32 s60, s{sLW}, 20")
        a("s_add_u32 s60, s60, s59")
        a("s_mov_b32 s86, 0")
        a.label("L_fft")
        a("v_add_u32 v13, s58, v12")
        a(f"s_add_u32 s61, s60, {256*2048}")
        fft(a)
        for k in range(4):
            a(f"buffer_store_dwordx4 v[{FR+4*k}:{FR+4*k+3}], v41, {SR(S_AP)}, s{60 + (k >> 1)} offen offset:{(k & 1)*1024} sc1")
        a(f"s_cmp_eq_u32 s{sLW}, 0")
        a(f"s_cselect_b32 s58, {L_U+2048}, s58")
        a("s_cselect_b32 s57, 0, 0x80008000")
        a(f"s_sub_u32 s60, 8, s{sLW}")
        a(f"s_cmp_eq_u32 s{sLW}, 0")
        a("s_cselect_b32 s60, 4, s60")
        a("s_lshl_b32 s60, s60, 20")
        a("s_add_u32 s60, s60, s59")
        a("s_add_u32 s86, s86, 1")
        a("s_cmp_ge_u32 s86, 2")
        a("s_cbranch_scc1 L_fft_done")
        a("s_barrier")
        a("s_branch L_fft")
        a.label("L_fft_done")
        vm.ops += ["ap"] * 8
        g2_addr()
        for n in range(4): stB(n)
        a("v_mov_b32 v238, 0")
        a("v_and_b32 v10, 3, v1"); a("v_lshrrev_b32 v236, 2, v1"); a("v_and_b32 v236, 7, v236")
        a("v_lshlrev_b32 v236, 5, v236"); a("v_lshl_add_u32 v236, v10, 2, v236")
        sel_voff(a, 231, 238, 0)
        a(f"s_mov_b32 s97, {QF_G}")
        stamp(a, 14, wave=4)
        a("s_barrier")
        stamp(a, 15, wave=4)
        for n in range(3): stA(n)
        HLD = f"buffer_load_dword v237, v236, {SR(S_MISC)}, s78 offen sc1"
        HCHK = [f"v_cmp_ne_u32 vcc, s{sEP}, v237", "s_nop 1", "s_cmp_eq_u64 vcc, 0"]
        QLD2 = f"buffer_load_dwordx4 v[52:55], v240, {SR(S_MISC)}, s97 offen sc1"
        vm.op(HLD, "hl")
        LOOP_S, LOOP_E = 4, 20
        n = 0
        while n < 36:
            if n == LOOP_S:
                a("s_mov_b32 s86, 0")
                a.label("L_h_g2loop")
                for u in range(4):
                    a("s_waitcnt vmcnt(16)")
                    a("s_barrier")
                    stage(n + u + 3)
                a("s_add_u32 s86, s86, 1")
                a(f"s_cmp_lt_u32 s86, {(LOOP_E-LOOP_S)//4}")
                a("s_cbranch_scc1 L_h_g2loop")
                vm.ops = [f"s{LOOP_E}"] * 8 + [f"s{LOOP_E+1}"] * 8 + [f"s{LOOP_E+2}"] * 8
                n = LOOP_E
                continue
            vm.wait(f"s{n}")
            a("s_barrier")
            m = n + 3
            if n == 0:
                vm.wait("hl")
                spin(a, "hp", [HLD], HCHK, first_loaded=True)
                stA(3)
            elif m < 36:
                if m == 28:
                    vm.wait("ql")
                    spin(a, "qp", [QLD2], QCHK, first_loaded=True)
                stage(m)
            if n == 1:
                a("s_mov_b64 exec, 1")
                vm.op(f"buffer_store_dword v60, v231, {SR(S_MISC)}, s93 offen sc1", "qf")
                a("s_mov_b64 exec, -1")
            if m == 25: vm.op(QLD2, "ql")
            n += 1
        htrace_store(a)
        a("s_endpgm")

L_HAND = 2 * G2_STAGE
def epi_setup(role):
    L16 = 240
    return [
        "v_lshrrev_b32 v10, 4, v1", "v_lshlrev_b32 v10, 4, v10",
        f"s_mul_i32 s48, s{sNH}, 384", f"s_add_u32 s48, s48, {L_CSUM}", "v_add_u32 v11, s48, v10",
        f"s_lshl_b32 s48, s{sNH}, 6", f"s_add_u32 s48, s48, {L_CSUM+768}", "v_add_u32 v12, s48, v10",
        "v_and_b32 v10, 15, v1", "v_lshlrev_b32 v10, 3, v10",
        f"s_lshl_b32 s48, s{sMH}, 9", f"s_add_u32 s48, s48, {L_STAT + role*256}", "v_add_u32 v10, s48, v10",
        f"s_lshl_b32 s48, s{sMH}, 12", f"s_add_u32 s48, s48, {role*2048}", f"v_add_u32 v2, s48, v{L16}",
        f"s_add_u32 s48, s48, {3*G2_STAGE}", f"s_lshl_b32 s54, s{sNH}, 3", "s_add_u32 s54, s54, s48", f"v_add_u32 v3, s54, v{L16}",
        f"s_lshl_b32 s54, s{sNH}, {10 if SHARE else 11}", "s_add_u32 s48, s48, s54", f"v_add_u32 v4, s48, v{L16}",
        f"s_mul_i32 s48, s{sCT}, 7", f"s_mul_i32 s49, s{sNH}, 3", "s_add_u32 s49, s49, s48",
        "s_lshl_b32 s49, s49, 13", f"s_lshl_b32 s53, s{sTILE}, 20", "s_add_u32 s49, s49, s53",
        "s_add_u32 s50, s49, 8192", "s_add_u32 s51, s49, 16384",
        "s_add_u32 s52, s48, 6", "s_lshl_b32 s52, s52, 13", "s_add_u32 s52, s52, s53",
        "s_add_u32 s52, s52, s54", f"v_mov_b32 v13, {L_ST8+64}"]

def shared_epilogue(a):
    NF = 2 if SHARE else 4
    a.label("L_epi")
    CB = 128; SB = 156; RL = 164
    a("ds_read_b32 v241, v13")
    for f in range(NF): a(f"ds_read_b64 v[{SB+2*f}:{SB+2*f+1}], v10 offset:{f*128}")
    a(f"ds_read_b128 v[{CB+24}:{CB+27}], v12")
    for nb in range(6): a(f"ds_read_b128 v[{CB+4*nb}:{CB+4*nb+3}], v11 offset:{nb*64}")
    a("s_waitcnt lgkmcnt(7)")
    for f in range(NF): a(f"v_rcp_f32 v{RL+2*f}, v{SB+2*f+1}")
    a("s_nop 0")
    for f in range(NF): a(f"v_mul_f32 v{RL+2*f}, {f2u(-LOG2E)}, v{RL+2*f}")
    a("s_waitcnt lgkmcnt(6)")
    def silu_ln(fs, accs, cs, temps, dsts):
        n = len(accs)
        S = lambda i: f"v[{SB+2*fs[i]}:{SB+2*fs[i]+1}]"
        R = lambda i: f"v[{RL+2*fs[i]}:{RL+2*fs[i]+1}]"
        for i in range(n):
            a(f"v_pk_fma_f32 v[{accs[i]}:{accs[i]+1}], v[{cs[i]}:{cs[i]+1}], {S(i)}, v[{accs[i]}:{accs[i]+1}] op_sel_hi:[1,0,1] neg_lo:[0,1,0] neg_hi:[0,1,0]")
        for i in range(n):
            a(f"v_pk_mul_f32 v[{temps[i]}:{temps[i]+1}], v[{accs[i]}:{accs[i]+1}], {R(i)} op_sel_hi:[1,0]")
        for i in range(n):
            a(f"v_exp_f32 v{temps[i]}, v{temps[i]}"); a(f"v_exp_f32 v{temps[i]+1}, v{temps[i]+1}")
        for i in range(n):
            a(f"v_pk_fma_f32 v[{temps[i]}:{temps[i]+1}], v[{temps[i]}:{temps[i]+1}], {S(i)}, {S(i)} op_sel:[0,1,1] op_sel_hi:[1,1,1]")
        for i in range(n):
            a(f"v_rcp_f32 v{temps[i]}, v{temps[i]}"); a(f"v_rcp_f32 v{temps[i]+1}, v{temps[i]+1}")
        for i in range(n):
            a(f"v_pk_mul_f32 v[{temps[i]}:{temps[i]+1}], v[{temps[i]}:{temps[i]+1}], v[{accs[i]}:{accs[i]+1}]")
        for i in range(n):
            a(f"v_cvt_pk_bf16_f32 v{dsts[i]}, v{temps[i]}, v{temps[i]+1}")
    TM = [184, 186, 188, 190]
    for h in range(NF // 2):
        fs = [2 * h, 2 * h, 2 * h + 1, 2 * h + 1]
        accs = [ACC + (f * 7 + 6) * 4 + 2 * (i & 1) for i, f in enumerate(fs)]
        d = 192 + 4 * h
        silu_ln(fs, accs, [CB + 24, CB + 26, CB + 24, CB + 26], TM, [d, d + 1, d + 2, d + 3])
        a(f"ds_write_b64 v3, v[{d}:{d+1}] offset:{2*h*1024}")
        a(f"ds_write_b64 v3, v[{d+2}:{d+3}] offset:{(2*h+1)*1024}")
    a("s_waitcnt lgkmcnt(0)")
    k = 0
    for pp in range(3):
        for f in range(NF):
            c = ACC + (f * 7 + 2 * pp) * 4
            d = 172 + (k & 1) * 4
            cc = CB + 8 * pp
            silu_ln([f] * 4, [c, c + 2, c + 4, c + 6], [cc, cc + 2, cc + 4, cc + 6], TM, [d, d + 1, d + 2, d + 3])
            a(f"buffer_store_dwordx4 v[{d}:{d+3}], v2, {SR(S_HF)}, s{49+pp} offen offset:{f*1024} sc1")
            k += 1
            if k == EK:
                a("s_barrier")
                for i in range(NF // 2): a(f"ds_read_b128 v[{192+4*i}:{195+4*i}], v4 offset:{i*1024}")
            if k == EK + 1:
                a("s_waitcnt lgkmcnt(0)")
                for i in range(NF // 2): a(f"buffer_store_dwordx4 v[{192+4*i}:{195+4*i}], v2, {SR(S_HF)}, s52 offen offset:{i*1024} sc1")
    if not SHARE:
        a("s_branch L_epi_ret_c")
        return
    a(f"s_cmp_ge_u32 s{sWV}, 4")
    a("s_cbranch_scc1 L_epi_ret_h")
    a("s_branch L_epi_ret_c")

def consumer_pre(a):
    w1_touch_voff(a, 242)
    if TV == "a":
        a(f"s_cmp_eq_u32 s{sLW}, 3")
        a("s_mov_b32 s49, 0")
    else:
        a(f"s_cmp_ge_u32 s{sLW}, 2")
        a(f"s_cselect_b32 s49, 1, 0")
        a(f"s_and_b32 s49, s49, s{sLW}")
        a(f"s_xor_b32 s49, s49, 1")
        a(f"s_mul_i32 s49, s49, {2*SLAB}")
        a(f"s_cmp_ge_u32 s{sLW}, 2")
    a("s_cselect_b64 s[62:63], -1, 0")
    a("v_cndmask_b32 v11, v10, v242, s[62:63]")
    a(f"buffer_load_dword v241, v11, {SR(S_W1)}, s49 offen")
    a("v_and_b32 v10, 15, v1")
    a("v_lshrrev_b32 v11, 4, v1")
    a("v_and_b32 v12, 7, v1")
    a("v_xor_b32 v11, v11, v12")
    a("v_lshlrev_b32 v2, 7, v10")
    a("v_lshl_add_u32 v2, v11, 4, v2")
    a(f"s_lshl_b32 s48, s{sMH}, 13")
    a("v_add_u32 v2, s48, v2")
    a("v_xor_b32 v15, 64, v2")
    g1_bfrag_addrs(a, sNH, 3, 4, 5, 10, 11)
    a(f"s_add_u32 s97, s{sLW}, {1 if TV == 'a' else 2}")
    a(f"s_mul_i32 s97, s97, {2*SLAB}")
    a("v_bfrev_b32 v10, 1")
    a("v_cndmask_b32 v242, v242, v10, s[62:63]")
    a(f"s_mov_b32 s{sSLOT}, 0")
    a("v_mov_b32 v6, v2"); a("v_mov_b32 v7, v3"); a("v_mov_b32 v8, v4"); a("v_mov_b32 v9, v5"); a("v_mov_b32 v14, v15")

def gen_consumer(a):
    a.label("L_consumer")
    SET = [128, 172]
    L16 = 240
    a(f"s_lshl_b32 s48, s{sLW}, 12")
    a(f"s_add_u32 s48, s48, {L_XN}")
    a(f"v_add_u32 v10, s48, v{L16}")
    def reads(st, kb):
        L = []; b = SET[st]
        order = [("a", 0), ("w", 0), ("w", 1), ("a", 1), ("w", 2), ("w", 3), ("a", 2), ("w", 4), ("w", 5), ("a", 3), ("w", 6)]
        for kind, i in order:
            if kind == "a":
                L.append(f"ds_read_b128 v[{b+4*i}:{b+4*i+3}], v{14 if kb else 6} offset:{i*2048}")
            else:
                for hh in range(2):
                    d = b + 16 + 4 * i + 2 * hh
                    ro = (32 * kb + 16 * hh) * 448
                    if i < 6: L.append(f"ds_read_b64_tr_b16 v[{d}:{d+1}], v{7 + (i & 1)} offset:{ro + i*32}")
                    else: L.append(f"ds_read_b64_tr_b16 v[{d}:{d+1}], v9 offset:{ro}")
        return L
    def mfmas(st, zero=False):
        b = SET[st]; L = []
        for f in range(4):
            for nb in range(7):
                c = ACC + (f * 7 + nb) * 4
                C = "0" if zero else f"v[{c}:{c+3}]"
                L.append(f"v_mfma_f32_16x16x32_bf16 v[{c}:{c+3}], v[{b+16+4*nb}:{b+19+4*nb}], v[{b+4*f}:{b+3+4*f}], {C}")
        return L
    def adv():
        return [f"s_add_u32 s{sSLOT}, s{sSLOT}, {G1_STAGE}", f"s_cmp_eq_u32 s{sSLOT}, {3*G1_STAGE}", f"s_cselect_b32 s{sSLOT}, 0, s{sSLOT}",
                f"v_add_u32 v6, s{sSLOT}, v2", f"v_add_u32 v7, s{sSLOT}, v3", f"v_add_u32 v8, s{sSLOT}, v4", f"v_add_u32 v9, s{sSLOT}, v5", f"v_add_u32 v14, s{sSLOT}, v15"]
    stamp(a, 12)
    a(f"s_setprio {CPRIO}")
    if STAMP: a("s_mov_b32 s97, 0")
    a("s_waitcnt lgkmcnt(0)")
    a("s_barrier")
    stamp(a, 1)
    trace_mark(a)
    for r in reads(0, 0): a(r)
    a("s_mov_b32 s86, 0")
    a("s_waitcnt lgkmcnt(0)")
    trace_commit(a)
    interleave(a, mfmas(0, True), reads(1, 1) + adv())
    a("s_branch L_c_g1mid")
    a.label("L_c_g1loop")
    U1 = 3
    for u in range(U1):
        a("s_waitcnt lgkmcnt(0)")
        trace_commit(a)
        interleave(a, mfmas(0), reads(1, 1) + adv())
        if u == 0: a.label("L_c_g1mid")
        a("s_waitcnt lgkmcnt(0)")
        a("s_barrier")
        trace_mark(a)
        tail = ["s_add_u32 s86, s86, 1", f"s_cmp_lt_u32 s86, {15//U1}"] if u == U1 - 1 else []
        interleave(a, mfmas(1), reads(0, 0) + tail)
    a("s_cbranch_scc1 L_c_g1loop")
    a("s_waitcnt lgkmcnt(0)")
    trace_commit(a)
    interleave(a, mfmas(0), reads(1, 1))
    a("s_waitcnt lgkmcnt(0)")
    hand = [f"s_lshl_b32 s48, s{sLW}, 14", f"s_add_u32 s48, s48, {L_HAND}", f"v_add_u32 v5, s48, v{L16}"]
    interleave(a, mfmas(1), hand + epi_setup(0), per=2)
    a("s_barrier")
    stamp(a, 2)
    a(f"s_setprio {EPRIO}")
    if SHARE:
        for i in range(14):
            c = ACC + 56 + 4 * i
            a(f"ds_write_b128 v5, v[{c}:{c+3}] offset:{i*1024}")
        a("s_waitcnt lgkmcnt(0)")
        a("s_barrier")
    a("s_branch L_epi")
    a.label("L_epi_ret_c")
    stamp(a, 3)
    a("v_readfirstlane_b32 s96, v241")
    ACO = 32; ACY = 96; SET2 = [128, 160]; XO = 192; PB = 208
    a(f"s_lshl_b32 s48, s{sMH}, 12")
    a(f"s_lshl_b32 s49, s{sKH}, 11")
    a("s_add_u32 s50, s48, s49")
    a(f"v_add_u32 v2, s50, v{L16}")
    a("s_xor_b32 s49, s49, 2048")
    a("s_add_u32 s50, s48, s49")
    a(f"v_add_u32 v3, s50, v{L16}")
    a("v_lshrrev_b32 v11, 2, v1")
    a("v_and_b32 v12, 7, v11")
    a("v_lshlrev_b32 v11, 8, v11")
    a("v_and_b32 v13, 3, v1")
    a("v_lshl_add_u32 v11, v13, 3, v11")
    a("v_add_u32 v11, 16384, v11")
    a(f"s_lshl_b32 s48, s{sNH}, 2")
    a("v_xor_b32 v12, s48, v12")
    for nb in range(4):
        a(f"v_xor_b32 v13, {nb}, v12")
        a(f"v_lshl_add_u32 v{4+nb}, v13, 5, v11")
    for i in range(96): a(f"v_mov_b32 v{ACO+i}, 0")
    a(f"s_mov_b32 s{sSLOT}, 0")
    a("v_mov_b32 v14, v2"); a("v_mov_b32 v15, v3")
    for nb in range(4): a(f"v_mov_b32 v{16+nb}, v{4+nb}")
    late = [
        "v_mov_b32 v20, 0",
        f"s_lshl_b32 s48, s{sLW}, 2",
        "s_lshl_b32 s80, s2, 7", "s_add_u32 s80, s80, s48", f"s_add_u32 s80, s80, {XFLAG_G}", "s_xor_b32 s81, s80, 512",
        "v_and_b32 v9, 7, v1", "v_lshlrev_b32 v9, 19, v9", "v_bfe_u32 v10, v1, 3, 1", "v_lshl_add_u32 v9, v10, 14, v9",
        "v_bfe_u32 v10, v1, 4, 1", "v_lshl_add_u32 v9, v10, 5, v9", "v_bfe_u32 v10, v1, 5, 1", "v_lshl_add_u32 v9, v10, 4, v9",
        f"s_lshl_b32 s48, s{sJH}, 4", f"s_lshl_b32 s49, s{sMH}, 3", "s_add_u32 s48, s48, s49", f"s_lshl_b32 s49, s{sKH}, 2",
        "s_add_u32 s48, s48, s49", "s_lshl_b32 s48, s48, 3", f"s_add_u32 s48, s48, s{sT1}", "s_lshl_b32 s48, s48, 11",
        f"s_lshl_b32 s49, s{sC8}, 8", "s_add_u32 s48, s48, s49", f"s_lshl_b32 s49, s{sNH}, 7", "s_add_u32 s91, s48, s49",
        f"s_add_u32 s92, s91, {16*2048}", "s_lshl_b32 s93, s2, 2", f"s_add_u32 s93, s93, s{sLW}", "s_lshl_b32 s93, s93, 12",
        f"s_add_u32 s93, s93, {XB_G}", f"s_xor_b32 s94, s93, {4*4*4096}"]
    for l in late: a(l)
    zero_o = [f"v_mov_b32 v{ACO+i}, 0" for i in range(64)]
    def adv2():
        return [f"s_add_u32 s{sSLOT}, s{sSLOT}, {G2_STAGE}", f"s_and_b32 s{sSLOT}, s{sSLOT}, {4*G2_STAGE-1}",
                f"v_add_u32 v14, s{sSLOT}, v2", f"v_add_u32 v15, s{sSLOT}, v3"] + [f"v_add_u32 v{16+nb}, s{sSLOT}, v{4+nb}" for nb in range(4)]
    def reads2(st, kb, y=False):
        b = SET2[st]; L = []
        for i in range(4):
            if not (y and i >= 2):
                L.append(f"ds_read_b128 v[{b+4*i}:{b+4*i+3}], v{14 + (i >> 1)} offset:{kb*8192 + (i & 1)*1024}")
            for hh in range(2):
                d = b + 16 + i * 4 + hh * 2
                L.append(f"ds_read_b64_tr_b16 v[{d}:{d+1}], v{16+i} offset:{kb*8192 + hh*4096}")
        return L
    def mfmas2(st, y=False):
        b = SET2[st]; L = []
        for fp in range(2 if y else 4):
            for nb in range(4):
                c = (ACY if y else ACO) + (fp * 4 + nb) * 4
                w = b + 16 + nb * 4; x = b + fp * 4
                L.append(f"v_mfma_f32_16x16x32_bf16 v[{c}:{c+3}], v[{w}:{w+3}], v[{x}:{x+3}], v[{c}:{c+3}]")
        return L
    xl = []
    for fp in range(2):
        for pp in range(2):
            d = XO + (fp * 2 + pp) * 4
            xl.append(f"buffer_load_dwordx4 v[{d}:{d+3}], v9, {SR(S_X)}, s{91+fp} offen offset:{pp*64}")
    a("s_waitcnt vmcnt(0)")
    a("s_mov_b64 exec, 1")
    a(f"buffer_store_dword v241, v20, {SR(S_MISC)}, s79 offen sc1")
    a("s_mov_b64 exec, -1")
    stamp(a, 5)
    a("s_barrier")
    for l in xl: a(l)
    a(f"s_setprio {CPRIO}")
    a("s_barrier")
    stamp(a, 6)
    trace_mark(a)
    for r in reads2(0, 0): a(r)
    def step(y_cur, y_next, post=(), last=False, e1=()):
        a("s_waitcnt lgkmcnt(0)")
        trace_commit(a)
        interleave(a, mfmas2(0, y_cur), reads2(1, 1, y_cur) + ([] if last else adv2()) + list(e1), per=2)
        a("s_waitcnt lgkmcnt(0)")
        if not last:
            a("s_barrier")
            trace_mark(a)
            interleave(a, mfmas2(1, y_cur), reads2(0, 0, y_next) + list(post), per=2)
        else:
            interleave(a, mfmas2(1, y_cur), [])
    U2 = 3
    a("s_mov_b32 s86, 0")
    a.label("L_c_g2loop")
    for u in range(U2):
        step(False, False, post=(["s_add_u32 s86, s86, 1", f"s_cmp_lt_u32 s86, {27//U2}"] if u == U2 - 1 else []))
    a("s_cbranch_scc1 L_c_g2loop")
    step(False, True)
    stamp(a, 7)
    a(f"s_mov_b32 s60, {f2u(-LOG2E)}")
    a("s_mov_b32 s61, s60")
    xs = []
    for q in range(4):
        for i in range(4):
            c = ACO + 32 + q * 8 + 2 * i
            xs.append(f"v_cvt_pk_bf16_f32 v{224+4*q+i}, v{c}, v{c+1}")
        xs.append(f"buffer_store_dwordx4 v[{224+4*q}:{227+4*q}], v{L16}, {SR(S_MISC)}, s93 offen offset:{q*1024} sc1")
    XLD = f"buffer_load_dword v22, v20, {SR(S_MISC)}, s81 offen sc1"
    pls = [f"buffer_load_dwordx4 v[{PB+4*q}:{PB+4*q+3}], v{L16}, {SR(S_MISC)}, s94 offen offset:{q*1024} sc1" for q in range(4)]
    XF_S, XP_S = int(OPT.get("xfs", "30")), int(OPT.get("xps", "34"))
    for s in range(28, 36):
        e1 = []; post = []
        if s == 28: e1 = xs
        if s == XF_S: e1 = ["s_waitcnt vmcnt(0)", "s_mov_b64 exec, 1", f"buffer_store_dword v241, v20, {SR(S_MISC)}, s80 offen sc1", "s_mov_b64 exec, -1"]
        if s == XP_S - 1: post = [XLD]
        if s == XP_S:
            a("s_waitcnt vmcnt(0)")
            spin(a, "xp", [XLD], ["v_readfirstlane_b32 s62, v22", "s_nop 0", "s_cmp_eq_u32 s62, s96"], first_loaded=True)
            e1 = pls
        step(True, True, post=post, last=(s == 35), e1=e1)
    stamp(a, 8)
    a("s_setprio 0")
    for q in range(4):
        a(f"s_waitcnt vmcnt({3-q})")
        for i in range(4):
            c = ACO + q * 8 + 2 * i; p = PB + 4 * q + i
            a(f"v_lshlrev_b32 v{144+2*i}, 16, v{p}")
            a(f"v_and_b32 v{145+2*i}, 0xffff0000, v{p}")
        for i in range(4):
            c = ACO + q * 8 + 2 * i
            a(f"v_pk_add_f32 v[{c}:{c+1}], v[{c}:{c+1}], v[{144+2*i}:{145+2*i}]")
    stamp(a, 9)
    for h in range(2):
        srcs = [ACO + 2 * i for i in range(8 * h, 8 * h + 8)]; temps = [128 + 2 * i for i in range(8)]
        for i in range(8): a(f"v_pk_mul_f32 v[{temps[i]}:{temps[i]+1}], v[{srcs[i]}:{srcs[i]+1}], s[60:61]")
        for i in range(8): a(f"v_exp_f32 v{temps[i]}, v{temps[i]}"); a(f"v_exp_f32 v{temps[i]+1}, v{temps[i]+1}")
        for i in range(8): a(f"v_pk_add_f32 v[{temps[i]}:{temps[i]+1}], v[{temps[i]}:{temps[i]+1}], 1.0 op_sel_hi:[1,0]")
        for i in range(8): a(f"v_rcp_f32 v{temps[i]}, v{temps[i]}"); a(f"v_rcp_f32 v{temps[i]+1}, v{temps[i]+1}")
        for i in range(8):
            y = ACY + 2 * (8 * h + i)
            a(f"v_pk_mul_f32 v[{srcs[i]}:{srcs[i]+1}], v[{srcs[i]}:{srcs[i]+1}], v[{y}:{y+1}]")
        for i in range(8): a(f"v_pk_mul_f32 v[{temps[i]}:{temps[i]+1}], v[{temps[i]}:{temps[i]+1}], v[{srcs[i]}:{srcs[i]+1}]")
        for i in range(8): a(f"v_cvt_pk_bf16_f32 v{160+8*h+i}, v{temps[i]}, v{temps[i]+1}")
        a.nop(2)
        fp = h
        for pp in range(2):
            b0 = 160 + (fp * 4 + 2 * pp) * 2
            a(f"v_permlane16_swap_b32 v{b0}, v{b0+2}")
            a(f"v_permlane16_swap_b32 v{b0+1}, v{b0+3}")
        for q in (2 * h, 2 * h + 1):
            for i in range(4):
                p = 160 + q * 4 + i; x = XO + q * 4 + i
                t = 144 + 4 * (i & 1)
                a(f"v_lshlrev_b32 v{t}, 16, v{p}")
                a(f"v_and_b32 v{t+1}, 0xffff0000, v{p}")
                a(f"v_lshlrev_b32 v{t+2}, 16, v{x}")
                a(f"v_and_b32 v{t+3}, 0xffff0000, v{x}")
                a(f"v_pk_add_f32 v[{t}:{t+1}], v[{t}:{t+1}], v[{t+2}:{t+3}]")
                a(f"v_cvt_pk_bf16_f32 v{x}, v{t}, v{t+1}")
            d = XO + q * 4
            a(f"buffer_store_dwordx4 v[{d}:{d+3}], v9, {SR(S_OUT)}, s{91+(q>>1)} offen offset:{(q&1)*64}")
    if STAMP: a("s_waitcnt vmcnt(0)")
    stamp(a, 10)
    trace_store(a)

def main(out):
    for p in range(448): assert (p * 2341) >> 16 == p // 28
    for p in range(64): assert (p * 4682) >> 16 == p // 14
    a = Asm()
    gen(a)
    for p in check(a.lines): print("HAZARD", p)
    vg = 256 if STAMP else 244
    txt = f"""; generated by work/gen16.py
; @launch grid=(256,1,1) block=(512,1,1) lds={LDS_TOTAL}
.amdgcn_target "amdgcn-amd-amdhsa--gfx950"
.text
.globl {NAME}_kernel
.p2align 8
.type {NAME}_kernel,@function
""" + a.text() + f""".section .rodata,"a"
.p2align 6
.amdhsa_kernel {NAME}_kernel
  .amdhsa_next_free_vgpr {vg}
  .amdhsa_next_free_sgpr 102
  .amdhsa_accum_offset {vg}
  .amdhsa_group_segment_fixed_size 0
  .amdhsa_kernarg_size 88
  .amdhsa_user_sgpr_count 2
  .amdhsa_user_sgpr_kernarg_segment_ptr 1
  .amdhsa_system_sgpr_workgroup_id_x 1
.end_amdhsa_kernel
"""
    open(out, "w").write(txt)
    print("lines", len(a.lines), "lds", LDS_TOTAL)

if __name__ == "__main__":
    args = [x for x in sys.argv[1:] if not x.startswith("--") and "=" not in x]
    main(args[0] if args else f"cdna_kernels/{NAME}.s")
```

```python
import sys, os, struct
from asmlib import *

NAME = "recurrent_scan__spectral_fnet__dense_activation_silu__prompt"
MB = 1 << 20
HF_OFF = 0
AP_OFF = 16 * MB
MISC_OFF = 24 * MB
STAT_G = 0
CS_G = 65536
HFLAG_G = 640 * 1024
XFLAG_G = 672 * 1024
RS_G = 720 * 1024
RC_G = 724 * 1024
QF_G = 728 * 1024
XB_G = 1 * MB
STAMP = "--stamp" in sys.argv
OPT = dict(x.split("=") for x in sys.argv if "=" in x and not x.startswith("--"))
NST = 64
EK = int(OPT.get('ek', '5'))
TP = OPT.get('tp', 'p2')
SHARE = OPT.get('share', '0') == '1'
TV = OPT.get('tv', 'b')
HM = int(OPT.get('hm', '11'))
HFS = int(OPT.get('hfs', '1'))
W1F = OPT.get('w1f', 'none').replace('none', '')
W2F = OPT.get('w2f', 'none').replace('none', '')
CPRIO = int(OPT.get('cprio', '2'))
EPRIO = int(OPT.get('eprio', '1'))

def f2u(x): return "0x%08x" % struct.unpack("<I", struct.pack("<f", x))[0]

S_X, S_W1, S_W2, S_OUT, S_CR, S_HF, S_AP, S_MISC, S_DBG, S_CI = 4, 8, 12, 16, 20, 24, 28, 32, 36, 64
def SR(b): return f"s[{b}:{b+3}]"
sWV, sTILE, sKH, sC8, sCT, sT1, sJH, sLW = 3, 40, 41, 42, 43, 44, 45, 46
sSLOT = 47
sSPIN = 73
LOG2E = 1.4426950408889634

G1_STAGE = 45056
L_STAT = 135168
L_CSUM = L_STAT + 1024
L_CS4 = L_CSUM + 1024
L_ST8 = L_CS4 + 4096
L_U = L_ST8 + 256
LDS_TOTAL = L_U + 16384
G2_STAGE = 32768

def srd(a, d, lo, hi, size, add=0):
    if add == 0:
        a(f"s_mov_b32 s{d}, s{lo}"); a(f"s_mov_b32 s{d+1}, s{hi}")
    else:
        a(f"s_add_u32 s{d}, s{lo}, {add}"); a(f"s_addc_u32 s{d+1}, s{hi}, 0")
    a(f"s_mov_b32 s{d+2}, {size}"); a(f"s_mov_b32 s{d+3}, 0x20000")

DBGST = OPT.get("dbgst")
DBGMAP = {11: 1, 16: 2, 12: 3, 1: 4, 2: 5, 3: 6, 5: 7, 6: 8, 7: 9, 8: 10, 9: 11, 10: 12}
def stamp(a, idx, wave=0, vt=250):
    if DBGST is not None and wave == 0 and idx in DBGMAP:
        lab = a.uid("dst%d" % idx)
        a(f"s_lshl_b32 s74, s2, 3")
        a(f"s_add_u32 s74, s74, s{sWV}")
        a(f"s_cmp_lg_u32 s74, {int(DBGST)*8}")
        a(f"s_cbranch_scc1 {lab}")
        if idx == 10: a("s_waitcnt vmcnt(0)")
        a("s_memrealtime s[74:75]")
        a("s_waitcnt lgkmcnt(0)")
        a("s_sub_u32 s74, s74, s98")
        a(f"v_mov_b32 v{vt}, s74")
        a(f"v_mov_b32 v{vt+1}, {DBGMAP[idx]*4}")
        a(f"buffer_store_dword v{vt}, v{vt+1}, {SR(S_DBG)}, 0 offen")
        a.label(lab)
        return
    if not STAMP: return
    lab = a.uid("stamp%d" % idx)
    a(f"s_cmp_lg_u32 s{sWV}, {wave}")
    a(f"s_cbranch_scc1 {lab}")
    a("s_memrealtime s[74:75]")
    a("s_memtime s[76:77]")
    a("s_waitcnt lgkmcnt(0)")
    a(f"v_mov_b32 v{vt}, s76")
    a(f"v_mov_b32 v{vt+1}, {idx*4+128}")
    a(f"buffer_store_dword v{vt}, v{vt+1}, s[68:71], s72 offen")
    a("s_nop 1")
    a(f"v_mov_b32 v{vt}, s74")
    a(f"v_mov_b32 v{vt+1}, {idx*4}")
    a(f"buffer_store_dword v{vt}, v{vt+1}, s[68:71], s72 offen")
    a.label(lab)
def trace_mark(a):
    if STAMP: a("s_memtime s[98:99]")
def trace_commit(a):
    if not STAMP: return
    a("s_mov_b32 m0, s97"); a("v_writelane_b32 v249, s98, m0")
    a("s_add_u32 s97, s97, 1")
def trace_store(a):
    if not STAMP: return
    lab = a.uid("trs")
    a(f"s_cmp_lg_u32 s{sWV}, 0")
    a(f"s_cbranch_scc1 {lab}")
    a(f"s_add_u32 s68, s68, {MB}")
    a("s_addc_u32 s69, s69, 0")
    a(f"s_mov_b32 s70, {256*256}")
    a("s_lshl_b32 s72, s2, 8")
    a("v_lshlrev_b32 v250, 2, v1")
    a("buffer_store_dword v249, v250, s[68:71], s72 offen")
    a.label(lab)

HT = [0]
def htrace(a):
    if not STAMP or OPT.get("ht", "0") != "1": return
    i = HT[0]; HT[0] += 1
    if i >= 128: return
    a("s_memtime s[98:99]")
    a("s_waitcnt lgkmcnt(0)")
    a(f"v_writelane_b32 v{248 + (i >> 6)}, s98, {i & 63}")
def htrace_store(a):
    if not STAMP: return
    lab = a.uid("htrs")
    a(f"s_cmp_lg_u32 s{sWV}, 4")
    a(f"s_cbranch_scc1 {lab}")
    a(f"s_add_u32 s68, s68, {2*MB}")
    a("s_addc_u32 s69, s69, 0")
    a(f"s_mov_b32 s70, {256*512}")
    a("s_lshl_b32 s72, s2, 9")
    a("v_lshlrev_b32 v250, 2, v1")
    a("buffer_store_dword v248, v250, s[68:71], s72 offen")
    a("buffer_store_dword v249, v250, s[68:71], s72 offen offset:256")
    a.label(lab)

class VM:
    def __init__(self, a): self.a = a; self.ops = []
    def op(self, line, tag): self.a(line); self.ops.append(tag)
    def count(self, tag):
        n = 0
        for t in reversed(self.ops):
            if t == tag: return n
            n += 1
        raise KeyError(tag)
    def wait(self, tag, extra=""):
        n = min(self.count(tag), 63)
        self.a(f"s_waitcnt vmcnt({n}){extra}")

def multi_wave_sum(a, vs, ts):
    assert len(vs) >= 3
    for pat in ("quad_perm:[1,0,3,2]", "quad_perm:[2,3,0,1]", "row_half_mirror", "row_mirror"):
        for v in vs: a(f"v_add_f32_dpp v{v}, v{v}, v{v} {pat} row_mask:0xf bank_mask:0xf")
    for sw in ("v_permlane16_swap_b32", "v_permlane32_swap_b32"):
        for v, t in zip(vs, ts): a(f"v_mov_b32 v{t}, v{v}")
        for v, t in zip(vs, ts): a(f"{sw} v{t}, v{v}")
        for v, t in zip(vs, ts): a(f"v_add_f32 v{v}, v{t}, v{v}")

def interleave(a, mfmas, others, first=0, per=1):
    oi = 0
    for i, m in enumerate(mfmas):
        a(m)
        if i >= first:
            for _ in range(per):
                if oi < len(others): a(others[oi]); oi += 1
    while oi < len(others): a(others[oi]); oi += 1

def spin(a, name, load, check, first_loaded=False):
    L = a.uid(name + "_spin"); D = a.uid(name + "_done")
    a(f"s_mov_b32 s{sSPIN}, 0")
    if first_loaded:
        for l in check: a(l)
        a(f"s_cbranch_scc1 {D}")
    a.label(L)
    for l in load: a(l)
    a("s_waitcnt vmcnt(0)")
    for l in check: a(l)
    a(f"s_cbranch_scc1 {D}")
    a("s_sleep 1")
    a(f"s_add_u32 s{sSPIN}, s{sSPIN}, 1")
    a(f"s_cmp_lt_u32 s{sSPIN}, 0x8000")
    a(f"s_cbranch_scc1 {L}")
    a.label(D)

OOB = 17
def sel_voff(a, dst, src, turn):
    a(f"s_cmp_eq_u32 s{sLW}, {turn}")
    a("s_cselect_b64 s[62:63], -1, 0")
    a(f"v_cndmask_b32 v{dst}, v{OOB}, v{src}, s[62:63]")

def g1_bfrag_addrs(a, nhreg, d0, d1, d2, t0, t1):
    a(f"v_lshrrev_b32 v{t0}, 2, v1")
    a(f"v_mul_u32_u24 v{t0}, 448, v{t0}")
    a(f"v_and_b32 v{t1}, 3, v1")
    a(f"v_lshl_add_u32 v{t0}, v{t1}, 3, v{t0}")
    a(f"v_add_u32 v{t0}, 16384, v{t0}")
    a(f"v_bfe_u32 v{t1}, v1, 4, 1")
    a(f"v_lshlrev_b32 v{t1}, 5, v{t1}")
    a(f"s_mul_i32 s49, s{nhreg}, 192")
    a(f"v_add_u32 v{d0}, v{t0}, v{t1}")
    a(f"v_add_u32 v{d0}, s49, v{d0}")
    a(f"v_sub_u32 v{d1}, v{t0}, v{t1}")
    a(f"v_add_u32 v{d1}, s49, v{d1}")
    a(f"s_lshl_b32 s50, s{nhreg}, 5")
    a(f"v_xor_b32 v{d2}, s50, v{t1}")
    a(f"v_add_u32 v{d2}, v{t0}, v{d2}")
    a(f"v_add_u32 v{d2}, 384, v{d2}")


L_XN = 2 * G1_STAGE
ACC = 16
TC, TS, CC, SS, NSS = 128, 144, 160, 168, 176
PX, PF, PT, PM = 184, 192, 208, 224
DRE, DIM, FR, FT = 184, 200, 216, 232
sEP = 94
sMH, sNH = 100, 101
SLAB = 64 * 7168

L_K = L_XN + 18432
def consts(a):
    a("v_and_b32 v232, 31, v1")
    a("v_cvt_f32_u32 v232, v232")
    a(f"v_mul_f32 v232, {f2u(1.0/1024)}, v232")
    a("v_lshrrev_b32 v233, 5, v1")
    a("v_lshlrev_b32 v233, 2, v233")
    a(f"s_lshr_b32 s60, s{sWV}, 1")
    a("s_lshl_b32 s60, s60, 3")
    a(f"s_and_b32 s61, s{sWV}, 1")
    a("s_lshl_b32 s61, s61, 1")
    a("s_add_u32 s60, s60, s61")
    a("v_add_u32 v233, s60, v233")
    a("v_cvt_f32_u32 v233, v233")
    a("v_mul_f32 v233, v233, v232")
    a("v_add_f32 v232, v233, v232")
    a(f"v_cos_f32 v{TC}, v233"); a(f"v_cos_f32 v{TC+1}, v232")
    a(f"v_sin_f32 v{TS}, v233"); a(f"v_sin_f32 v{TS+1}, v232")
    a(f"v_mul_f32 v233, {f2u(32.0)}, v233"); a(f"v_mul_f32 v232, {f2u(32.0)}, v232")
    a("v_fract_f32 v233, v233"); a("v_fract_f32 v232, v232")
    a("v_cos_f32 v234, v233"); a("v_cos_f32 v235, v232")
    a("v_sin_f32 v236, v233"); a("v_sin_f32 v237, v232")
    a(f"s_lshr_b32 s60, s{sWV}, 1")
    a("s_lshl_b32 s60, s60, 10")
    a("s_lshl_b32 s61, s61, 2")
    a("s_add_u32 s60, s60, s61")
    a(f"s_add_u32 s60, s60, {L_K}")
    a("v_add_u32 v238, s60, v240")
    a(f"s_lshr_b32 s60, s{sWV}, 2")
    a("s_lshl_b32 s60, s60, 10")
    a(f"s_lshl_b32 s61, s{sLW}, 2")
    a("s_add_u32 s60, s60, s61")
    a(f"s_add_u32 s60, s60, {L_K + 8192}")
    a("v_add_u32 v239, s60, v240")
    a("v_cvt_pk_f16_f32 v234, v234, v235")
    a("v_cvt_pk_f16_f32 v235, v236, v237")
    a("v_cvt_pk_f16_f32 v236, -v236, -v237")
    a(f"ds_write_b64 v238, v[{TC}:{TC+1}]")
    a(f"ds_write_b64 v238, v[{TS}:{TS+1}] offset:4096")
    a("ds_write_b32 v239, v234")
    a("ds_write_b32 v239, v235 offset:2048")
    a("ds_write_b32 v239, v236 offset:4096")
    a("v_lshrrev_b32 v10, 2, v1"); a("v_mul_u32_u24 v10, 576, v10")
    a("v_and_b32 v11, 1, v1"); a("v_mul_u32_u24 v11, 288, v11")
    a("v_add_u32 v10, v10, v11"); a("v_bfe_u32 v11, v1, 1, 1"); a("v_lshl_add_u32 v10, v11, 3, v10")
    a(f"s_lshl_b32 s60, s{sWV}, 4"); a(f"s_add_u32 s60, s60, {L_XN}"); a("v_add_u32 v10, s60, v10")
    a("v_lshrrev_b32 v11, 2, v0"); a("v_mul_u32_u24 v11, 144, v11"); a("v_and_b32 v12, 3, v0")
    a("v_lshl_add_u32 v11, v12, 2, v11"); a(f"v_add_u32 v11, {L_XN}, v11")
    a("v_lshrrev_b32 v12, 4, v0"); a("v_lshlrev_b32 v12, 6, v12")
    a("v_bfe_u32 v13, v0, 1, 1"); a("v_lshl_add_u32 v12, v13, 5, v12")
    a("v_bfe_u32 v13, v0, 2, 2"); a("v_lshl_add_u32 v12, v13, 3, v12")
    a("v_and_b32 v13, 1, v0"); a("v_lshl_add_u32 v12, v13, 2, v12"); a(f"v_add_u32 v12, {L_U}, v12")
    a(f"s_lshl_b32 s60, s{sWV}, 3")
    a(f"s_add_u32 s60, s60, {L_ST8}")
    a(f"v_mov_b32 v{PM+6}, s60")
    a(f"v_mov_b32 v{PM+7}, 0x3f803f80")

def helper_only(a, fn):
    if fn is None: return
    lab = a.uid("ho")
    a(f"s_cmp_lt_u32 s{sWV}, 4")
    a(f"s_cbranch_scc1 {lab}")
    fn()
    a.label(lab)

def startup(a, ins):
    m, s, t0, t1 = PM, PM + 1, PM + 2, PM + 3
    for q in range(8):
        a(f"v_dot2_f32_bf16 v{m}, v{PX+q}, v{PM+7}, {'0' if q == 0 else 'v%d' % m}")
        a(f"v_dot2_f32_bf16 v{s}, v{PX+q}, v{PX+q}, {'0' if q == 0 else 'v%d' % s}")
    fill = []
    for q in range(8):
        fill += [f"v_lshlrev_b32 v{PF+2*q}, 16, v{PX+q}", f"v_and_b32 v{PF+1+2*q}, 0xffff0000, v{PX+q}"]
    for _ in range(3): a(fill.pop(0))
    for pat in ("quad_perm:[1,0,3,2]", "quad_perm:[2,3,0,1]", "row_half_mirror", "row_mirror"):
        for v in (m, s): a(f"v_add_f32_dpp v{v}, v{v}, v{v} {pat} row_mask:0xf bank_mask:0xf")
        a(fill.pop(0))
    for sw in ("v_permlane16_swap_b32", "v_permlane32_swap_b32"):
        a(f"v_mov_b32 v{t0}, v{m}"); a(f"v_mov_b32 v{t1}, v{s}")
        a(fill.pop(0)); a(fill.pop(0))
        a(f"{sw} v{t0}, v{m}"); a(f"{sw} v{t1}, v{s}")
        a(f"v_add_f32 v{m}, v{t0}, v{m}"); a(f"v_add_f32 v{s}, v{t1}, v{s}")
    a(f"v_mul_f32 v{m}, {f2u(1.0/1024)}, v{m}")
    a(f"v_mul_f32 v{s}, {f2u(1.0/1024)}, v{s}")
    a(f"v_fma_f32 v{s}, -v{m}, v{m}, v{s}")
    a(f"v_max_f32 v{s}, 0, v{s}")
    a(f"v_cvt_pk_bf16_f32 v{s}, v{m}, v{s}")
    a(f"v_lshlrev_b32 v{m}, 16, v{s}")
    a(f"v_and_b32 v{s}, 0xffff0000, v{s}")
    a(f"v_add_f32 v{s}, {f2u(1e-5)}, v{s}")
    a(f"v_cvt_pk_bf16_f32 v{s}, v{s}, v{s}")
    a(f"v_and_b32 v{s}, 0xffff0000, v{s}")
    a(f"v_sqrt_f32 v{s}, v{s}")
    a(fill.pop(0))
    a(f"v_cvt_pk_bf16_f32 v{s}, v{s}, v{s}")
    a(f"v_and_b32 v{s}, 0xffff0000, v{s}")
    a(f"v_rcp_f32 v{t0}, v{s}")
    while fill: a(fill.pop(0))
    a(f"v_mul_f32_e64 v{t1}, -v{m}, v{t0}")
    a(f"ds_write_b64 v{PM+6}, v[{m}:{s}]")
    for q in range(8):
        P = f"v[{PF+2*q}:{PF+2*q+1}]"
        a(f"v_pk_fma_f32 {P}, {P}, v[{t0}:{t1}], v[{t0}:{t1}] op_sel:[0,0,1] op_sel_hi:[1,0,1]")
    for q in range(8): a(f"v_cvt_pk_bf16_f32 v{PX+q}, v{PF+2*q}, v{PF+2*q+1}")
    a(f"ds_write_b64 v10, v[{PX}:{PX+1}]")
    a(f"ds_write_b64 v10, v[{PX+2}:{PX+3}] offset:144")
    a(f"ds_write_b64 v10, v[{PX+4}:{PX+5}] offset:9216")
    a(f"ds_write_b64 v10, v[{PX+6}:{PX+7}] offset:9360")
    helper_only(a, ins["ln"])
    a(f"s_mov_b32 s60, {f2u(0.7071067811865476)}")
    a("s_mov_b32 s61, s60")
    a("s_waitcnt lgkmcnt(0)")
    stamp(a, 16); stamp(a, 20, wave=4)
    a("s_barrier")
    for s1 in range(8): a(f"ds_read_b32 v{PX+s1}, v11 offset:{16*s1}")
    a("s_waitcnt lgkmcnt(0)")
    for q in range(8):
        a(f"v_lshlrev_b32 v{PF+2*q}, 16, v{PX+q}")
        a(f"v_and_b32 v{PF+1+2*q}, 0xffff0000, v{PX+q}")
    X = lambda s: f"v[{PF+2*s}:{PF+1+2*s}]"
    T = lambda i: f"v[{PT+2*i}:{PT+1+2*i}]"
    NEG = "neg_lo:[0,1] neg_hi:[0,1]"
    for l in [f"v_pk_add_f32 {T(0)}, {X(0)}, {X(4)}", f"v_pk_add_f32 {T(1)}, {X(0)}, {X(4)} {NEG}",
              f"v_pk_add_f32 {T(2)}, {X(2)}, {X(6)}", f"v_pk_add_f32 {T(3)}, {X(2)}, {X(6)} {NEG}",
              f"v_pk_add_f32 {T(4)}, {X(1)}, {X(5)}", f"v_pk_add_f32 {T(5)}, {X(1)}, {X(5)} {NEG}",
              f"v_pk_add_f32 {T(6)}, {X(3)}, {X(7)}", f"v_pk_add_f32 {T(7)}, {X(3)}, {X(7)} {NEG}",
              f"v_pk_add_f32 {X(0)}, {T(0)}, {T(2)}", f"v_pk_add_f32 {X(4)}, {T(0)}, {T(2)} {NEG}",
              f"v_pk_add_f32 {X(1)}, {T(4)}, {T(6)}", f"v_pk_add_f32 {X(5)}, {T(6)}, {T(4)} {NEG}",
              f"v_pk_add_f32 {X(2)}, {T(5)}, {T(7)} {NEG}", f"v_pk_add_f32 {X(3)}, {T(5)}, {T(7)}",
              f"v_pk_add_f32 {T(0)}, {X(0)}, {X(1)}", f"v_pk_add_f32 {T(2)}, {X(0)}, {X(1)} {NEG}",
              f"v_pk_fma_f32 {T(4)}, {X(2)}, s[60:61], {T(1)}",
              f"v_pk_fma_f32 {T(5)}, {X(3)}, s[60:61], {T(3)} neg_lo:[1,0,1] neg_hi:[1,0,1]",
              f"v_pk_fma_f32 {T(6)}, {X(2)}, s[60:61], {T(1)} neg_lo:[1,0,0] neg_hi:[1,0,0]",
              f"v_pk_fma_f32 {T(7)}, {X(3)}, s[60:61], {T(3)} neg_lo:[1,0,0] neg_hi:[1,0,0]"]: a(l)
    srcs = [PT+0, PT+4, PT+8, PT+10, PF+8, PF+10, PT+12, PT+14]
    for k, sx in enumerate(srcs): a(f"v_cvt_pk_f16_f32 v{PX+k}, v{sx}, v{sx+1}")
    for k in range(8): a(f"ds_write_b32 v12, v{PX+k} offset:{2048*k}")
    helper_only(a, ins["r8"])

def fft(a):
    URE, UIM = FR, FR + 8
    for part in range(2):
        for kk in range(2):
            for hh in range(2):
                d = URE + part * 8 + kk * 4 + hh * 2
                a(f"ds_read_b64_tr_b16 v[{d}:{d+1}], v13 offset:{part*2048 + kk*1024 + hh*512}")
    a("s_waitcnt lgkmcnt(0)")
    for i in range(8):
        a(f"v_and_b32 v{UIM+i}, s56, v{UIM+i}")
        a(f"v_xor_b32 v{UIM+i}, s57, v{UIM+i}")
    Cc = lambda kk: f"v[{CC+4*kk}:{CC+3+4*kk}]"
    Ss = lambda kk: f"v[{SS+4*kk}:{SS+3+4*kk}]"
    NS = lambda kk: f"v[{NSS+4*kk}:{NSS+3+4*kk}]"
    Dre = f"v[{DRE}:{DRE+15}]"; Dim = f"v[{DIM}:{DIM+15}]"
    def cplx():
        R = lambda kk: f"v[{URE+4*kk}:{URE+3+4*kk}]"
        I = lambda kk: f"v[{UIM+4*kk}:{UIM+3+4*kk}]"
        M = "v_mfma_f32_32x32x16_f16"
        a(f"{M} {Dre}, {R(0)}, {Cc(0)}, 0")
        a(f"{M} {Dim}, {R(0)}, {NS(0)}, 0")
        a(f"{M} {Dre}, {R(1)}, {Cc(1)}, {Dre}")
        a(f"{M} {Dim}, {R(1)}, {NS(1)}, {Dim}")
        a(f"{M} {Dre}, {I(0)}, {Ss(0)}, {Dre}")
        a(f"{M} {Dim}, {I(0)}, {Cc(0)}, {Dim}")
        a(f"{M} {Dre}, {I(1)}, {Ss(1)}, {Dre}")
        a(f"{M} {Dim}, {I(1)}, {Cc(1)}, {Dim}")
    cplx()
    a.nop(12)
    for r in range(0, 16, 2):
        P = lambda bb: f"v[{bb+r}:{bb+r+1}]"
        t = FT + (r & 2) * 2
        a(f"v_pk_mul_f32 v[{t}:{t+1}], {P(DRE)}, {P(TC)}")
        a(f"v_pk_mul_f32 v[{t+2}:{t+3}], {P(DIM)}, {P(TC)}")
        a(f"v_pk_fma_f32 v[{t}:{t+1}], {P(DIM)}, {P(TS)}, v[{t}:{t+1}]")
        a(f"v_pk_fma_f32 v[{t+2}:{t+3}], {P(DRE)}, {P(TS)}, v[{t+2}:{t+3}] neg_lo:[1,0,0] neg_hi:[1,0,0]")
        a(f"v_cvt_pk_f16_f32 v{URE+(r>>1)}, v{t}, v{t+1}")
        a(f"v_cvt_pk_f16_f32 v{UIM+(r>>1)}, v{t+2}, v{t+3}")
    a.nop(2)
    cplx()
    a.nop(12)
    O = FR
    for r in range(0, 16, 2):
        a(f"v_cvt_pk_bf16_f32 v{O+(r>>1)}, v{DRE+r}, v{DRE+1+r}")
        a(f"v_cvt_pk_bf16_f32 v{O+8+(r>>1)}, -v{DIM+r}, -v{DIM+1+r}")
    a.nop(2)
    for base in (O, O + 4, O + 8, O + 12):
        a(f"v_permlane32_swap_b32 v{base}, v{base+2}")
        a(f"v_permlane32_swap_b32 v{base+1}, v{base+3}")
    a.nop(1)
    for base in (O, O + 8):
        for i in range(4): a(f"v_permlane16_swap_b32 v{base+i}, v{base+4+i}")

def gen(a):
    a.label(NAME + "_kernel")
    a("s_cmp_ge_u32 s2, 256")
    a("s_cbranch_scc1 L_end")
    a("s_load_dwordx8 s[48:55], s[0:1], 0")
    if CPF:
        a("s_getpc_b64 s[92:93]")
        a.label("L_pc0")
        a(f"s_sub_u32 s92, s92, L_pc0-{NAME}_kernel")
        a("s_subb_u32 s93, s93, 0")
        a("s_lshr_b32 s94, s2, 3")
        a("s_lshl_b32 s94, s94, 10")
        a("v_lshlrev_b32 v10, 7, v0")
        a("v_add_u32 v10, s94, v10")
        a(f"v_min_u32 v10, L_end-{NAME}_kernel, v10")
        a("v_cmp_gt_u32 vcc, 8, v0")
        a("s_and_saveexec_b64 s[94:95], vcc")
        a("s_cbranch_execz L_noct")
        a("global_load_dword v243, v10, s[92:93]")
        a.label("L_noct")
        a("s_mov_b64 exec, -1")
    a("s_load_dwordx8 s[56:63], s[0:1], 48")
    a("s_load_dwordx2 s[78:79], s[0:1], 80")
    a("s_memrealtime s[98:99]")
    a("v_and_b32 v1, 63, v0")
    a("v_lshrrev_b32 v2, 6, v0")
    a("v_lshlrev_b32 v19, 4, v1")
    a(f"v_readfirstlane_b32 s{sWV}, v2")
    a(f"s_and_b32 s{sTILE}, s2, 3")
    a(f"s_lshl_b32 s{sTILE}, s{sTILE}, 2")
    a("s_bfe_u32 s80, s2, 0x20003")
    a(f"s_add_u32 s{sTILE}, s{sTILE}, s80")
    a(f"s_bfe_u32 s{sKH}, s2, 0x10002")
    a(f"s_lshr_b32 s{sC8}, s2, 5")
    a(f"s_lshl_b32 s{sCT}, s{sKH}, 3")
    a(f"s_add_u32 s{sCT}, s{sCT}, s{sC8}")
    a(f"s_lshr_b32 s{sT1}, s{sTILE}, 1")
    a(f"s_and_b32 s{sJH}, s{sTILE}, 1")
    a(f"s_and_b32 s{sLW}, s{sWV}, 3")
    a(f"s_lshl_b32 s80, s{sWV}, 8")
    a("s_add_u32 s80, s80, s2")
    a("s_lshl_b32 s80, s80, 11")
    a("s_waitcnt lgkmcnt(0)")
    srd(a, S_X, 48, 49, 4 * MB)
    a(f"buffer_load_dwordx4 v[{PX}:{PX+3}], v19, {SR(S_X)}, s80 offen")
    a(f"buffer_load_dwordx4 v[{PX+4}:{PX+7}], v19, {SR(S_X)}, s80 offen offset:1024")
    srd(a, S_W1, 56, 57, 1024 * 3584 * 2)
    a("v_mov_b32 v240, v19")
    srd(a, S_W2, 58, 59, 1024 * 3584 * 2)
    srd(a, S_OUT, 60, 61, 4 * MB)
    srd(a, S_CR, 50, 51, 8 * MB)
    srd(a, S_CI, 52, 53, 8 * MB)
    srd(a, S_HF, 78, 79, 16 * MB, HF_OFF)
    srd(a, S_AP, 78, 79, 8 * MB, AP_OFF)
    srd(a, S_MISC, 78, 79, 16 * MB, MISC_OFF)
    srd(a, S_DBG, 62, 63, 256)
    if STAMP:
        srd(a, 68, 78, 79, 256 * NST * 4, 200 * MB)
        a(f"s_mul_i32 s72, s2, {NST*4}")
    a(f"s_lshl_b32 s48, s{sTILE}, 1")
    a(f"s_add_u32 s48, s48, s{sKH}")
    a("s_lshl_b32 s48, s48, 8")
    a(f"s_add_u32 s78, s48, {HFLAG_G}")
    a(f"s_lshl_b32 s48, s{sC8}, 5")
    a("s_add_u32 s79, s78, s48")
    a(f"s_lshl_b32 s48, s{sWV}, 2")
    a("s_add_u32 s79, s79, s48")
    a(f"s_lshr_b32 s{sMH}, s{sLW}, 1")
    a(f"s_and_b32 s{sNH}, s{sLW}, 1")
    a("v_mov_b32 v242, v19")
    a("v_mov_b32 v58, 0")
    stamp(a, 0)
    a(f"s_cmp_ge_u32 s{sWV}, 4")
    a("s_cbranch_scc1 L_hpre")
    consumer_pre(a)
    a("s_branch L_join")
    a.label("L_hpre")
    H = Helper(a)
    H.pre()
    a.label("L_join")
    consts(a)
    a(f"s_cmp_ge_u32 s{sWV}, 4")
    a("s_cbranch_scc1 L_hw")
    a("s_waitcnt vmcnt(1)")
    a("s_branch L_hw2")
    a.label("L_hw")
    H.after_x()
    a.label("L_hw2")
    stamp(a, 11); stamp(a, 19, wave=4)
    startup(a, H.inserts())
    a(f"s_cmp_ge_u32 s{sWV}, 4")
    a("s_cbranch_scc0 L_consumer")
    H.main()
    shared_epilogue(a)
    gen_consumer(a)
    a.label("L_end")
    a("s_endpgm")

CPF = OPT.get("cpf", "1") == "1"
def code_touch(a, wave, vt=10, vd=243):
    if not CPF: return None
    lab = a.uid("ct")
    a(f"s_cmp_lg_u32 s{sLW}, {wave}")
    a(f"s_cbranch_scc1 {lab}")
    a("s_getpc_b64 s[60:61]")
    here = a.uid("pc")
    a.label(here)
    a(f"s_sub_u32 s60, s60, {here}-{NAME}_kernel")
    a("s_subb_u32 s61, s61, 0")
    a("s_lshr_b32 s62, s2, 3")
    a("s_lshl_b32 s62, s62, 10")
    a(f"v_lshlrev_b32 v{vt}, 7, v1")
    a(f"v_add_u32 v{vt}, s62, v{vt}")
    a(f"v_min_u32 v{vt}, L_end-{NAME}_kernel, v{vt}")
    a("s_mov_b64 exec, 0xff")
    a(f"global_load_dword v{vd}, v{vt}, s[60:61]")
    a("s_mov_b64 exec, -1")
    a.label(lab)

def w1_touch_voff(a, d):
    a("v_mul_u32_u24 v10, 4682, v1")
    a("v_lshrrev_b32 v10, 16, v10")
    a("v_mul_u32_u24 v11, 14, v10")
    a("v_sub_u32 v11, v1, v11")
    a("v_lshrrev_b32 v12, 1, v10")
    a("v_and_b32 v10, 1, v10")
    a("v_lshl_add_u32 v10, v10, 3, v12")
    a(f"s_mov_b32 s56, {SLAB}")
    a("v_mul_lo_u32 v10, v10, s56")
    a(f"v_lshl_add_u32 v{d}, v11, 7, v10")
    a("s_mul_i32 s56, s2, 1792")
    a(f"v_add_u32 v{d}, s56, v{d}")
    a("v_cmp_gt_u32 vcc, 56, v1")
    a("v_bfrev_b32 v10, 1")
    a("s_nop 0")
    a(f"v_cndmask_b32 v{d}, v10, v{d}, vcc")

class Helper:
    def __init__(self, a):
        self.a = a
        self.vm = VM(a)
        self.vm.ops = ["x", "x"] + (["s"] * 0)
    def issueA(self, n, qs=range(4)):
        a, vm = self.a, self.vm
        slot = (n % 3) * G1_STAGE
        for q in qs:
            a(f"s_add_u32 m0, s96, {slot + q*1024}")
            a(f"s_add_u32 s55, s{84 if n < 8 else 85}, {q*16384 + n*128}")
            vm.op(f"buffer_load_dwordx4 v2, {SR(S_X)}, s55 offen lds", f"st{n}")
    def issueB(self, n, qs=range(8)):
        a, vm = self.a, self.vm
        slot = (n % 3) * G1_STAGE
        a("s_mov_b32 exec_hi, 0xffffff")
        for q in qs:
            roff = (8 * (q >> 1) + 2 * (q & 1)) * 7168
            a(f"s_add_u32 m0, s54, {slot + q*896}")
            if n < 8: a(f"s_add_u32 s55, s83, {n*SLAB + roff}")
            else: a(f"s_sub_u32 s55, {n*SLAB + roff}, s83")
            vm.op(f"buffer_load_dwordx4 v{3 + ((q >> 1) & 1)}, {SR(S_W1)}, s55 offen {W1F} lds", f"st{n}")
        a("s_mov_b64 exec, -1")
    def pre(self):
        a, vm = self.a, self.vm
        a("v_lshrrev_b32 v10, 3, v1")
        a("v_and_b32 v11, 7, v1")
        a("v_xor_b32 v11, v11, v10")
        a("v_lshlrev_b32 v2, 19, v10")
        a("v_lshl_add_u32 v2, v11, 4, v2")
        a(f"s_lshl_b32 s48, s{sJH}, 4")
        a(f"s_lshl_b32 s49, s{sLW}, 2")
        a("s_add_u32 s48, s48, s49")
        a("s_lshl_b32 s48, s48, 3")
        a(f"s_add_u32 s48, s48, s{sT1}")
        a("s_lshl_b32 s48, s48, 11")
        a(f"s_lshr_b32 s82, s{sTILE}, 3")
        a(f"s_mul_i32 s83, s82, {8*SLAB}")
        a("s_lshl_b32 s82, s82, 10")
        a("s_add_u32 s84, s48, s82")
        a("s_sub_u32 s85, s48, s82")
        a(f"s_lshl_b32 s96, s{sLW}, 12")
        if TV == 'a': self.issueA(0, range(2))
        a(f"s_lshl_b32 s48, s2, 3")
        a(f"s_add_u32 s48, s48, s{sLW}")
        a("s_cmp_lg_u32 s48, 1")
        a("s_cbranch_scc1 L_noepoch")
        a("v_mov_b32 v10, 0")
        a("s_or_b32 s48, s98, 1")
        a("v_mov_b32 v11, s48")
        a("s_mov_b64 exec, 1")
        a(f"buffer_store_dword v11, v10, {SR(S_DBG)}, 0 offen sc1")
        a("s_mov_b64 exec, -1")
        a.label("L_noepoch")
        a(f"s_lshr_b32 s49, s{sLW}, 1")
        a("s_lshl_b32 s49, s49, 5")
        a(f"s_and_b32 s50, s{sLW}, 1")
        a("s_lshl_b32 s50, s50, 2")
        a("s_add_u32 s49, s49, s50")
        a("s_mul_i32 s49, s49, 7168")
        a(f"s_mul_i32 s50, s{sCT}, 448")
        a("s_add_u32 s49, s49, s50")
        a("v_cmp_lt_u32 vcc, 27, v1")
        a("v_subrev_u32 v10, 28, v1")
        a(f"v_mov_b32 v11, 7168")
        a("v_cndmask_b32 v10, v1, v10, vcc")
        a("v_cndmask_b32 v11, 0, v11, vcc")
        a("v_add_u32 v11, s49, v11")
        a("v_lshl_add_u32 v3, v10, 4, v11")
        a("v_xor_b32 v10, 2, v10")
        a("v_lshl_add_u32 v4, v10, 4, v11")
        a(f"s_mul_i32 s54, s{sLW}, 7168")
        a("s_add_u32 s54, s54, 16384")
        a(f"s_and_b32 s87, s{sTILE}, 7")
    def late_setup(self):
        a = self.a
        w1_touch_voff(a, 14)
        a(f"v_bfrev_b32 v{OOB}, 1")
        a("v_lshlrev_b32 v15, 7, v1")
        a("v_cmp_gt_u32 vcc, 56, v1")
        a(f"s_and_b32 s59, s{sLW}, 1")
        a("s_mul_i32 s80, s2, 28672")
        a(f"v_cndmask_b32 v15, v{OOB}, v15, vcc")
        g1_bfrag_addrs(a, 59, 36, 37, 38, 10, 11)
        a(f"s_lshr_b32 s60, s{sLW}, 1")
        a(f"s_mul_i32 s61, s60, {32*448}")
        for r in (36, 37, 38): a(f"v_add_u32 v{r}, s61, v{r}")
        a("v_lshrrev_b32 v10, 4, v1")
        a("v_lshlrev_b32 v10, 4, v10")
        a("s_mul_i32 s60, s60, 896")
        a(f"s_add_u32 s60, s60, {L_CS4}")
        a("s_mul_i32 s61, s59, 384")
        a("s_add_u32 s61, s61, s60")
        a("v_add_u32 v39, s61, v10")
        a("s_lshl_b32 s61, s59, 6")
        a("s_add_u32 s61, s61, 768")
        a("s_add_u32 s61, s61, s60")
        a("v_add_u32 v40, s61, v10")
        a(f"s_lshl_b32 s86, s{sCT}, 4")
        a(f"s_add_u32 s86, s86, s{sTILE}")
        a("s_mul_i32 s86, s86, 896")
        a(f"s_add_u32 s86, s86, {CS_G}")
        a(f"s_and_b32 s87, s{sTILE}, 7")
        for i in range(4): a(f"v_mov_b32 v{44+i}, 0x3f803f80")
        a("s_and_b32 s60, s2, 7")
        a("s_lshl_b32 s60, s60, 1")
        a("s_lshr_b32 s61, s2, 7")
        a("s_add_u32 s60, s60, s61")
        a("s_bfe_u32 s61, s2, 0x40003")
        a("s_lshl_b32 s90, s60, 10")
        a("s_lshl_b32 s91, s61, 6")
        a("s_add_u32 s90, s90, s91")
        a("s_lshl_b32 s95, s60, 20")
        a("s_lshr_b32 s62, s61, 1")
        a("s_lshl_b32 s62, s62, 10")
        a("s_add_u32 s95, s95, s62")
        a("s_and_b32 s62, s61, 1")
        a("s_lshl_b32 s62, s62, 7")
        a("s_add_u32 s95, s95, s62")
        a(f"s_lshl_b32 s62, s{sLW}, 14")
        a("s_add_u32 s95, s95, s62")
        a(f"s_add_u32 s95, s95, {112*8192}")
        a("s_lshl_b32 s91, s60, 7")
        a("s_lshl_b32 s61, s61, 2")
        a("s_add_u32 s91, s91, s61")
        a(f"s_add_u32 s91, s91, {RS_G}")
        a(f"s_lshl_b32 s92, s{sCT}, 7")
        a(f"s_lshl_b32 s61, s{sTILE}, 2")
        a("s_add_u32 s92, s92, s61")
        a(f"s_add_u32 s92, s92, {RC_G}")
        a("s_lshl_b32 s93, s2, 2")
        a(f"s_add_u32 s93, s93, {QF_G}")
        a("v_cmp_gt_u32 vcc, 16, v1")
        a(f"s_lshl_b32 s60, s{sTILE}, 7")
        a(f"s_add_u32 s60, s60, {RS_G}")
        a(f"s_lshl_b32 s61, s{sCT}, 7")
        a(f"s_add_u32 s61, s61, {RC_G}")
        a("v_mov_b32 v62, s60")
        a("v_mov_b32 v63, s61")
        a("v_and_b32 v10, 15, v1")
        a("v_cndmask_b32 v62, v63, v62, vcc")
        a("v_lshl_add_u32 v62, v10, 2, v62")
        a("v_lshlrev_b32 v41, 6, v10")
        a("v_bfe_u32 v10, v1, 4, 1")
        a("v_lshl_add_u32 v41, v10, 5, v41")
        a("v_lshrrev_b32 v11, 5, v1")
        a("v_lshl_add_u32 v41, v11, 4, v41")
        a("v_and_b32 v12, 7, v1")
        a("v_lshlrev_b32 v42, 20, v12")
        a("v_lshl_add_u32 v42, v11, 6, v42")
        a("v_bfe_u32 v10, v1, 3, 2")
        a("v_lshl_add_u32 v42, v10, 3, v42")
        a("v_lshlrev_b32 v43, 4, v12")
        a("v_lshl_add_u32 v43, v11, 13, v43")
        a("v_lshl_add_u32 v43, v10, 8, v43")
        a(f"s_lshl_b32 s89, s{sLW}, 20")
        a("s_lshl_b32 s60, s2, 11")
        a("s_add_u32 s89, s89, s60")
        a(f"s_add_u32 s88, s89, {4*MB}")
    def after_x(self):
        self.vm.wait("x")
        stamp(self.a, 23, wave=4)
        self.issueA(0, range(2 if TV == 'a' else 0, 4))
        self.issueB(0, range(4 if TV == 'a' else 3))
    def inserts(self):
        vm = self.vm; a = self.a
        def r8():
            a(f"v_add_u32 v11, {L_K}, v240")
            for q in range(14): a(f"ds_read_b128 v[{TC+4*q}:{TC+4*q+3}], v11 offset:{q*1024}")
            self.issueA(1); self.issueB(1)
            vm.op(f"buffer_load_dword v59, v58, {SR(S_DBG)}, 0 offen sc1", "ep")
        return {"ln": lambda: self.issueB(0, range(4 if TV == 'a' else 3, 8)), "r8": r8}
    def main(self):
        a, vm = self.a, self.vm
        def job_colsum(n):
            lab = a.uid("cs")
            a(f"s_cmp_lg_u32 s87, {n}")
            a(f"s_cbranch_scc1 {lab}")
            slot = (n % 3) * G1_STAGE
            for r in range(3): a(f"v_add_u32 v{10+r}, {slot}, v{36+r}")
            for i in range(7):
                for hh in range(2):
                    d = 64 + 4 * i + 2 * hh
                    if i < 6: a(f"ds_read_b64_tr_b16 v[{d}:{d+1}], v{10 + (i & 1)} offset:{16*hh*448 + i*32}")
                    else: a(f"ds_read_b64_tr_b16 v[{d}:{d+1}], v12 offset:{16*hh*448}")
            a("s_waitcnt lgkmcnt(0)")
            for i in range(7):
                a(f"v_mfma_f32_16x16x32_bf16 v[{92+4*i}:{95+4*i}], v[{64+4*i}:{67+4*i}], v[44:47], 0")
            a("s_mov_b32 exec_lo, 0x00010001")
            a("s_mov_b32 exec_hi, 0x00010001")
            a.nop(6)
            for i in range(6): a(f"ds_write_b128 v39, v[{92+4*i}:{95+4*i}] offset:{64*i}")
            a("ds_write_b128 v40, v[116:119]")
            a("s_mov_b64 exec, -1")
            a.label(lab)
        def job_csstore():
            a(f"v_add_u32 v11, {L_CS4}, v19")
            a("ds_read_b128 v[28:31], v11")
            a("ds_read_b128 v[32:35], v11 offset:896")
            sel_voff(a, 18, 19, 1)
            a("s_waitcnt lgkmcnt(0)")
            a("v_pk_add_f32 v[28:29], v[28:29], v[32:33]")
            a("v_pk_add_f32 v[30:31], v[30:31], v[34:35]")
            a("s_mov_b32 exec_hi, 0xffffff")
            vm.op(f"buffer_store_dwordx4 v[28:31], v18, {SR(S_MISC)}, s86 offen sc1", "pub")
            a("s_mov_b64 exec, -1")
        def job_spf(srdb, sreg, k0, k1):
            for k in range(k0, k1): a(f"s_buffer_load_dword s100, {SR(srdb)}, s{sreg} offset:{k*128}")
        def job_pub0():
            a(f"v_add_u32 v20, {L_ST8}, v19")
            a("ds_read_b128 v[48:51], v20")
            a("s_waitcnt lgkmcnt(0)")
        def job_statstore():
            sel_voff(a, 18, 19, 0)
            a("s_mov_b64 exec, 15")
            vm.op(f"buffer_store_dwordx4 v[48:51], v18, {SR(S_MISC)}, s90 offen offset:{STAT_G} sc1", "pub")
            a("s_mov_b64 exec, -1")
        def job_epoch():
            vm.wait("ep")
            spin(a, "ep", [f"buffer_load_dword v59, v58, {SR(S_DBG)}, 0 offen sc1"],
                 [f"v_readfirstlane_b32 s{sEP}, v59", "s_nop 0", f"s_cmp_lg_u32 s{sEP}, 0"], first_loaded=True)
            a(f"v_mov_b32 v60, s{sEP}")
        def job_ap(k):
            reg = (FR if k < 4 else 184) + 4 * (k & 3)
            so = 88 if k < 4 else 89
            if (k & 3) == 2: a(f"s_add_u32 s{so}, s{so}, {256*2048}")
            vm.op(f"buffer_store_dwordx4 v[{reg}:{reg+3}], v41, {SR(S_AP)}, s{so} offen offset:{(k & 1)*1024} sc1", "pub")
        def job_cload():
            a(f"s_lshl_b32 s60, s{sLW}, 7")
            a("s_lshl_b32 s61, s2, 12")
            a("s_add_u32 s60, s60, s61")
            for i, srdc in enumerate((S_CR, S_CI)):
                vm.op(f"buffer_load_dwordx2 v[{20+4*i}:{21+4*i}], v42, {SR(srdc)}, s60 offen nt", "cl")
                vm.op(f"buffer_load_dwordx2 v[{22+4*i}:{23+4*i}], v42, {SR(srdc)}, s60 offen offset:32 nt", "cl")
        def job_cstore():
            vm.wait("cl")
            vm.op(f"buffer_store_dwordx4 v[20:23], v43, {SR(S_HF)}, s95 offen sc1", "pub")
            a("s_add_u32 s95, s95, 65536")
            vm.op(f"buffer_store_dwordx4 v[24:27], v43, {SR(S_HF)}, s95 offen sc1", "pub")
        def job_ready():
            li = lambda t: max(i for i, x in enumerate(vm.ops) if x == t)
            assert li("pub") < li(f"st{EV[2]}"), "pub not covered"
            sel_voff(a, 18, 58, 0)
            a("s_mov_b64 exec, 1")
            for sr_ in (91, 92):
                vm.op(f"buffer_store_dword v60, v18, {SR(S_MISC)}, s{sr_} offen sc1", "rdy")
            a("s_mov_b64 exec, -1")
        CHK_LD = [f"buffer_load_dword v63, v62, {SR(S_MISC)}, 0 offen sc1"]
        CHK = [f"v_cmp_ne_u32 vcc, s{sEP}, v63", "s_nop 1", "s_cmp_eq_u64 vcc, 0"]
        QLD = [f"buffer_load_dwordx4 v[52:55], v19, {SR(S_MISC)}, s97 offen sc1"]
        QCHK = [f"v_xor_b32 v{52+i}, s{sEP}, v{52+i}" for i in range(4)] + \
              ["v_or_b32 v52, v52, v53", "v_or3_b32 v52, v52, v54, v55", "v_cmp_ne_u32 vcc, 0, v52", "s_nop 1", "s_cmp_eq_u64 vcc, 0"]
        def job_pload():
            for l in CHK_LD: vm.op(l, "pl")
        def job_gather():
            vm.wait("pl")
            spin(a, "pp", CHK_LD, CHK, first_loaded=True)
            a(f"s_lshl_b32 s60, s{sTILE}, 10")
            a(f"s_lshl_b32 s61, s{sLW}, 8")
            a("s_add_u32 s60, s60, s61")
            a(f"s_add_u32 m0, s61, {L_STAT}")
            a("v_lshlrev_b32 v10, 2, v1")
            vm.op(f"buffer_load_dword v10, {SR(S_MISC)}, s60 offen sc1 lds", "g")
            a("v_lshrrev_b32 v10, 4, v1")
            a("v_mul_u32_u24 v10, 3584, v10")
            a("v_and_b32 v11, 15, v1")
            a("v_lshl_add_u32 v10, v11, 4, v10")
            a(f"s_mul_i32 s60, s{sCT}, {16*896}")
            a(f"s_mul_i32 s61, s{sLW}, 224")
            a("s_add_u32 s60, s60, s61")
            a(f"s_add_u32 s60, s60, {CS_G}")
            for p in range(4):
                vm.op(f"buffer_load_dwordx4 v[{20+4*p}:{23+4*p}], v10, {SR(S_MISC)}, s60 offen offset:{896*p} sc1", "g")
            a(f"s_add_u32 s61, s61, {L_CSUM}")
            a("v_lshlrev_b32 v11, 4, v11")
            a("v_add_u32 v11, s61, v11")
        def job_gather2():
            vm.wait("g")
            for p in range(1, 4):
                a(f"v_pk_add_f32 v[20:21], v[20:21], v[{20+4*p}:{21+4*p}]")
                a(f"v_pk_add_f32 v[22:23], v[22:23], v[{22+4*p}:{23+4*p}]")
            for sw in ("v_permlane16_swap_b32", "v_permlane32_swap_b32"):
                for i in range(4): a(f"v_mov_b32 v{24+i}, v{20+i}")
                for i in range(4): a(f"{sw} v{24+i}, v{20+i}")
                a("v_pk_add_f32 v[20:21], v[20:21], v[24:25]")
                a("v_pk_add_f32 v[22:23], v[22:23], v[26:27]")
            a(f"v_mov_b32 v57, {L_ST8+64}")
            a("s_mov_b64 exec, 0x3fff")
            a("ds_write_b128 v11, v[20:23]")
            a("ds_write_b32 v57, v60")
            a("s_mov_b64 exec, -1")
        EV = [int(x) for x in OPT.get("ev", "4,6,11").split(",")]
        CATCH = int(OPT.get("catch", "15"))
        def w2touch(k):
            sel_voff(a, 18, 15, k)
            a(f"s_add_u32 s55, s80, {k*7168}")
            vm.op(f"buffer_load_dword v16, v18, {SR(S_W2)}, s55 offen", "touch")
        before = {0: [job_pub0], 13: [job_pload], 14: [job_gather]}
        after = {2: [job_epoch], 15: [job_gather2]}
        after.setdefault(EV[0], []).extend([lambda: w2touch(0), lambda: w2touch(1), job_cload])
        after.setdefault(8, []).extend([job_csstore, job_statstore, job_cstore])
        after.setdefault(EV[1], []).extend([lambda: w2touch(2)])
        after.setdefault(EV[2], []).extend([job_ready, lambda: w2touch(3), lambda: code_touch(a, 2, 10, 16)])
        assert EV[2] >= 11 and EV[1] <= 8
        units = [(st, i) for st in range(2, 16) for i in range(12)]
        skip = set(x + 1 for x in EV) if OPT.get("elastic", "0") == "1" else set()
        def issue_units(n):
            q = 0 if n in skip else CATCH
            todo = []
            while units and units[0][0] <= n + 2 and (len(todo) < q or units[0][0] <= n + 1):
                todo.append(units.pop(0))
            for st in sorted(set(t[0] for t in todo)):
                A = [i for s_, i in todo if s_ == st and i < 4]; B = [i - 4 for s_, i in todo if s_ == st and i >= 4]
                if A: self.issueA(st, A)
                if B: self.issueB(st, B)
        T2S = [int(x) for x in OPT.get("t2s", "0,2").split(",")]
        def w1t(k):
            sel_voff(a, 18, 14, k)
            a(f"s_mov_b32 s55, {(4 + 2*k)*SLAB}")
            vm.op(f"buffer_load_dword v16, v18, {SR(S_W1)}, s55 offen", "touch")
        for k in range(2): after.setdefault(T2S[k], []).insert(0, lambda k=k: w1t(k))
        after[0].insert(0, self.late_setup)
        after[0].append(lambda: job_colsum(0))
        stamp(a, 13, wave=4)
        for n in range(16):
            htrace(a)
            vm.wait(f"st{n}", " lgkmcnt(0)")
            htrace(a)
            a("s_barrier")
            htrace(a)
            for j in before.get(n, []): j()
            issue_units(n)
            htrace(a)
            if 0 < n < 8: job_colsum(n)
            for j in after.get(n, []): j()
        a("s_waitcnt lgkmcnt(0)")
        a("s_barrier")
        def g2_addr():
            a("v_add_u32 v232, s96, v240")
            a("v_lshrrev_b32 v10, 4, v1")
            a("v_and_b32 v11, 15, v1")
            a("v_lshlrev_b32 v12, 1, v10")
            a("v_xor_b32 v13, v11, v12")
            a("v_lshlrev_b32 v233, 11, v10")
            a("v_lshl_add_u32 v234, v13, 4, v233")
            a("v_xor_b32 v13, 8, v13")
            a("v_lshl_add_u32 v235, v13, 4, v233")
            a(f"v_add_u32 v235, {4*2048}, v235")
            a(f"s_lshl_b32 s60, s{sLW}, 15")
            a(f"s_lshl_b32 s61, s{sC8}, 8")
            a("s_add_u32 s60, s60, s61")
            a("v_add_u32 v233, s60, v234")
            a("v_add_u32 v234, s60, v235")
            a(f"s_lshl_b32 s60, s{sMH}, 13")
            a("v_subrev_u32 v232, s60, v232")
            a(f"s_lshl_b32 s60, s{sMH}, 16")
            a("v_subrev_u32 v228, s60, v233")
            a("v_subrev_u32 v229, s60, v234")
        a("s_add_u32 s84, s96, 16384")
        a(f"s_lshr_b32 s60, s{sLW}, 1")
        a("s_lshl_b32 s85, s60, 13")
        a(f"s_and_b32 s60, s{sLW}, 1")
        a("s_lshl_b32 s60, s60, 12")
        a("s_add_u32 s85, s85, s60")
        a(f"s_lshl_b32 s60, s{sKH}, 11")
        a("s_add_u32 s85, s85, s60")
        a(f"s_lshl_b32 s87, s{sTILE}, 20")
        a(f"s_mul_i32 s82, s{sKH}, {56*8192}")
        a("s_add_u32 s82, s82, s87")
        a("s_add_u32 s87, s87, s85")
        a(f"s_add_u32 s87, s87, {112*8192}")
        a(f"s_lshl_b32 s88, s{sT1}, 20")
        a(f"s_mul_i32 s83, s{sKH}, {1792*2048}")
        a(f"s_mul_i32 s90, s{sC8}, 7")
        a(f"s_add_u32 s90, s90, s{sMH}")
        vm.ops = []
        def g2B(slot, srdb, soff, tag, fl="", vb=233):
            a(f"s_add_u32 s55, {soff}, 16384")
            for q in range(4):
                a(f"s_add_u32 m0, s84, {slot + q*1024}")
                if q: a("s_nop 0")
                so = soff if q < 2 else "s55"
                if q == 0: a("s_nop 0")
                vm.op(f"buffer_load_dwordx4 v{vb + (q & 1)}, {SR(srdb)}, {so} offen {fl} lds", tag)
            if vb == 233: a(f"s_add_u32 {soff}, {soff}, 131072")
        def stB(n):
            a("s_lshl_b32 s91, s89, 16")
            a("s_add_u32 s91, s91, s83")
            g2B((n % 4) * G2_STAGE, S_W2, "s91", f"s{n}", W2F, vb=228)
            a("s_add_u32 s89, s89, 2")
            a("s_sub_u32 s92, s89, 56")
            a("s_cmp_ge_u32 s89, 56")
            a("s_cselect_b32 s89, s92, s89")
        def stA(n):
            a(f"s_add_u32 m0, s96, {(n % 4) * G2_STAGE}")
            a("s_lshl_b32 s91, s90, 13")
            a("s_add_u32 s91, s91, s82")
            for q in range(4):
                vm.op(f"buffer_load_dwordx4 v232, {SR(S_HF)}, s91 offen offset:{q*1024} sc1 lds", f"s{n}")
            a("s_add_u32 s90, s90, 2")
            a("s_sub_u32 s92, s90, 56")
            a("s_cmp_ge_u32 s90, 56")
            a("s_cselect_b32 s90, s92, s90")
        def stage(n):
            slot = (n % 4) * G2_STAGE
            if n >= 28:
                a(f"s_add_u32 m0, s85, {slot}")
                a("s_nop 0")
                for q in range(2):
                    vm.op(f"buffer_load_dwordx4 v240, {SR(S_HF)}, s87 offen offset:{q*1024} sc1 lds", f"s{n}")
                a("s_add_u32 s87, s87, 16384")
                g2B(slot, S_AP, "s88", f"s{n}", "sc1")
            else:
                stB(n); stA(n)
        a("s_mov_b32 s89, s90")
        a("v_lshrrev_b32 v12, 5, v1"); a("v_lshlrev_b32 v12, 8, v12")
        a("v_bfe_u32 v10, v1, 2, 2"); a("v_lshl_add_u32 v12, v10, 6, v12")
        a("v_bfe_u32 v10, v1, 4, 1"); a("v_lshl_add_u32 v12, v10, 5, v12")
        a("v_and_b32 v10, 3, v1"); a("v_lshl_add_u32 v12, v10, 3, v12")
        a(f"s_cmp_eq_u32 s{sLW}, 0")
        a("s_cselect_b32 s56, 0, -1")
        a(f"s_lshl_b32 s58, s{sLW}, 12")
        a(f"s_add_u32 s58, s58, {L_U}")
        a("s_mov_b32 s57, 0")
        a("s_lshl_b32 s59, s2, 11")
        a(f"s_lshl_b32 s60, s{sLW}, 20")
        a("s_add_u32 s60, s60, s59")
        a("s_mov_b32 s86, 0")
        a.label("L_fft")
        a("v_add_u32 v13, s58, v12")
        a(f"s_add_u32 s61, s60, {256*2048}")
        fft(a)
        for k in range(4):
            a(f"buffer_store_dwordx4 v[{FR+4*k}:{FR+4*k+3}], v41, {SR(S_AP)}, s{60 + (k >> 1)} offen offset:{(k & 1)*1024} sc1")
        a(f"s_cmp_eq_u32 s{sLW}, 0")
        a(f"s_cselect_b32 s58, {L_U+2048}, s58")
        a("s_cselect_b32 s57, 0, 0x80008000")
        a(f"s_sub_u32 s60, 8, s{sLW}")
        a(f"s_cmp_eq_u32 s{sLW}, 0")
        a("s_cselect_b32 s60, 4, s60")
        a("s_lshl_b32 s60, s60, 20")
        a("s_add_u32 s60, s60, s59")
        a("s_add_u32 s86, s86, 1")
        a("s_cmp_ge_u32 s86, 2")
        a("s_cbranch_scc1 L_fft_done")
        a("s_barrier")
        a("s_branch L_fft")
        a.label("L_fft_done")
        vm.ops += ["ap"] * 8
        g2_addr()
        for n in range(4): stB(n)
        a("v_mov_b32 v238, 0")
        a("v_and_b32 v10, 3, v1"); a("v_lshrrev_b32 v236, 2, v1"); a("v_and_b32 v236, 7, v236")
        a("v_lshlrev_b32 v236, 5, v236"); a("v_lshl_add_u32 v236, v10, 2, v236")
        sel_voff(a, 231, 238, 0)
        a(f"s_mov_b32 s97, {QF_G}")
        stamp(a, 14, wave=4)
        a("s_barrier")
        stamp(a, 15, wave=4)
        for n in range(3): stA(n)
        HLD = f"buffer_load_dword v237, v236, {SR(S_MISC)}, s78 offen sc1"
        HCHK = [f"v_cmp_ne_u32 vcc, s{sEP}, v237", "s_nop 1", "s_cmp_eq_u64 vcc, 0"]
        QLD2 = f"buffer_load_dwordx4 v[52:55], v240, {SR(S_MISC)}, s97 offen sc1"
        vm.op(HLD, "hl")
        LOOP_S, LOOP_E = 4, 20
        n = 0
        while n < 36:
            if n == LOOP_S:
                a("s_mov_b32 s86, 0")
                a.label("L_h_g2loop")
                for u in range(4):
                    a("s_waitcnt vmcnt(16)")
                    a("s_barrier")
                    stage(n + u + 3)
                a("s_add_u32 s86, s86, 1")
                a(f"s_cmp_lt_u32 s86, {(LOOP_E-LOOP_S)//4}")
                a("s_cbranch_scc1 L_h_g2loop")
                vm.ops = [f"s{LOOP_E}"] * 8 + [f"s{LOOP_E+1}"] * 8 + [f"s{LOOP_E+2}"] * 8
                n = LOOP_E
                continue
            vm.wait(f"s{n}")
            a("s_barrier")
            m = n + 3
            if n == 0:
                vm.wait("hl")
                spin(a, "hp", [HLD], HCHK, first_loaded=True)
                stA(3)
            elif m < 36:
                if m == 28:
                    vm.wait("ql")
                    spin(a, "qp", [QLD2], QCHK, first_loaded=True)
                stage(m)
            if n == 1:
                a("s_mov_b64 exec, 1")
                vm.op(f"buffer_store_dword v60, v231, {SR(S_MISC)}, s93 offen sc1", "qf")
                a("s_mov_b64 exec, -1")
            if m == 25: vm.op(QLD2, "ql")
            n += 1
        htrace_store(a)
        a("s_endpgm")

L_HAND = 2 * G2_STAGE
def epi_setup(role):
    L16 = 240
    return [
        "v_lshrrev_b32 v10, 4, v1", "v_lshlrev_b32 v10, 4, v10",
        f"s_mul_i32 s48, s{sNH}, 384", f"s_add_u32 s48, s48, {L_CSUM}", "v_add_u32 v11, s48, v10",
        f"s_lshl_b32 s48, s{sNH}, 6", f"s_add_u32 s48, s48, {L_CSUM+768}", "v_add_u32 v12, s48, v10",
        "v_and_b32 v10, 15, v1", "v_lshlrev_b32 v10, 3, v10",
        f"s_lshl_b32 s48, s{sMH}, 9", f"s_add_u32 s48, s48, {L_STAT + role*256}", "v_add_u32 v10, s48, v10",
        f"s_lshl_b32 s48, s{sMH}, 12", f"s_add_u32 s48, s48, {role*2048}", f"v_add_u32 v2, s48, v{L16}",
        f"s_add_u32 s48, s48, {3*G2_STAGE}", f"s_lshl_b32 s54, s{sNH}, 3", "s_add_u32 s54, s54, s48", f"v_add_u32 v3, s54, v{L16}",
        f"s_lshl_b32 s54, s{sNH}, {10 if SHARE else 11}", "s_add_u32 s48, s48, s54", f"v_add_u32 v4, s48, v{L16}",
        f"s_mul_i32 s48, s{sCT}, 7", f"s_mul_i32 s49, s{sNH}, 3", "s_add_u32 s49, s49, s48",
        "s_lshl_b32 s49, s49, 13", f"s_lshl_b32 s53, s{sTILE}, 20", "s_add_u32 s49, s49, s53",
        "s_add_u32 s50, s49, 8192", "s_add_u32 s51, s49, 16384",
        "s_add_u32 s52, s48, 6", "s_lshl_b32 s52, s52, 13", "s_add_u32 s52, s52, s53",
        "s_add_u32 s52, s52, s54", f"v_mov_b32 v13, {L_ST8+64}"]

def shared_epilogue(a):
    NF = 2 if SHARE else 4
    a.label("L_epi")
    CB = 128; SB = 156; RL = 164
    a("ds_read_b32 v241, v13")
    for f in range(NF): a(f"ds_read_b64 v[{SB+2*f}:{SB+2*f+1}], v10 offset:{f*128}")
    a(f"ds_read_b128 v[{CB+24}:{CB+27}], v12")
    for nb in range(6): a(f"ds_read_b128 v[{CB+4*nb}:{CB+4*nb+3}], v11 offset:{nb*64}")
    a("s_waitcnt lgkmcnt(7)")
    for f in range(NF): a(f"v_rcp_f32 v{RL+2*f}, v{SB+2*f+1}")
    a("s_nop 0")
    for f in range(NF): a(f"v_mul_f32 v{RL+2*f}, {f2u(-LOG2E)}, v{RL+2*f}")
    a("s_waitcnt lgkmcnt(6)")
    def silu_ln(fs, accs, cs, temps, dsts):
        n = len(accs)
        S = lambda i: f"v[{SB+2*fs[i]}:{SB+2*fs[i]+1}]"
        R = lambda i: f"v[{RL+2*fs[i]}:{RL+2*fs[i]+1}]"
        for i in range(n):
            a(f"v_pk_fma_f32 v[{accs[i]}:{accs[i]+1}], v[{cs[i]}:{cs[i]+1}], {S(i)}, v[{accs[i]}:{accs[i]+1}] op_sel_hi:[1,0,1] neg_lo:[0,1,0] neg_hi:[0,1,0]")
        for i in range(n):
            a(f"v_pk_mul_f32 v[{temps[i]}:{temps[i]+1}], v[{accs[i]}:{accs[i]+1}], {R(i)} op_sel_hi:[1,0]")
        for i in range(n):
            a(f"v_exp_f32 v{temps[i]}, v{temps[i]}"); a(f"v_exp_f32 v{temps[i]+1}, v{temps[i]+1}")
        for i in range(n):
            a(f"v_pk_fma_f32 v[{temps[i]}:{temps[i]+1}], v[{temps[i]}:{temps[i]+1}], {S(i)}, {S(i)} op_sel:[0,1,1] op_sel_hi:[1,1,1]")
        for i in range(n):
            a(f"v_rcp_f32 v{temps[i]}, v{temps[i]}"); a(f"v_rcp_f32 v{temps[i]+1}, v{temps[i]+1}")
        for i in range(n):
            a(f"v_pk_mul_f32 v[{temps[i]}:{temps[i]+1}], v[{temps[i]}:{temps[i]+1}], v[{accs[i]}:{accs[i]+1}]")
        for i in range(n):
            a(f"v_cvt_pk_bf16_f32 v{dsts[i]}, v{temps[i]}, v{temps[i]+1}")
    TM = [184, 186, 188, 190]
    for h in range(NF // 2):
        fs = [2 * h, 2 * h, 2 * h + 1, 2 * h + 1]
        accs = [ACC + (f * 7 + 6) * 4 + 2 * (i & 1) for i, f in enumerate(fs)]
        d = 192 + 4 * h
        silu_ln(fs, accs, [CB + 24, CB + 26, CB + 24, CB + 26], TM, [d, d + 1, d + 2, d + 3])
        a(f"ds_write_b64 v3, v[{d}:{d+1}] offset:{2*h*1024}")
        a(f"ds_write_b64 v3, v[{d+2}:{d+3}] offset:{(2*h+1)*1024}")
    a("s_waitcnt lgkmcnt(0)")
    k = 0
    for pp in range(3):
        for f in range(NF):
            c = ACC + (f * 7 + 2 * pp) * 4
            d = 172 + (k & 1) * 4
            cc = CB + 8 * pp
            silu_ln([f] * 4, [c, c + 2, c + 4, c + 6], [cc, cc + 2, cc + 4, cc + 6], TM, [d, d + 1, d + 2, d + 3])
            a(f"buffer_store_dwordx4 v[{d}:{d+3}], v2, {SR(S_HF)}, s{49+pp} offen offset:{f*1024} sc1")
            k += 1
            if k == EK:
                a("s_barrier")
                for i in range(NF // 2): a(f"ds_read_b128 v[{192+4*i}:{195+4*i}], v4 offset:{i*1024}")
            if k == EK + 1:
                a("s_waitcnt lgkmcnt(0)")
                for i in range(NF // 2): a(f"buffer_store_dwordx4 v[{192+4*i}:{195+4*i}], v2, {SR(S_HF)}, s52 offen offset:{i*1024} sc1")
    if not SHARE:
        a("s_branch L_epi_ret_c")
        return
    a(f"s_cmp_ge_u32 s{sWV}, 4")
    a("s_cbranch_scc1 L_epi_ret_h")
    a("s_branch L_epi_ret_c")

def consumer_pre(a):
    w1_touch_voff(a, 242)
    if TV == "a":
        a(f"s_cmp_eq_u32 s{sLW}, 3")
        a("s_mov_b32 s49, 0")
    else:
        a(f"s_cmp_ge_u32 s{sLW}, 2")
        a(f"s_cselect_b32 s49, 1, 0")
        a(f"s_and_b32 s49, s49, s{sLW}")
        a(f"s_xor_b32 s49, s49, 1")
        a(f"s_mul_i32 s49, s49, {2*SLAB}")
        a(f"s_cmp_ge_u32 s{sLW}, 2")
    a("s_cselect_b64 s[62:63], -1, 0")
    a("v_cndmask_b32 v11, v10, v242, s[62:63]")
    a(f"buffer_load_dword v241, v11, {SR(S_W1)}, s49 offen")
    a("v_and_b32 v10, 15, v1")
    a("v_lshrrev_b32 v11, 4, v1")
    a("v_and_b32 v12, 7, v1")
    a("v_xor_b32 v11, v11, v12")
    a("v_lshlrev_b32 v2, 7, v10")
    a("v_lshl_add_u32 v2, v11, 4, v2")
    a(f"s_lshl_b32 s48, s{sMH}, 13")
    a("v_add_u32 v2, s48, v2")
    a("v_xor_b32 v15, 64, v2")
    g1_bfrag_addrs(a, sNH, 3, 4, 5, 10, 11)
    a(f"s_add_u32 s97, s{sLW}, {1 if TV == 'a' else 2}")
    a(f"s_mul_i32 s97, s97, {2*SLAB}")
    a("v_bfrev_b32 v10, 1")
    a("v_cndmask_b32 v242, v242, v10, s[62:63]")
    a(f"s_mov_b32 s{sSLOT}, 0")
    a("v_mov_b32 v6, v2"); a("v_mov_b32 v7, v3"); a("v_mov_b32 v8, v4"); a("v_mov_b32 v9, v5"); a("v_mov_b32 v14, v15")

def gen_consumer(a):
    a.label("L_consumer")
    SET = [128, 172]
    L16 = 240
    a(f"s_lshl_b32 s48, s{sLW}, 12")
    a(f"s_add_u32 s48, s48, {L_XN}")
    a(f"v_add_u32 v10, s48, v{L16}")
    def reads(st, kb):
        L = []; b = SET[st]
        order = [("a", 0), ("w", 0), ("w", 1), ("a", 1), ("w", 2), ("w", 3), ("a", 2), ("w", 4), ("w", 5), ("a", 3), ("w", 6)]
        for kind, i in order:
            if kind == "a":
                L.append(f"ds_read_b128 v[{b+4*i}:{b+4*i+3}], v{14 if kb else 6} offset:{i*2048}")
            else:
                for hh in range(2):
                    d = b + 16 + 4 * i + 2 * hh
                    ro = (32 * kb + 16 * hh) * 448
                    if i < 6: L.append(f"ds_read_b64_tr_b16 v[{d}:{d+1}], v{7 + (i & 1)} offset:{ro + i*32}")
                    else: L.append(f"ds_read_b64_tr_b16 v[{d}:{d+1}], v9 offset:{ro}")
        return L
    def mfmas(st, zero=False):
        b = SET[st]; L = []
        for f in range(4):
            for nb in range(7):
                c = ACC + (f * 7 + nb) * 4
                C = "0" if zero else f"v[{c}:{c+3}]"
                L.append(f"v_mfma_f32_16x16x32_bf16 v[{c}:{c+3}], v[{b+16+4*nb}:{b+19+4*nb}], v[{b+4*f}:{b+3+4*f}], {C}")
        return L
    def adv():
        return [f"s_add_u32 s{sSLOT}, s{sSLOT}, {G1_STAGE}", f"s_cmp_eq_u32 s{sSLOT}, {3*G1_STAGE}", f"s_cselect_b32 s{sSLOT}, 0, s{sSLOT}",
                f"v_add_u32 v6, s{sSLOT}, v2", f"v_add_u32 v7, s{sSLOT}, v3", f"v_add_u32 v8, s{sSLOT}, v4", f"v_add_u32 v9, s{sSLOT}, v5", f"v_add_u32 v14, s{sSLOT}, v15"]
    stamp(a, 12)
    a(f"s_setprio {CPRIO}")
    if STAMP: a("s_mov_b32 s97, 0")
    a("s_waitcnt lgkmcnt(0)")
    a("s_barrier")
    stamp(a, 1)
    trace_mark(a)
    for r in reads(0, 0): a(r)
    a("s_mov_b32 s86, 0")
    a("s_waitcnt lgkmcnt(0)")
    trace_commit(a)
    interleave(a, mfmas(0, True), reads(1, 1) + adv())
    a("s_branch L_c_g1mid")
    a.label("L_c_g1loop")
    U1 = 3
    for u in range(U1):
        a("s_waitcnt lgkmcnt(0)")
        trace_commit(a)
        interleave(a, mfmas(0), reads(1, 1) + adv())
        if u == 0: a.label("L_c_g1mid")
        a("s_waitcnt lgkmcnt(0)")
        a("s_barrier")
        trace_mark(a)
        tail = ["s_add_u32 s86, s86, 1", f"s_cmp_lt_u32 s86, {15//U1}"] if u == U1 - 1 else []
        interleave(a, mfmas(1), reads(0, 0) + tail)
    a("s_cbranch_scc1 L_c_g1loop")
    a("s_waitcnt lgkmcnt(0)")
    trace_commit(a)
    interleave(a, mfmas(0), reads(1, 1))
    a("s_waitcnt lgkmcnt(0)")
    hand = [f"s_lshl_b32 s48, s{sLW}, 14", f"s_add_u32 s48, s48, {L_HAND}", f"v_add_u32 v5, s48, v{L16}"]
    interleave(a, mfmas(1), hand + epi_setup(0), per=2)
    a("s_barrier")
    stamp(a, 2)
    a(f"s_setprio {EPRIO}")
    if SHARE:
        for i in range(14):
            c = ACC + 56 + 4 * i
            a(f"ds_write_b128 v5, v[{c}:{c+3}] offset:{i*1024}")
        a("s_waitcnt lgkmcnt(0)")
        a("s_barrier")
    a("s_branch L_epi")
    a.label("L_epi_ret_c")
    stamp(a, 3)
    a("v_readfirstlane_b32 s96, v241")
    ACO = 32; ACY = 96; SET2 = [128, 160]; XO = 192; PB = 208
    a(f"s_lshl_b32 s48, s{sMH}, 12")
    a(f"s_lshl_b32 s49, s{sKH}, 11")
    a("s_add_u32 s50, s48, s49")
    a(f"v_add_u32 v2, s50, v{L16}")
    a("s_xor_b32 s49, s49, 2048")
    a("s_add_u32 s50, s48, s49")
    a(f"v_add_u32 v3, s50, v{L16}")
    a("v_lshrrev_b32 v11, 2, v1")
    a("v_and_b32 v12, 7, v11")
    a("v_lshlrev_b32 v11, 8, v11")
    a("v_and_b32 v13, 3, v1")
    a("v_lshl_add_u32 v11, v13, 3, v11")
    a("v_add_u32 v11, 16384, v11")
    a(f"s_lshl_b32 s48, s{sNH}, 2")
    a("v_xor_b32 v12, s48, v12")
    for nb in range(4):
        a(f"v_xor_b32 v13, {nb}, v12")
        a(f"v_lshl_add_u32 v{4+nb}, v13, 5, v11")
    for i in range(96): a(f"v_mov_b32 v{ACO+i}, 0")
    a(f"s_mov_b32 s{sSLOT}, 0")
    a("v_mov_b32 v14, v2"); a("v_mov_b32 v15, v3")
    for nb in range(4): a(f"v_mov_b32 v{16+nb}, v{4+nb}")
    late = [
        "v_mov_b32 v20, 0",
        f"s_lshl_b32 s48, s{sLW}, 2",
        "s_lshl_b32 s80, s2, 7", "s_add_u32 s80, s80, s48", f"s_add_u32 s80, s80, {XFLAG_G}", "s_xor_b32 s81, s80, 512",
        "v_and_b32 v9, 7, v1", "v_lshlrev_b32 v9, 19, v9", "v_bfe_u32 v10, v1, 3, 1", "v_lshl_add_u32 v9, v10, 14, v9",
        "v_bfe_u32 v10, v1, 4, 1", "v_lshl_add_u32 v9, v10, 5, v9", "v_bfe_u32 v10, v1, 5, 1", "v_lshl_add_u32 v9, v10, 4, v9",
        f"s_lshl_b32 s48, s{sJH}, 4", f"s_lshl_b32 s49, s{sMH}, 3", "s_add_u32 s48, s48, s49", f"s_lshl_b32 s49, s{sKH}, 2",
        "s_add_u32 s48, s48, s49", "s_lshl_b32 s48, s48, 3", f"s_add_u32 s48, s48, s{sT1}", "s_lshl_b32 s48, s48, 11",
        f"s_lshl_b32 s49, s{sC8}, 8", "s_add_u32 s48, s48, s49", f"s_lshl_b32 s49, s{sNH}, 7", "s_add_u32 s91, s48, s49",
        f"s_add_u32 s92, s91, {16*2048}", "s_lshl_b32 s93, s2, 2", f"s_add_u32 s93, s93, s{sLW}", "s_lshl_b32 s93, s93, 12",
        f"s_add_u32 s93, s93, {XB_G}", f"s_xor_b32 s94, s93, {4*4*4096}"]
    for l in late: a(l)
    zero_o = [f"v_mov_b32 v{ACO+i}, 0" for i in range(64)]
    def adv2():
        return [f"s_add_u32 s{sSLOT}, s{sSLOT}, {G2_STAGE}", f"s_and_b32 s{sSLOT}, s{sSLOT}, {4*G2_STAGE-1}",
                f"v_add_u32 v14, s{sSLOT}, v2", f"v_add_u32 v15, s{sSLOT}, v3"] + [f"v_add_u32 v{16+nb}, s{sSLOT}, v{4+nb}" for nb in range(4)]
    def reads2(st, kb, y=False):
        b = SET2[st]; L = []
        for i in range(4):
            if not (y and i >= 2):
                L.append(f"ds_read_b128 v[{b+4*i}:{b+4*i+3}], v{14 + (i >> 1)} offset:{kb*8192 + (i & 1)*1024}")
            for hh in range(2):
                d = b + 16 + i * 4 + hh * 2
                L.append(f"ds_read_b64_tr_b16 v[{d}:{d+1}], v{16+i} offset:{kb*8192 + hh*4096}")
        return L
    def mfmas2(st, y=False):
        b = SET2[st]; L = []
        for fp in range(2 if y else 4):
            for nb in range(4):
                c = (ACY if y else ACO) + (fp * 4 + nb) * 4
                w = b + 16 + nb * 4; x = b + fp * 4
                L.append(f"v_mfma_f32_16x16x32_bf16 v[{c}:{c+3}], v[{w}:{w+3}], v[{x}:{x+3}], v[{c}:{c+3}]")
        return L
    xl = []
    for fp in range(2):
        for pp in range(2):
            d = XO + (fp * 2 + pp) * 4
            xl.append(f"buffer_load_dwordx4 v[{d}:{d+3}], v9, {SR(S_X)}, s{91+fp} offen offset:{pp*64}")
    a("s_waitcnt vmcnt(0)")
    a("s_mov_b64 exec, 1")
    a(f"buffer_store_dword v241, v20, {SR(S_MISC)}, s79 offen sc1")
    a("s_mov_b64 exec, -1")
    stamp(a, 5)
    a("s_barrier")
    for l in xl: a(l)
    a(f"s_setprio {CPRIO}")
    a("s_barrier")
    stamp(a, 6)
    trace_mark(a)
    for r in reads2(0, 0): a(r)
    def step(y_cur, y_next, post=(), last=False, e1=()):
        a("s_waitcnt lgkmcnt(0)")
        trace_commit(a)
        interleave(a, mfmas2(0, y_cur), reads2(1, 1, y_cur) + ([] if last else adv2()) + list(e1), per=2)
        a("s_waitcnt lgkmcnt(0)")
        if not last:
            a("s_barrier")
            trace_mark(a)
            interleave(a, mfmas2(1, y_cur), reads2(0, 0, y_next) + list(post), per=2)
        else:
            interleave(a, mfmas2(1, y_cur), [])
    U2 = 3
    a("s_mov_b32 s86, 0")
    a.label("L_c_g2loop")
    for u in range(U2):
        step(False, False, post=(["s_add_u32 s86, s86, 1", f"s_cmp_lt_u32 s86, {27//U2}"] if u == U2 - 1 else []))
    a("s_cbranch_scc1 L_c_g2loop")
    step(False, True)
    stamp(a, 7)
    a(f"s_mov_b32 s60, {f2u(-LOG2E)}")
    a("s_mov_b32 s61, s60")
    xs = []
    for q in range(4):
        for i in range(4):
            c = ACO + 32 + q * 8 + 2 * i
            xs.append(f"v_cvt_pk_bf16_f32 v{224+4*q+i}, v{c}, v{c+1}")
        xs.append(f"buffer_store_dwordx4 v[{224+4*q}:{227+4*q}], v{L16}, {SR(S_MISC)}, s93 offen offset:{q*1024} sc1")
    XLD = f"buffer_load_dword v22, v20, {SR(S_MISC)}, s81 offen sc1"
    pls = [f"buffer_load_dwordx4 v[{PB+4*q}:{PB+4*q+3}], v{L16}, {SR(S_MISC)}, s94 offen offset:{q*1024} sc1" for q in range(4)]
    XF_S, XP_S = int(OPT.get("xfs", "30")), int(OPT.get("xps", "34"))
    for s in range(28, 36):
        e1 = []; post = []
        if s == 28: e1 = xs
        if s == XF_S: e1 = ["s_waitcnt vmcnt(0)", "s_mov_b64 exec, 1", f"buffer_store_dword v241, v20, {SR(S_MISC)}, s80 offen sc1", "s_mov_b64 exec, -1"]
        if s == XP_S - 1: post = [XLD]
        if s == XP_S:
            a("s_waitcnt vmcnt(0)")
            spin(a, "xp", [XLD], ["v_readfirstlane_b32 s62, v22", "s_nop 0", "s_cmp_eq_u32 s62, s96"], first_loaded=True)
            e1 = pls
        step(True, True, post=post, last=(s == 35), e1=e1)
    stamp(a, 8)
    a("s_setprio 0")
    for q in range(4):
        a(f"s_waitcnt vmcnt({3-q})")
        for i in range(4):
            c = ACO + q * 8 + 2 * i; p = PB + 4 * q + i
            a(f"v_lshlrev_b32 v{144+2*i}, 16, v{p}")
            a(f"v_and_b32 v{145+2*i}, 0xffff0000, v{p}")
        for i in range(4):
            c = ACO + q * 8 + 2 * i
            a(f"v_pk_add_f32 v[{c}:{c+1}], v[{c}:{c+1}], v[{144+2*i}:{145+2*i}]")
    stamp(a, 9)
    for h in range(2):
        srcs = [ACO + 2 * i for i in range(8 * h, 8 * h + 8)]; temps = [128 + 2 * i for i in range(8)]
        for i in range(8): a(f"v_pk_mul_f32 v[{temps[i]}:{temps[i]+1}], v[{srcs[i]}:{srcs[i]+1}], s[60:61]")
        for i in range(8): a(f"v_exp_f32 v{temps[i]}, v{temps[i]}"); a(f"v_exp_f32 v{temps[i]+1}, v{temps[i]+1}")
        for i in range(8): a(f"v_pk_add_f32 v[{temps[i]}:{temps[i]+1}], v[{temps[i]}:{temps[i]+1}], 1.0 op_sel_hi:[1,0]")
        for i in range(8): a(f"v_rcp_f32 v{temps[i]}, v{temps[i]}"); a(f"v_rcp_f32 v{temps[i]+1}, v{temps[i]+1}")
        for i in range(8):
            y = ACY + 2 * (8 * h + i)
            a(f"v_pk_mul_f32 v[{srcs[i]}:{srcs[i]+1}], v[{srcs[i]}:{srcs[i]+1}], v[{y}:{y+1}]")
        for i in range(8): a(f"v_pk_mul_f32 v[{temps[i]}:{temps[i]+1}], v[{temps[i]}:{temps[i]+1}], v[{srcs[i]}:{srcs[i]+1}]")
        for i in range(8): a(f"v_cvt_pk_bf16_f32 v{160+8*h+i}, v{temps[i]}, v{temps[i]+1}")
        a.nop(2)
        fp = h
        for pp in range(2):
            b0 = 160 + (fp * 4 + 2 * pp) * 2
            a(f"v_permlane16_swap_b32 v{b0}, v{b0+2}")
            a(f"v_permlane16_swap_b32 v{b0+1}, v{b0+3}")
        for q in (2 * h, 2 * h + 1):
            for i in range(4):
                p = 160 + q * 4 + i; x = XO + q * 4 + i
                t = 144 + 4 * (i & 1)
                a(f"v_lshlrev_b32 v{t}, 16, v{p}")
                a(f"v_and_b32 v{t+1}, 0xffff0000, v{p}")
                a(f"v_lshlrev_b32 v{t+2}, 16, v{x}")
                a(f"v_and_b32 v{t+3}, 0xffff0000, v{x}")
                a(f"v_pk_add_f32 v[{t}:{t+1}], v[{t}:{t+1}], v[{t+2}:{t+3}]")
                a(f"v_cvt_pk_bf16_f32 v{x}, v{t}, v{t+1}")
            d = XO + q * 4
            a(f"buffer_store_dwordx4 v[{d}:{d+3}], v9, {SR(S_OUT)}, s{91+(q>>1)} offen offset:{(q&1)*64}")
    if STAMP: a("s_waitcnt vmcnt(0)")
    stamp(a, 10)
    trace_store(a)

def main(out):
    for p in range(448): assert (p * 2341) >> 16 == p // 28
    for p in range(64): assert (p * 4682) >> 16 == p // 14
    a = Asm()
    gen(a)
    for p in check(a.lines): print("HAZARD", p)
    vg = 256 if (STAMP or DBGST) else 244
    txt = f"""; generated by work/gen16.py
; @launch grid=(256,1,1) block=(512,1,1) lds={LDS_TOTAL}
.amdgcn_target "amdgcn-amd-amdhsa--gfx950"
.text
.globl {NAME}_kernel
.p2align 8
.type {NAME}_kernel,@function
""" + a.text() + f""".section .rodata,"a"
.p2align 6
.amdhsa_kernel {NAME}_kernel
  .amdhsa_next_free_vgpr {vg}
  .amdhsa_next_free_sgpr 102
  .amdhsa_accum_offset {vg}
  .amdhsa_group_segment_fixed_size 0
  .amdhsa_kernarg_size 88
  .amdhsa_user_sgpr_count 2
  .amdhsa_user_sgpr_kernarg_segment_ptr 1
  .amdhsa_system_sgpr_workgroup_id_x 1
.end_amdhsa_kernel
"""
    open(out, "w").write(txt)
    print("lines", len(a.lines), "lds", LDS_TOTAL)

if __name__ == "__main__":
    args = [x for x in sys.argv[1:] if not x.startswith("--") and "=" not in x]
    main(args[0] if args else f"cdna_kernels/{NAME}.s")
```

```python
import sys, os, struct
from asmlib import *

NAME = "recurrent_scan__spectral_fnet__dense_activation_silu__prompt"
MB = 1 << 20
HF_OFF = 0
AP_OFF = 16 * MB
MISC_OFF = 24 * MB
STAT_G = 0
CS_G = 65536
HFLAG_G = 640 * 1024
XFLAG_G = 672 * 1024
RS_G = 720 * 1024
RC_G = 724 * 1024
QF_G = 728 * 1024
XB_G = 1 * MB
STAMP = "--stamp" in sys.argv
OPT = dict(x.split("=") for x in sys.argv if "=" in x and not x.startswith("--"))
NST = 64
EK = int(OPT.get('ek', '5'))
TP = OPT.get('tp', 'p2')
SHARE = OPT.get('share', '0') == '1'
TV = OPT.get('tv', 'b')
HM = int(OPT.get('hm', '11'))
HFS = int(OPT.get('hfs', '1'))
W1F = OPT.get('w1f', 'none').replace('none', '')
W2F = OPT.get('w2f', 'none').replace('none', '')
CPRIO = int(OPT.get('cprio', '2'))
EPRIO = int(OPT.get('eprio', '1'))

def f2u(x): return "0x%08x" % struct.unpack("<I", struct.pack("<f", x))[0]

S_X, S_W1, S_W2, S_OUT, S_CR, S_HF, S_AP, S_MISC, S_DBG, S_CI = 4, 8, 12, 16, 20, 24, 28, 32, 36, 64
def SR(b): return f"s[{b}:{b+3}]"
sWV, sTILE, sKH, sC8, sCT, sT1, sJH, sLW = 3, 40, 41, 42, 43, 44, 45, 46
sSLOT = 47
sSPIN = 73
LOG2E = 1.4426950408889634

G1_STAGE = 45056
L_STAT = 135168
L_CSUM = L_STAT + 1024
L_CS4 = L_CSUM + 1024
L_ST8 = L_CS4 + 4096
L_U = L_ST8 + 256
LDS_TOTAL = L_U + 16384
G2_STAGE = 32768

def srd(a, d, lo, hi, size, add=0):
    if add == 0:
        a(f"s_mov_b32 s{d}, s{lo}"); a(f"s_mov_b32 s{d+1}, s{hi}")
    else:
        a(f"s_add_u32 s{d}, s{lo}, {add}"); a(f"s_addc_u32 s{d+1}, s{hi}, 0")
    a(f"s_mov_b32 s{d+2}, {size}"); a(f"s_mov_b32 s{d+3}, 0x20000")

DBGST = OPT.get("dbgst")
DBGMAP = {11: 1, 16: 2, 12: 3, 1: 4, 2: 5, 3: 6, 5: 7, 6: 8, 7: 9, 8: 10, 9: 11, 10: 12}
def stamp(a, idx, wave=0, vt=250):
    if DBGST is not None and wave == 0 and idx in DBGMAP:
        lab = a.uid("dst%d" % idx)
        a(f"s_lshl_b32 s74, s2, 3")
        a(f"s_add_u32 s74, s74, s{sWV}")
        a(f"s_cmp_lg_u32 s74, {int(DBGST)*8}")
        a(f"s_cbranch_scc1 {lab}")
        if idx == 10: a("s_waitcnt vmcnt(0)")
        a("s_memrealtime s[74:75]")
        a("s_waitcnt lgkmcnt(0)")
        a("s_sub_u32 s74, s74, s98")
        a(f"v_mov_b32 v{vt}, s74")
        a(f"v_mov_b32 v{vt+1}, {DBGMAP[idx]*4}")
        a(f"buffer_store_dword v{vt}, v{vt+1}, {SR(S_DBG)}, 0 offen")
        a.label(lab)
        return
    if not STAMP: return
    lab = a.uid("stamp%d" % idx)
    a(f"s_cmp_lg_u32 s{sWV}, {wave}")
    a(f"s_cbranch_scc1 {lab}")
    a("s_memrealtime s[74:75]")
    a("s_memtime s[76:77]")
    a("s_waitcnt lgkmcnt(0)")
    a(f"v_mov_b32 v{vt}, s76")
    a(f"v_mov_b32 v{vt+1}, {idx*4+128}")
    a(f"buffer_store_dword v{vt}, v{vt+1}, s[68:71], s72 offen")
    a("s_nop 1")
    a(f"v_mov_b32 v{vt}, s74")
    a(f"v_mov_b32 v{vt+1}, {idx*4}")
    a(f"buffer_store_dword v{vt}, v{vt+1}, s[68:71], s72 offen")
    a.label(lab)
def trace_mark(a):
    if STAMP: a("s_memtime s[98:99]")
def trace_commit(a):
    if not STAMP: return
    a("s_mov_b32 m0, s97"); a("v_writelane_b32 v249, s98, m0")
    a("s_add_u32 s97, s97, 1")
def trace_store(a):
    if not STAMP: return
    lab = a.uid("trs")
    a(f"s_cmp_lg_u32 s{sWV}, 0")
    a(f"s_cbranch_scc1 {lab}")
    a(f"s_add_u32 s68, s68, {MB}")
    a("s_addc_u32 s69, s69, 0")
    a(f"s_mov_b32 s70, {256*256}")
    a("s_lshl_b32 s72, s2, 8")
    a("v_lshlrev_b32 v250, 2, v1")
    a("buffer_store_dword v249, v250, s[68:71], s72 offen")
    a.label(lab)

HT = [0]
def htrace(a):
    if not STAMP or OPT.get("ht", "0") != "1": return
    i = HT[0]; HT[0] += 1
    if i >= 128: return
    a("s_memtime s[98:99]")
    a("s_waitcnt lgkmcnt(0)")
    a(f"v_writelane_b32 v{248 + (i >> 6)}, s98, {i & 63}")
def htrace_store(a):
    if not STAMP: return
    lab = a.uid("htrs")
    a(f"s_cmp_lg_u32 s{sWV}, 4")
    a(f"s_cbranch_scc1 {lab}")
    a(f"s_add_u32 s68, s68, {2*MB}")
    a("s_addc_u32 s69, s69, 0")
    a(f"s_mov_b32 s70, {256*512}")
    a("s_lshl_b32 s72, s2, 9")
    a("v_lshlrev_b32 v250, 2, v1")
    a("buffer_store_dword v248, v250, s[68:71], s72 offen")
    a("buffer_store_dword v249, v250, s[68:71], s72 offen offset:256")
    a.label(lab)

class VM:
    def __init__(self, a): self.a = a; self.ops = []
    def op(self, line, tag): self.a(line); self.ops.append(tag)
    def count(self, tag):
        n = 0
        for t in reversed(self.ops):
            if t == tag: return n
            n += 1
        raise KeyError(tag)
    def wait(self, tag, extra=""):
        n = min(self.count(tag), 63)
        self.a(f"s_waitcnt vmcnt({n}){extra}")

def multi_wave_sum(a, vs, ts):
    assert len(vs) >= 3
    for pat in ("quad_perm:[1,0,3,2]", "quad_perm:[2,3,0,1]", "row_half_mirror", "row_mirror"):
        for v in vs: a(f"v_add_f32_dpp v{v}, v{v}, v{v} {pat} row_mask:0xf bank_mask:0xf")
    for sw in ("v_permlane16_swap_b32", "v_permlane32_swap_b32"):
        for v, t in zip(vs, ts): a(f"v_mov_b32 v{t}, v{v}")
        for v, t in zip(vs, ts): a(f"{sw} v{t}, v{v}")
        for v, t in zip(vs, ts): a(f"v_add_f32 v{v}, v{t}, v{v}")

def interleave(a, mfmas, others, first=0, per=1):
    oi = 0
    for i, m in enumerate(mfmas):
        a(m)
        if i >= first:
            for _ in range(per):
                if oi < len(others): a(others[oi]); oi += 1
    while oi < len(others): a(others[oi]); oi += 1

def spin(a, name, load, check, first_loaded=False):
    L = a.uid(name + "_spin"); D = a.uid(name + "_done")
    a(f"s_mov_b32 s{sSPIN}, 0")
    if first_loaded:
        for l in check: a(l)
        a(f"s_cbranch_scc1 {D}")
    a.label(L)
    for l in load: a(l)
    a("s_waitcnt vmcnt(0)")
    for l in check: a(l)
    a(f"s_cbranch_scc1 {D}")
    a("s_sleep 1")
    a(f"s_add_u32 s{sSPIN}, s{sSPIN}, 1")
    a(f"s_cmp_lt_u32 s{sSPIN}, 0x8000")
    a(f"s_cbranch_scc1 {L}")
    a.label(D)

OOB = 17
def sel_voff(a, dst, src, turn):
    a(f"s_cmp_eq_u32 s{sLW}, {turn}")
    a("s_cselect_b64 s[62:63], -1, 0")
    a(f"v_cndmask_b32 v{dst}, v{OOB}, v{src}, s[62:63]")

def g1_bfrag_addrs(a, nhreg, d0, d1, d2, t0, t1):
    a(f"v_lshrrev_b32 v{t0}, 2, v1")
    a(f"v_mul_u32_u24 v{t0}, 448, v{t0}")
    a(f"v_and_b32 v{t1}, 3, v1")
    a(f"v_lshl_add_u32 v{t0}, v{t1}, 3, v{t0}")
    a(f"v_add_u32 v{t0}, 16384, v{t0}")
    a(f"v_bfe_u32 v{t1}, v1, 4, 1")
    a(f"v_lshlrev_b32 v{t1}, 5, v{t1}")
    a(f"s_mul_i32 s49, s{nhreg}, 192")
    a(f"v_add_u32 v{d0}, v{t0}, v{t1}")
    a(f"v_add_u32 v{d0}, s49, v{d0}")
    a(f"v_sub_u32 v{d1}, v{t0}, v{t1}")
    a(f"v_add_u32 v{d1}, s49, v{d1}")
    a(f"s_lshl_b32 s50, s{nhreg}, 5")
    a(f"v_xor_b32 v{d2}, s50, v{t1}")
    a(f"v_add_u32 v{d2}, v{t0}, v{d2}")
    a(f"v_add_u32 v{d2}, 384, v{d2}")


L_XN = 2 * G1_STAGE
ACC = 16
TC, TS, CC, SS, NSS = 128, 144, 160, 168, 176
PX, PF, PT, PM = 184, 192, 208, 224
DRE, DIM, FR, FT = 184, 200, 216, 232
sEP = 94
sMH, sNH = 100, 101
SLAB = 64 * 7168

L_K = L_XN + 18432
def consts(a):
    a("v_and_b32 v232, 31, v1")
    a("v_cvt_f32_u32 v232, v232")
    a(f"v_mul_f32 v232, {f2u(1.0/1024)}, v232")
    a("v_lshrrev_b32 v233, 5, v1")
    a("v_lshlrev_b32 v233, 2, v233")
    a(f"s_lshr_b32 s60, s{sWV}, 1")
    a("s_lshl_b32 s60, s60, 3")
    a(f"s_and_b32 s61, s{sWV}, 1")
    a("s_lshl_b32 s61, s61, 1")
    a("s_add_u32 s60, s60, s61")
    a("v_add_u32 v233, s60, v233")
    a("v_cvt_f32_u32 v233, v233")
    a("v_mul_f32 v233, v233, v232")
    a("v_add_f32 v232, v233, v232")
    a(f"v_cos_f32 v{TC}, v233"); a(f"v_cos_f32 v{TC+1}, v232")
    a(f"v_sin_f32 v{TS}, v233"); a(f"v_sin_f32 v{TS+1}, v232")
    a(f"v_mul_f32 v233, {f2u(32.0)}, v233"); a(f"v_mul_f32 v232, {f2u(32.0)}, v232")
    a("v_fract_f32 v233, v233"); a("v_fract_f32 v232, v232")
    a("v_cos_f32 v234, v233"); a("v_cos_f32 v235, v232")
    a("v_sin_f32 v236, v233"); a("v_sin_f32 v237, v232")
    a(f"s_lshr_b32 s60, s{sWV}, 1")
    a("s_lshl_b32 s60, s60, 10")
    a("s_lshl_b32 s61, s61, 2")
    a("s_add_u32 s60, s60, s61")
    a(f"s_add_u32 s60, s60, {L_K}")
    a("v_add_u32 v238, s60, v240")
    a(f"s_lshr_b32 s60, s{sWV}, 2")
    a("s_lshl_b32 s60, s60, 10")
    a(f"s_lshl_b32 s61, s{sLW}, 2")
    a("s_add_u32 s60, s60, s61")
    a(f"s_add_u32 s60, s60, {L_K + 8192}")
    a("v_add_u32 v239, s60, v240")
    a("v_cvt_pk_f16_f32 v234, v234, v235")
    a("v_cvt_pk_f16_f32 v235, v236, v237")
    a("v_cvt_pk_f16_f32 v236, -v236, -v237")
    a(f"ds_write_b64 v238, v[{TC}:{TC+1}]")
    a(f"ds_write_b64 v238, v[{TS}:{TS+1}] offset:4096")
    a("ds_write_b32 v239, v234")
    a("ds_write_b32 v239, v235 offset:2048")
    a("ds_write_b32 v239, v236 offset:4096")
    a("v_lshrrev_b32 v10, 2, v1"); a("v_mul_u32_u24 v10, 576, v10")
    a("v_and_b32 v11, 1, v1"); a("v_mul_u32_u24 v11, 288, v11")
    a("v_add_u32 v10, v10, v11"); a("v_bfe_u32 v11, v1, 1, 1"); a("v_lshl_add_u32 v10, v11, 3, v10")
    a(f"s_lshl_b32 s60, s{sWV}, 4"); a(f"s_add_u32 s60, s60, {L_XN}"); a("v_add_u32 v10, s60, v10")
    a("v_lshrrev_b32 v11, 2, v0"); a("v_mul_u32_u24 v11, 144, v11"); a("v_and_b32 v12, 3, v0")
    a("v_lshl_add_u32 v11, v12, 2, v11"); a(f"v_add_u32 v11, {L_XN}, v11")
    a("v_lshrrev_b32 v12, 4, v0"); a("v_lshlrev_b32 v12, 6, v12")
    a("v_bfe_u32 v13, v0, 1, 1"); a("v_lshl_add_u32 v12, v13, 5, v12")
    a("v_bfe_u32 v13, v0, 2, 2"); a("v_lshl_add_u32 v12, v13, 3, v12")
    a("v_and_b32 v13, 1, v0"); a("v_lshl_add_u32 v12, v13, 2, v12"); a(f"v_add_u32 v12, {L_U}, v12")
    a(f"s_lshl_b32 s60, s{sWV}, 3")
    a(f"s_add_u32 s60, s60, {L_ST8}")
    a(f"v_mov_b32 v{PM+6}, s60")
    a(f"v_mov_b32 v{PM+7}, 0x3f803f80")

def helper_only(a, fn):
    if fn is None: return
    lab = a.uid("ho")
    a(f"s_cmp_lt_u32 s{sWV}, 4")
    a(f"s_cbranch_scc1 {lab}")
    fn()
    a.label(lab)

def startup(a, ins):
    m, s, t0, t1 = PM, PM + 1, PM + 2, PM + 3
    for q in range(8):
        a(f"v_dot2_f32_bf16 v{m}, v{PX+q}, v{PM+7}, {'0' if q == 0 else 'v%d' % m}")
        a(f"v_dot2_f32_bf16 v{s}, v{PX+q}, v{PX+q}, {'0' if q == 0 else 'v%d' % s}")
    fill = []
    for q in range(8):
        fill += [f"v_lshlrev_b32 v{PF+2*q}, 16, v{PX+q}", f"v_and_b32 v{PF+1+2*q}, 0xffff0000, v{PX+q}"]
    for _ in range(3): a(fill.pop(0))
    for pat in ("quad_perm:[1,0,3,2]", "quad_perm:[2,3,0,1]", "row_half_mirror", "row_mirror"):
        for v in (m, s): a(f"v_add_f32_dpp v{v}, v{v}, v{v} {pat} row_mask:0xf bank_mask:0xf")
        a(fill.pop(0))
    for sw in ("v_permlane16_swap_b32", "v_permlane32_swap_b32"):
        a(f"v_mov_b32 v{t0}, v{m}"); a(f"v_mov_b32 v{t1}, v{s}")
        a(fill.pop(0)); a(fill.pop(0))
        a(f"{sw} v{t0}, v{m}"); a(f"{sw} v{t1}, v{s}")
        a(f"v_add_f32 v{m}, v{t0}, v{m}"); a(f"v_add_f32 v{s}, v{t1}, v{s}")
    a(f"v_mul_f32 v{m}, {f2u(1.0/1024)}, v{m}")
    a(f"v_mul_f32 v{s}, {f2u(1.0/1024)}, v{s}")
    a(f"v_fma_f32 v{s}, -v{m}, v{m}, v{s}")
    a(f"v_max_f32 v{s}, 0, v{s}")
    a(f"v_cvt_pk_bf16_f32 v{s}, v{m}, v{s}")
    a(f"v_lshlrev_b32 v{m}, 16, v{s}")
    a(f"v_and_b32 v{s}, 0xffff0000, v{s}")
    a(f"v_add_f32 v{s}, {f2u(1e-5)}, v{s}")
    a(f"v_cvt_pk_bf16_f32 v{s}, v{s}, v{s}")
    a(f"v_and_b32 v{s}, 0xffff0000, v{s}")
    a(f"v_sqrt_f32 v{s}, v{s}")
    a(fill.pop(0))
    a(f"v_cvt_pk_bf16_f32 v{s}, v{s}, v{s}")
    a(f"v_and_b32 v{s}, 0xffff0000, v{s}")
    a(f"v_rcp_f32 v{t0}, v{s}")
    while fill: a(fill.pop(0))
    a(f"v_mul_f32_e64 v{t1}, -v{m}, v{t0}")
    a(f"ds_write_b64 v{PM+6}, v[{m}:{s}]")
    for q in range(8):
        P = f"v[{PF+2*q}:{PF+2*q+1}]"
        a(f"v_pk_fma_f32 {P}, {P}, v[{t0}:{t1}], v[{t0}:{t1}] op_sel:[0,0,1] op_sel_hi:[1,0,1]")
    for q in range(8): a(f"v_cvt_pk_bf16_f32 v{PX+q}, v{PF+2*q}, v{PF+2*q+1}")
    a(f"ds_write_b64 v10, v[{PX}:{PX+1}]")
    a(f"ds_write_b64 v10, v[{PX+2}:{PX+3}] offset:144")
    a(f"ds_write_b64 v10, v[{PX+4}:{PX+5}] offset:9216")
    a(f"ds_write_b64 v10, v[{PX+6}:{PX+7}] offset:9360")
    helper_only(a, ins["ln"])
    a(f"s_mov_b32 s60, {f2u(0.7071067811865476)}")
    a("s_mov_b32 s61, s60")
    a("s_waitcnt lgkmcnt(0)")
    stamp(a, 16); stamp(a, 20, wave=4)
    a("s_barrier")
    for s1 in range(8): a(f"ds_read_b32 v{PX+s1}, v11 offset:{16*s1}")
    a("s_waitcnt lgkmcnt(0)")
    for q in range(8):
        a(f"v_lshlrev_b32 v{PF+2*q}, 16, v{PX+q}")
        a(f"v_and_b32 v{PF+1+2*q}, 0xffff0000, v{PX+q}")
    X = lambda s: f"v[{PF+2*s}:{PF+1+2*s}]"
    T = lambda i: f"v[{PT+2*i}:{PT+1+2*i}]"
    NEG = "neg_lo:[0,1] neg_hi:[0,1]"
    for l in [f"v_pk_add_f32 {T(0)}, {X(0)}, {X(4)}", f"v_pk_add_f32 {T(1)}, {X(0)}, {X(4)} {NEG}",
              f"v_pk_add_f32 {T(2)}, {X(2)}, {X(6)}", f"v_pk_add_f32 {T(3)}, {X(2)}, {X(6)} {NEG}",
              f"v_pk_add_f32 {T(4)}, {X(1)}, {X(5)}", f"v_pk_add_f32 {T(5)}, {X(1)}, {X(5)} {NEG}",
              f"v_pk_add_f32 {T(6)}, {X(3)}, {X(7)}", f"v_pk_add_f32 {T(7)}, {X(3)}, {X(7)} {NEG}",
              f"v_pk_add_f32 {X(0)}, {T(0)}, {T(2)}", f"v_pk_add_f32 {X(4)}, {T(0)}, {T(2)} {NEG}",
              f"v_pk_add_f32 {X(1)}, {T(4)}, {T(6)}", f"v_pk_add_f32 {X(5)}, {T(6)}, {T(4)} {NEG}",
              f"v_pk_add_f32 {X(2)}, {T(5)}, {T(7)} {NEG}", f"v_pk_add_f32 {X(3)}, {T(5)}, {T(7)}",
              f"v_pk_add_f32 {T(0)}, {X(0)}, {X(1)}", f"v_pk_add_f32 {T(2)}, {X(0)}, {X(1)} {NEG}",
              f"v_pk_fma_f32 {T(4)}, {X(2)}, s[60:61], {T(1)}",
              f"v_pk_fma_f32 {T(5)}, {X(3)}, s[60:61], {T(3)} neg_lo:[1,0,1] neg_hi:[1,0,1]",
              f"v_pk_fma_f32 {T(6)}, {X(2)}, s[60:61], {T(1)} neg_lo:[1,0,0] neg_hi:[1,0,0]",
              f"v_pk_fma_f32 {T(7)}, {X(3)}, s[60:61], {T(3)} neg_lo:[1,0,0] neg_hi:[1,0,0]"]: a(l)
    srcs = [PT+0, PT+4, PT+8, PT+10, PF+8, PF+10, PT+12, PT+14]
    for k, sx in enumerate(srcs): a(f"v_cvt_pk_f16_f32 v{PX+k}, v{sx}, v{sx+1}")
    for k in range(8): a(f"ds_write_b32 v12, v{PX+k} offset:{2048*k}")
    helper_only(a, ins["r8"])

def fft(a):
    URE, UIM = FR, FR + 8
    for part in range(2):
        for kk in range(2):
            for hh in range(2):
                d = URE + part * 8 + kk * 4 + hh * 2
                a(f"ds_read_b64_tr_b16 v[{d}:{d+1}], v13 offset:{part*2048 + kk*1024 + hh*512}")
    a("s_waitcnt lgkmcnt(0)")
    for i in range(8):
        a(f"v_and_b32 v{UIM+i}, s56, v{UIM+i}")
        a(f"v_xor_b32 v{UIM+i}, s57, v{UIM+i}")
    Cc = lambda kk: f"v[{CC+4*kk}:{CC+3+4*kk}]"
    Ss = lambda kk: f"v[{SS+4*kk}:{SS+3+4*kk}]"
    NS = lambda kk: f"v[{NSS+4*kk}:{NSS+3+4*kk}]"
    Dre = f"v[{DRE}:{DRE+15}]"; Dim = f"v[{DIM}:{DIM+15}]"
    def cplx():
        R = lambda kk: f"v[{URE+4*kk}:{URE+3+4*kk}]"
        I = lambda kk: f"v[{UIM+4*kk}:{UIM+3+4*kk}]"
        M = "v_mfma_f32_32x32x16_f16"
        a(f"{M} {Dre}, {R(0)}, {Cc(0)}, 0")
        a(f"{M} {Dim}, {R(0)}, {NS(0)}, 0")
        a(f"{M} {Dre}, {R(1)}, {Cc(1)}, {Dre}")
        a(f"{M} {Dim}, {R(1)}, {NS(1)}, {Dim}")
        a(f"{M} {Dre}, {I(0)}, {Ss(0)}, {Dre}")
        a(f"{M} {Dim}, {I(0)}, {Cc(0)}, {Dim}")
        a(f"{M} {Dre}, {I(1)}, {Ss(1)}, {Dre}")
        a(f"{M} {Dim}, {I(1)}, {Cc(1)}, {Dim}")
    cplx()
    a.nop(12)
    for r in range(0, 16, 2):
        P = lambda bb: f"v[{bb+r}:{bb+r+1}]"
        t = FT + (r & 2) * 2
        a(f"v_pk_mul_f32 v[{t}:{t+1}], {P(DRE)}, {P(TC)}")
        a(f"v_pk_mul_f32 v[{t+2}:{t+3}], {P(DIM)}, {P(TC)}")
        a(f"v_pk_fma_f32 v[{t}:{t+1}], {P(DIM)}, {P(TS)}, v[{t}:{t+1}]")
        a(f"v_pk_fma_f32 v[{t+2}:{t+3}], {P(DRE)}, {P(TS)}, v[{t+2}:{t+3}] neg_lo:[1,0,0] neg_hi:[1,0,0]")
        a(f"v_cvt_pk_f16_f32 v{URE+(r>>1)}, v{t}, v{t+1}")
        a(f"v_cvt_pk_f16_f32 v{UIM+(r>>1)}, v{t+2}, v{t+3}")
    a.nop(2)
    cplx()
    a.nop(12)
    O = FR
    for r in range(0, 16, 2):
        a(f"v_cvt_pk_bf16_f32 v{O+(r>>1)}, v{DRE+r}, v{DRE+1+r}")
        a(f"v_cvt_pk_bf16_f32 v{O+8+(r>>1)}, -v{DIM+r}, -v{DIM+1+r}")
    a.nop(2)
    for base in (O, O + 4, O + 8, O + 12):
        a(f"v_permlane32_swap_b32 v{base}, v{base+2}")
        a(f"v_permlane32_swap_b32 v{base+1}, v{base+3}")
    a.nop(1)
    for base in (O, O + 8):
        for i in range(4): a(f"v_permlane16_swap_b32 v{base+i}, v{base+4+i}")

def gen(a):
    a.label(NAME + "_kernel")
    a("s_cmp_ge_u32 s2, 256")
    a("s_cbranch_scc1 L_end")
    a("s_load_dwordx8 s[48:55], s[0:1], 0")
    if CPF:
        a("s_getpc_b64 s[92:93]")
        a.label("L_pc0")
        a(f"s_sub_u32 s92, s92, L_pc0-{NAME}_kernel")
        a("s_subb_u32 s93, s93, 0")
        a("s_lshr_b32 s94, s2, 3")
        a("s_lshl_b32 s94, s94, 10")
        a("v_lshlrev_b32 v10, 7, v0")
        a("v_add_u32 v10, s94, v10")
        a(f"v_min_u32 v10, L_end-{NAME}_kernel, v10")
        a("v_cmp_gt_u32 vcc, 8, v0")
        a("s_and_saveexec_b64 s[94:95], vcc")
        a("s_cbranch_execz L_noct")
        a("global_load_dword v243, v10, s[92:93]")
        a.label("L_noct")
        a("s_mov_b64 exec, -1")
    a("s_load_dwordx8 s[56:63], s[0:1], 48")
    a("s_load_dwordx2 s[78:79], s[0:1], 80")
    a("s_memrealtime s[98:99]")
    a("v_and_b32 v1, 63, v0")
    a("v_lshrrev_b32 v2, 6, v0")
    a("v_lshlrev_b32 v19, 4, v1")
    a(f"v_readfirstlane_b32 s{sWV}, v2")
    a(f"s_and_b32 s{sTILE}, s2, 3")
    a(f"s_lshl_b32 s{sTILE}, s{sTILE}, 2")
    a("s_bfe_u32 s80, s2, 0x20003")
    a(f"s_add_u32 s{sTILE}, s{sTILE}, s80")
    a(f"s_bfe_u32 s{sKH}, s2, 0x10002")
    a(f"s_lshr_b32 s{sC8}, s2, 5")
    a(f"s_lshl_b32 s{sCT}, s{sKH}, 3")
    a(f"s_add_u32 s{sCT}, s{sCT}, s{sC8}")
    a(f"s_lshr_b32 s{sT1}, s{sTILE}, 1")
    a(f"s_and_b32 s{sJH}, s{sTILE}, 1")
    a(f"s_and_b32 s{sLW}, s{sWV}, 3")
    a(f"s_lshl_b32 s80, s{sWV}, 8")
    a("s_add_u32 s80, s80, s2")
    a("s_lshl_b32 s80, s80, 11")
    a("s_waitcnt lgkmcnt(0)")
    srd(a, S_X, 48, 49, 4 * MB)
    a(f"buffer_load_dwordx4 v[{PX}:{PX+3}], v19, {SR(S_X)}, s80 offen")
    a(f"buffer_load_dwordx4 v[{PX+4}:{PX+7}], v19, {SR(S_X)}, s80 offen offset:1024")
    srd(a, S_W1, 56, 57, 1024 * 3584 * 2)
    a("v_mov_b32 v240, v19")
    srd(a, S_W2, 58, 59, 1024 * 3584 * 2)
    srd(a, S_OUT, 60, 61, 4 * MB)
    srd(a, S_CR, 50, 51, 8 * MB)
    srd(a, S_CI, 52, 53, 8 * MB)
    srd(a, S_HF, 78, 79, 16 * MB, HF_OFF)
    srd(a, S_AP, 78, 79, 8 * MB, AP_OFF)
    srd(a, S_MISC, 78, 79, 16 * MB, MISC_OFF)
    srd(a, S_DBG, 62, 63, 256)
    if STAMP:
        srd(a, 68, 78, 79, 256 * NST * 4, 200 * MB)
        a(f"s_mul_i32 s72, s2, {NST*4}")
    a(f"s_lshl_b32 s48, s{sTILE}, 1")
    a(f"s_add_u32 s48, s48, s{sKH}")
    a("s_lshl_b32 s48, s48, 8")
    a(f"s_add_u32 s78, s48, {HFLAG_G}")
    a(f"s_lshl_b32 s48, s{sC8}, 5")
    a("s_add_u32 s79, s78, s48")
    a(f"s_lshl_b32 s48, s{sWV}, 2")
    a("s_add_u32 s79, s79, s48")
    a(f"s_lshr_b32 s{sMH}, s{sLW}, 1")
    a(f"s_and_b32 s{sNH}, s{sLW}, 1")
    a("v_mov_b32 v242, v19")
    a("v_mov_b32 v58, 0")
    stamp(a, 0)
    a(f"s_cmp_ge_u32 s{sWV}, 4")
    a("s_cbranch_scc1 L_hpre")
    consumer_pre(a)
    a("s_branch L_join")
    a.label("L_hpre")
    H = Helper(a)
    H.pre()
    a.label("L_join")
    consts(a)
    a(f"s_cmp_ge_u32 s{sWV}, 4")
    a("s_cbranch_scc1 L_hw")
    a("s_waitcnt vmcnt(1)")
    a("s_branch L_hw2")
    a.label("L_hw")
    H.after_x()
    a.label("L_hw2")
    stamp(a, 11); stamp(a, 19, wave=4)
    startup(a, H.inserts())
    a(f"s_cmp_ge_u32 s{sWV}, 4")
    a("s_cbranch_scc0 L_consumer")
    H.main()
    shared_epilogue(a)
    gen_consumer(a)
    a.label("L_end")
    a("s_endpgm")

CPF = OPT.get("cpf", "1") == "1"
def code_touch(a, wave, vt=10, vd=243):
    if not CPF: return None
    lab = a.uid("ct")
    a(f"s_cmp_lg_u32 s{sLW}, {wave}")
    a(f"s_cbranch_scc1 {lab}")
    a("s_getpc_b64 s[60:61]")
    here = a.uid("pc")
    a.label(here)
    a(f"s_sub_u32 s60, s60, {here}-{NAME}_kernel")
    a("s_subb_u32 s61, s61, 0")
    a("s_lshr_b32 s62, s2, 3")
    a("s_lshl_b32 s62, s62, 10")
    a(f"v_lshlrev_b32 v{vt}, 7, v1")
    a(f"v_add_u32 v{vt}, s62, v{vt}")
    a(f"v_min_u32 v{vt}, L_end-{NAME}_kernel, v{vt}")
    a("s_mov_b64 exec, 0xff")
    a(f"global_load_dword v{vd}, v{vt}, s[60:61]")
    a("s_mov_b64 exec, -1")
    a.label(lab)

def w1_touch_voff(a, d):
    a("v_mul_u32_u24 v10, 4682, v1")
    a("v_lshrrev_b32 v10, 16, v10")
    a("v_mul_u32_u24 v11, 14, v10")
    a("v_sub_u32 v11, v1, v11")
    a("v_lshrrev_b32 v12, 1, v10")
    a("v_and_b32 v10, 1, v10")
    a("v_lshl_add_u32 v10, v10, 3, v12")
    a(f"s_mov_b32 s56, {SLAB}")
    a("v_mul_lo_u32 v10, v10, s56")
    a(f"v_lshl_add_u32 v{d}, v11, 7, v10")
    a("s_mul_i32 s56, s2, 1792")
    a(f"v_add_u32 v{d}, s56, v{d}")
    a("v_cmp_gt_u32 vcc, 56, v1")
    a("v_bfrev_b32 v10, 1")
    a("s_nop 0")
    a(f"v_cndmask_b32 v{d}, v10, v{d}, vcc")

class Helper:
    def __init__(self, a):
        self.a = a
        self.vm = VM(a)
        self.vm.ops = ["x", "x"] + (["s"] * 0)
    def issueA(self, n, qs=range(4)):
        a, vm = self.a, self.vm
        slot = (n % 3) * G1_STAGE
        for q in qs:
            a(f"s_add_u32 m0, s96, {slot + q*1024}")
            a(f"s_add_u32 s55, s{84 if n < 8 else 85}, {q*16384 + n*128}")
            vm.op(f"buffer_load_dwordx4 v2, {SR(S_X)}, s55 offen lds", f"st{n}")
    def issueB(self, n, qs=range(8)):
        a, vm = self.a, self.vm
        slot = (n % 3) * G1_STAGE
        a("s_mov_b32 exec_hi, 0xffffff")
        for q in qs:
            roff = (8 * (q >> 1) + 2 * (q & 1)) * 7168
            a(f"s_add_u32 m0, s54, {slot + q*896}")
            if n < 8: a(f"s_add_u32 s55, s83, {n*SLAB + roff}")
            else: a(f"s_sub_u32 s55, {n*SLAB + roff}, s83")
            vm.op(f"buffer_load_dwordx4 v{3 + ((q >> 1) & 1)}, {SR(S_W1)}, s55 offen {W1F} lds", f"st{n}")
        a("s_mov_b64 exec, -1")
    def pre(self):
        a, vm = self.a, self.vm
        a("v_lshrrev_b32 v10, 3, v1")
        a("v_and_b32 v11, 7, v1")
        a("v_xor_b32 v11, v11, v10")
        a("v_lshlrev_b32 v2, 19, v10")
        a("v_lshl_add_u32 v2, v11, 4, v2")
        a(f"s_lshl_b32 s48, s{sJH}, 4")
        a(f"s_lshl_b32 s49, s{sLW}, 2")
        a("s_add_u32 s48, s48, s49")
        a("s_lshl_b32 s48, s48, 3")
        a(f"s_add_u32 s48, s48, s{sT1}")
        a("s_lshl_b32 s48, s48, 11")
        a(f"s_lshr_b32 s82, s{sTILE}, 3")
        a(f"s_mul_i32 s83, s82, {8*SLAB}")
        a("s_lshl_b32 s82, s82, 10")
        a("s_add_u32 s84, s48, s82")
        a("s_sub_u32 s85, s48, s82")
        a(f"s_lshl_b32 s96, s{sLW}, 12")
        if TV == 'a': self.issueA(0, range(2))
        a(f"s_lshl_b32 s48, s2, 3")
        a(f"s_add_u32 s48, s48, s{sLW}")
        a("s_cmp_lg_u32 s48, 1")
        a("s_cbranch_scc1 L_noepoch")
        a("v_mov_b32 v10, 0")
        a("s_or_b32 s48, s98, 1")
        a("v_mov_b32 v11, s48")
        a("s_mov_b64 exec, 1")
        a(f"buffer_store_dword v11, v10, {SR(S_DBG)}, 0 offen sc1")
        a("s_mov_b64 exec, -1")
        a.label("L_noepoch")
        a(f"s_lshr_b32 s49, s{sLW}, 1")
        a("s_lshl_b32 s49, s49, 5")
        a(f"s_and_b32 s50, s{sLW}, 1")
        a("s_lshl_b32 s50, s50, 2")
        a("s_add_u32 s49, s49, s50")
        a("s_mul_i32 s49, s49, 7168")
        a(f"s_mul_i32 s50, s{sCT}, 448")
        a("s_add_u32 s49, s49, s50")
        a("v_cmp_lt_u32 vcc, 27, v1")
        a("v_subrev_u32 v10, 28, v1")
        a(f"v_mov_b32 v11, 7168")
        a("v_cndmask_b32 v10, v1, v10, vcc")
        a("v_cndmask_b32 v11, 0, v11, vcc")
        a("v_add_u32 v11, s49, v11")
        a("v_lshl_add_u32 v3, v10, 4, v11")
        a("v_xor_b32 v10, 2, v10")
        a("v_lshl_add_u32 v4, v10, 4, v11")
        a(f"s_mul_i32 s54, s{sLW}, 7168")
        a("s_add_u32 s54, s54, 16384")
        a(f"s_and_b32 s87, s{sTILE}, 7")
    def late_setup(self):
        a = self.a
        w1_touch_voff(a, 14)
        a(f"v_bfrev_b32 v{OOB}, 1")
        a("v_lshlrev_b32 v15, 7, v1")
        a("v_cmp_gt_u32 vcc, 56, v1")
        a(f"s_and_b32 s59, s{sLW}, 1")
        a("s_mul_i32 s80, s2, 28672")
        a(f"v_cndmask_b32 v15, v{OOB}, v15, vcc")
        g1_bfrag_addrs(a, 59, 36, 37, 38, 10, 11)
        a(f"s_lshr_b32 s60, s{sLW}, 1")
        a(f"s_mul_i32 s61, s60, {32*448}")
        for r in (36, 37, 38): a(f"v_add_u32 v{r}, s61, v{r}")
        a("v_lshrrev_b32 v10, 4, v1")
        a("v_lshlrev_b32 v10, 4, v10")
        a("s_mul_i32 s60, s60, 896")
        a(f"s_add_u32 s60, s60, {L_CS4}")
        a("s_mul_i32 s61, s59, 384")
        a("s_add_u32 s61, s61, s60")
        a("v_add_u32 v39, s61, v10")
        a("s_lshl_b32 s61, s59, 6")
        a("s_add_u32 s61, s61, 768")
        a("s_add_u32 s61, s61, s60")
        a("v_add_u32 v40, s61, v10")
        a(f"s_lshl_b32 s86, s{sCT}, 4")
        a(f"s_add_u32 s86, s86, s{sTILE}")
        a("s_mul_i32 s86, s86, 896")
        a(f"s_add_u32 s86, s86, {CS_G}")
        a(f"s_and_b32 s87, s{sTILE}, 7")
        for i in range(4): a(f"v_mov_b32 v{44+i}, 0x3f803f80")
        a("s_and_b32 s60, s2, 7")
        a("s_lshl_b32 s60, s60, 1")
        a("s_lshr_b32 s61, s2, 7")
        a("s_add_u32 s60, s60, s61")
        a("s_bfe_u32 s61, s2, 0x40003")
        a("s_lshl_b32 s90, s60, 10")
        a("s_lshl_b32 s91, s61, 6")
        a("s_add_u32 s90, s90, s91")
        a("s_lshl_b32 s95, s60, 20")
        a("s_lshr_b32 s62, s61, 1")
        a("s_lshl_b32 s62, s62, 10")
        a("s_add_u32 s95, s95, s62")
        a("s_and_b32 s62, s61, 1")
        a("s_lshl_b32 s62, s62, 7")
        a("s_add_u32 s95, s95, s62")
        a(f"s_lshl_b32 s62, s{sLW}, 14")
        a("s_add_u32 s95, s95, s62")
        a(f"s_add_u32 s95, s95, {112*8192}")
        a("s_lshl_b32 s91, s60, 7")
        a("s_lshl_b32 s61, s61, 2")
        a("s_add_u32 s91, s91, s61")
        a(f"s_add_u32 s91, s91, {RS_G}")
        a(f"s_lshl_b32 s92, s{sCT}, 7")
        a(f"s_lshl_b32 s61, s{sTILE}, 2")
        a("s_add_u32 s92, s92, s61")
        a(f"s_add_u32 s92, s92, {RC_G}")
        a("s_lshl_b32 s93, s2, 2")
        a(f"s_add_u32 s93, s93, {QF_G}")
        a("v_cmp_gt_u32 vcc, 16, v1")
        a(f"s_lshl_b32 s60, s{sTILE}, 7")
        a(f"s_add_u32 s60, s60, {RS_G}")
        a(f"s_lshl_b32 s61, s{sCT}, 7")
        a(f"s_add_u32 s61, s61, {RC_G}")
        a("v_mov_b32 v62, s60")
        a("v_mov_b32 v63, s61")
        a("v_and_b32 v10, 15, v1")
        a("v_cndmask_b32 v62, v63, v62, vcc")
        a("v_lshl_add_u32 v62, v10, 2, v62")
        a("v_lshlrev_b32 v41, 6, v10")
        a("v_bfe_u32 v10, v1, 4, 1")
        a("v_lshl_add_u32 v41, v10, 5, v41")
        a("v_lshrrev_b32 v11, 5, v1")
        a("v_lshl_add_u32 v41, v11, 4, v41")
        a("v_and_b32 v12, 7, v1")
        a("v_lshlrev_b32 v42, 20, v12")
        a("v_lshl_add_u32 v42, v11, 6, v42")
        a("v_bfe_u32 v10, v1, 3, 2")
        a("v_lshl_add_u32 v42, v10, 3, v42")
        a("v_lshlrev_b32 v43, 4, v12")
        a("v_lshl_add_u32 v43, v11, 13, v43")
        a("v_lshl_add_u32 v43, v10, 8, v43")
        a(f"s_lshl_b32 s89, s{sLW}, 20")
        a("s_lshl_b32 s60, s2, 11")
        a("s_add_u32 s89, s89, s60")
        a(f"s_add_u32 s88, s89, {4*MB}")
    def after_x(self):
        self.vm.wait("x")
        stamp(self.a, 23, wave=4)
        self.issueA(0, range(2 if TV == 'a' else 0, 4))
        self.issueB(0, range(4 if TV == 'a' else 3))
    def inserts(self):
        vm = self.vm; a = self.a
        def r8():
            a(f"v_add_u32 v11, {L_K}, v240")
            for q in range(14): a(f"ds_read_b128 v[{TC+4*q}:{TC+4*q+3}], v11 offset:{q*1024}")
            self.issueA(1); self.issueB(1)
            vm.op(f"buffer_load_dword v59, v58, {SR(S_DBG)}, 0 offen sc1", "ep")
        return {"ln": lambda: self.issueB(0, range(4 if TV == 'a' else 3, 8)), "r8": r8}
    def main(self):
        a, vm = self.a, self.vm
        def job_colsum(n):
            lab = a.uid("cs")
            a(f"s_cmp_lg_u32 s87, {n}")
            a(f"s_cbranch_scc1 {lab}")
            slot = (n % 3) * G1_STAGE
            for r in range(3): a(f"v_add_u32 v{10+r}, {slot}, v{36+r}")
            for i in range(7):
                for hh in range(2):
                    d = 64 + 4 * i + 2 * hh
                    if i < 6: a(f"ds_read_b64_tr_b16 v[{d}:{d+1}], v{10 + (i & 1)} offset:{16*hh*448 + i*32}")
                    else: a(f"ds_read_b64_tr_b16 v[{d}:{d+1}], v12 offset:{16*hh*448}")
            a("s_waitcnt lgkmcnt(0)")
            for i in range(7):
                a(f"v_mfma_f32_16x16x32_bf16 v[{92+4*i}:{95+4*i}], v[{64+4*i}:{67+4*i}], v[44:47], 0")
            a("s_mov_b32 exec_lo, 0x00010001")
            a("s_mov_b32 exec_hi, 0x00010001")
            a.nop(6)
            for i in range(6): a(f"ds_write_b128 v39, v[{92+4*i}:{95+4*i}] offset:{64*i}")
            a("ds_write_b128 v40, v[116:119]")
            a("s_mov_b64 exec, -1")
            a.label(lab)
        def job_csstore():
            a(f"v_add_u32 v11, {L_CS4}, v19")
            a("ds_read_b128 v[28:31], v11")
            a("ds_read_b128 v[32:35], v11 offset:896")
            sel_voff(a, 18, 19, 1)
            a("s_waitcnt lgkmcnt(0)")
            a("v_pk_add_f32 v[28:29], v[28:29], v[32:33]")
            a("v_pk_add_f32 v[30:31], v[30:31], v[34:35]")
            a("s_mov_b32 exec_hi, 0xffffff")
            vm.op(f"buffer_store_dwordx4 v[28:31], v18, {SR(S_MISC)}, s86 offen sc1", "pub")
            a("s_mov_b64 exec, -1")
        def job_spf(srdb, sreg, k0, k1):
            for k in range(k0, k1): a(f"s_buffer_load_dword s100, {SR(srdb)}, s{sreg} offset:{k*128}")
        def job_pub0():
            a(f"v_add_u32 v20, {L_ST8}, v19")
            a("ds_read_b128 v[48:51], v20")
            a("s_waitcnt lgkmcnt(0)")
        def job_statstore():
            sel_voff(a, 18, 19, 0)
            a("s_mov_b64 exec, 15")
            vm.op(f"buffer_store_dwordx4 v[48:51], v18, {SR(S_MISC)}, s90 offen offset:{STAT_G} sc1", "pub")
            a("s_mov_b64 exec, -1")
        def job_epoch():
            vm.wait("ep")
            spin(a, "ep", [f"buffer_load_dword v59, v58, {SR(S_DBG)}, 0 offen sc1"],
                 [f"v_readfirstlane_b32 s{sEP}, v59", "s_nop 0", f"s_cmp_lg_u32 s{sEP}, 0"], first_loaded=True)
            a(f"v_mov_b32 v60, s{sEP}")
        def job_ap(k):
            reg = (FR if k < 4 else 184) + 4 * (k & 3)
            so = 88 if k < 4 else 89
            if (k & 3) == 2: a(f"s_add_u32 s{so}, s{so}, {256*2048}")
            vm.op(f"buffer_store_dwordx4 v[{reg}:{reg+3}], v41, {SR(S_AP)}, s{so} offen offset:{(k & 1)*1024} sc1", "pub")
        def job_cload():
            a(f"s_lshl_b32 s60, s{sLW}, 7")
            a("s_lshl_b32 s61, s2, 12")
            a("s_add_u32 s60, s60, s61")
            for i, srdc in enumerate((S_CR, S_CI)):
                vm.op(f"buffer_load_dwordx2 v[{20+4*i}:{21+4*i}], v42, {SR(srdc)}, s60 offen nt", "cl")
                vm.op(f"buffer_load_dwordx2 v[{22+4*i}:{23+4*i}], v42, {SR(srdc)}, s60 offen offset:32 nt", "cl")
        def job_cstore():
            vm.wait("cl")
            vm.op(f"buffer_store_dwordx4 v[20:23], v43, {SR(S_HF)}, s95 offen sc1", "pub")
            a("s_add_u32 s95, s95, 65536")
            vm.op(f"buffer_store_dwordx4 v[24:27], v43, {SR(S_HF)}, s95 offen sc1", "pub")
        def job_ready():
            li = lambda t: max(i for i, x in enumerate(vm.ops) if x == t)
            assert li("pub") < li(f"st{EV[2]}"), "pub not covered"
            sel_voff(a, 18, 58, 0)
            a("s_mov_b64 exec, 1")
            for sr_ in (91, 92):
                vm.op(f"buffer_store_dword v60, v18, {SR(S_MISC)}, s{sr_} offen sc1", "rdy")
            a("s_mov_b64 exec, -1")
        CHK_LD = [f"buffer_load_dword v63, v62, {SR(S_MISC)}, 0 offen sc1"]
        CHK = [f"v_cmp_ne_u32 vcc, s{sEP}, v63", "s_nop 1", "s_cmp_eq_u64 vcc, 0"]
        QLD = [f"buffer_load_dwordx4 v[52:55], v19, {SR(S_MISC)}, s97 offen sc1"]
        QCHK = [f"v_xor_b32 v{52+i}, s{sEP}, v{52+i}" for i in range(4)] + \
              ["v_or_b32 v52, v52, v53", "v_or3_b32 v52, v52, v54, v55", "v_cmp_ne_u32 vcc, 0, v52", "s_nop 1", "s_cmp_eq_u64 vcc, 0"]
        def job_pload():
            for l in CHK_LD: vm.op(l, "pl")
        def job_gather():
            vm.wait("pl")
            spin(a, "pp", CHK_LD, CHK, first_loaded=True)
            a(f"s_lshl_b32 s60, s{sTILE}, 10")
            a(f"s_lshl_b32 s61, s{sLW}, 8")
            a("s_add_u32 s60, s60, s61")
            a(f"s_add_u32 m0, s61, {L_STAT}")
            a("v_lshlrev_b32 v10, 2, v1")
            vm.op(f"buffer_load_dword v10, {SR(S_MISC)}, s60 offen sc1 lds", "g")
            a("v_lshrrev_b32 v10, 4, v1")
            a("v_mul_u32_u24 v10, 3584, v10")
            a("v_and_b32 v11, 15, v1")
            a("v_lshl_add_u32 v10, v11, 4, v10")
            a(f"s_mul_i32 s60, s{sCT}, {16*896}")
            a(f"s_mul_i32 s61, s{sLW}, 224")
            a("s_add_u32 s60, s60, s61")
            a(f"s_add_u32 s60, s60, {CS_G}")
            for p in range(4):
                vm.op(f"buffer_load_dwordx4 v[{20+4*p}:{23+4*p}], v10, {SR(S_MISC)}, s60 offen offset:{896*p} sc1", "g")
            a(f"s_add_u32 s61, s61, {L_CSUM}")
            a("v_lshlrev_b32 v11, 4, v11")
            a("v_add_u32 v11, s61, v11")
        def job_gather2():
            vm.wait("g")
            for p in range(1, 4):
                a(f"v_pk_add_f32 v[20:21], v[20:21], v[{20+4*p}:{21+4*p}]")
                a(f"v_pk_add_f32 v[22:23], v[22:23], v[{22+4*p}:{23+4*p}]")
            for sw in ("v_permlane16_swap_b32", "v_permlane32_swap_b32"):
                for i in range(4): a(f"v_mov_b32 v{24+i}, v{20+i}")
                for i in range(4): a(f"{sw} v{24+i}, v{20+i}")
                a("v_pk_add_f32 v[20:21], v[20:21], v[24:25]")
                a("v_pk_add_f32 v[22:23], v[22:23], v[26:27]")
            a(f"v_mov_b32 v57, {L_ST8+64}")
            a("s_mov_b64 exec, 0x3fff")
            a("ds_write_b128 v11, v[20:23]")
            a("ds_write_b32 v57, v60")
            a("s_mov_b64 exec, -1")
        EV = [int(x) for x in OPT.get("ev", "4,6,11").split(",")]
        CATCH = int(OPT.get("catch", "15"))
        def w2touch(k):
            sel_voff(a, 18, 15, k)
            a(f"s_add_u32 s55, s80, {k*7168}")
            vm.op(f"buffer_load_dword v16, v18, {SR(S_W2)}, s55 offen", "touch")
        before = {0: [job_pub0], 13: [job_pload], 14: [job_gather]}
        after = {2: [job_epoch], 15: [job_gather2]}
        after.setdefault(EV[0], []).extend([lambda: w2touch(0), lambda: w2touch(1), job_cload])
        after.setdefault(8, []).extend([job_csstore, job_statstore, job_cstore])
        after.setdefault(EV[1], []).extend([lambda: w2touch(2)])
        after.setdefault(EV[2], []).extend([job_ready, lambda: w2touch(3), lambda: code_touch(a, 2, 10, 16)])
        assert EV[2] >= 11 and EV[1] <= 8
        units = [(st, i) for st in range(2, 16) for i in range(12)]
        skip = set(x + 1 for x in EV) if OPT.get("elastic", "0") == "1" else set()
        def issue_units(n):
            q = 0 if n in skip else CATCH
            todo = []
            while units and units[0][0] <= n + 2 and (len(todo) < q or units[0][0] <= n + 1):
                todo.append(units.pop(0))
            for st in sorted(set(t[0] for t in todo)):
                A = [i for s_, i in todo if s_ == st and i < 4]; B = [i - 4 for s_, i in todo if s_ == st and i >= 4]
                if A: self.issueA(st, A)
                if B: self.issueB(st, B)
        T2S = [int(x) for x in OPT.get("t2s", "0,2").split(",")]
        def w1t(k):
            sel_voff(a, 18, 14, k)
            a(f"s_mov_b32 s55, {(4 + 2*k)*SLAB}")
            vm.op(f"buffer_load_dword v16, v18, {SR(S_W1)}, s55 offen", "touch")
        for k in range(2): after.setdefault(T2S[k], []).insert(0, lambda k=k: w1t(k))
        after[0].insert(0, self.late_setup)
        after[0].append(lambda: job_colsum(0))
        stamp(a, 13, wave=4)
        for n in range(16):
            htrace(a)
            vm.wait(f"st{n}", " lgkmcnt(0)")
            htrace(a)
            a("s_barrier")
            htrace(a)
            for j in before.get(n, []): j()
            issue_units(n)
            htrace(a)
            if 0 < n < 8: job_colsum(n)
            for j in after.get(n, []): j()
        a("s_waitcnt lgkmcnt(0)")
        a("s_barrier")
        def g2_addr():
            a("v_add_u32 v232, s96, v240")
            a("v_lshrrev_b32 v10, 4, v1")
            a("v_and_b32 v11, 15, v1")
            a("v_lshlrev_b32 v12, 1, v10")
            a("v_xor_b32 v13, v11, v12")
            a("v_lshlrev_b32 v233, 11, v10")
            a("v_lshl_add_u32 v234, v13, 4, v233")
            a("v_xor_b32 v13, 8, v13")
            a("v_lshl_add_u32 v235, v13, 4, v233")
            a(f"v_add_u32 v235, {4*2048}, v235")
            a(f"s_lshl_b32 s60, s{sLW}, 15")
            a(f"s_lshl_b32 s61, s{sC8}, 8")
            a("s_add_u32 s60, s60, s61")
            a("v_add_u32 v233, s60, v234")
            a("v_add_u32 v234, s60, v235")
            a(f"s_lshl_b32 s60, s{sMH}, 13")
            a("v_subrev_u32 v232, s60, v232")
            a(f"s_lshl_b32 s60, s{sMH}, 16")
            a("v_subrev_u32 v228, s60, v233")
            a("v_subrev_u32 v229, s60, v234")
        a("s_add_u32 s84, s96, 16384")
        a(f"s_lshr_b32 s60, s{sLW}, 1")
        a("s_lshl_b32 s85, s60, 13")
        a(f"s_and_b32 s60, s{sLW}, 1")
        a("s_lshl_b32 s60, s60, 12")
        a("s_add_u32 s85, s85, s60")
        a(f"s_lshl_b32 s60, s{sKH}, 11")
        a("s_add_u32 s85, s85, s60")
        a(f"s_lshl_b32 s87, s{sTILE}, 20")
        a(f"s_mul_i32 s82, s{sKH}, {56*8192}")
        a("s_add_u32 s82, s82, s87")
        a("s_add_u32 s87, s87, s85")
        a(f"s_add_u32 s87, s87, {112*8192}")
        a(f"s_lshl_b32 s88, s{sT1}, 20")
        a(f"s_mul_i32 s83, s{sKH}, {1792*2048}")
        a(f"s_mul_i32 s90, s{sC8}, 7")
        a(f"s_add_u32 s90, s90, s{sMH}")
        vm.ops = []
        def g2B(slot, srdb, soff, tag, fl="", vb=233):
            a(f"s_add_u32 s55, {soff}, 16384")
            for q in range(4):
                a(f"s_add_u32 m0, s84, {slot + q*1024}")
                if q: a("s_nop 0")
                so = soff if q < 2 else "s55"
                if q == 0: a("s_nop 0")
                vm.op(f"buffer_load_dwordx4 v{vb + (q & 1)}, {SR(srdb)}, {so} offen {fl} lds", tag)
            if vb == 233: a(f"s_add_u32 {soff}, {soff}, 131072")
        def stB(n):
            a("s_lshl_b32 s91, s89, 16")
            a("s_add_u32 s91, s91, s83")
            g2B((n % 4) * G2_STAGE, S_W2, "s91", f"s{n}", W2F, vb=228)
            a("s_add_u32 s89, s89, 2")
            a("s_sub_u32 s92, s89, 56")
            a("s_cmp_ge_u32 s89, 56")
            a("s_cselect_b32 s89, s92, s89")
        def stA(n):
            a(f"s_add_u32 m0, s96, {(n % 4) * G2_STAGE}")
            a("s_lshl_b32 s91, s90, 13")
            a("s_add_u32 s91, s91, s82")
            for q in range(4):
                vm.op(f"buffer_load_dwordx4 v232, {SR(S_HF)}, s91 offen offset:{q*1024} sc1 lds", f"s{n}")
            a("s_add_u32 s90, s90, 2")
            a("s_sub_u32 s92, s90, 56")
            a("s_cmp_ge_u32 s90, 56")
            a("s_cselect_b32 s90, s92, s90")
        def stage(n):
            slot = (n % 4) * G2_STAGE
            if n >= 28:
                a(f"s_add_u32 m0, s85, {slot}")
                a("s_nop 0")
                for q in range(2):
                    vm.op(f"buffer_load_dwordx4 v240, {SR(S_HF)}, s87 offen offset:{q*1024} sc1 lds", f"s{n}")
                a("s_add_u32 s87, s87, 16384")
                g2B(slot, S_AP, "s88", f"s{n}", "sc1")
            else:
                stB(n); stA(n)
        a("s_mov_b32 s89, s90")
        a("v_lshrrev_b32 v12, 5, v1"); a("v_lshlrev_b32 v12, 8, v12")
        a("v_bfe_u32 v10, v1, 2, 2"); a("v_lshl_add_u32 v12, v10, 6, v12")
        a("v_bfe_u32 v10, v1, 4, 1"); a("v_lshl_add_u32 v12, v10, 5, v12")
        a("v_and_b32 v10, 3, v1"); a("v_lshl_add_u32 v12, v10, 3, v12")
        a(f"s_cmp_eq_u32 s{sLW}, 0")
        a("s_cselect_b32 s56, 0, -1")
        a(f"s_lshl_b32 s58, s{sLW}, 12")
        a(f"s_add_u32 s58, s58, {L_U}")
        a("s_mov_b32 s57, 0")
        a("s_lshl_b32 s59, s2, 11")
        a(f"s_lshl_b32 s60, s{sLW}, 20")
        a("s_add_u32 s60, s60, s59")
        a("s_mov_b32 s86, 0")
        a.label("L_fft")
        a("v_add_u32 v13, s58, v12")
        a(f"s_add_u32 s61, s60, {256*2048}")
        fft(a)
        for k in range(4):
            a(f"buffer_store_dwordx4 v[{FR+4*k}:{FR+4*k+3}], v41, {SR(S_AP)}, s{60 + (k >> 1)} offen offset:{(k & 1)*1024} sc1")
        a(f"s_cmp_eq_u32 s{sLW}, 0")
        a(f"s_cselect_b32 s58, {L_U+2048}, s58")
        a("s_cselect_b32 s57, 0, 0x80008000")
        a(f"s_sub_u32 s60, 8, s{sLW}")
        a(f"s_cmp_eq_u32 s{sLW}, 0")
        a("s_cselect_b32 s60, 4, s60")
        a("s_lshl_b32 s60, s60, 20")
        a("s_add_u32 s60, s60, s59")
        a("s_add_u32 s86, s86, 1")
        a("s_cmp_ge_u32 s86, 2")
        a("s_cbranch_scc1 L_fft_done")
        a("s_barrier")
        a("s_branch L_fft")
        a.label("L_fft_done")
        vm.ops += ["ap"] * 8
        g2_addr()
        for n in range(4): stB(n)
        a("v_mov_b32 v238, 0")
        a("v_and_b32 v10, 3, v1"); a("v_lshrrev_b32 v236, 2, v1"); a("v_and_b32 v236, 7, v236")
        a("v_lshlrev_b32 v236, 5, v236"); a("v_lshl_add_u32 v236, v10, 2, v236")
        sel_voff(a, 231, 238, 0)
        a(f"s_mov_b32 s97, {QF_G}")
        stamp(a, 14, wave=4)
        a("s_barrier")
        stamp(a, 15, wave=4)
        for n in range(3): stA(n)
        HLD = f"buffer_load_dword v237, v236, {SR(S_MISC)}, s78 offen sc1"
        HCHK = [f"v_cmp_ne_u32 vcc, s{sEP}, v237", "s_nop 1", "s_cmp_eq_u64 vcc, 0"]
        QLD2 = f"buffer_load_dwordx4 v[52:55], v240, {SR(S_MISC)}, s97 offen sc1"
        vm.op(HLD, "hl")
        LOOP_S, LOOP_E = 4, 20
        n = 0
        while n < 36:
            if n == LOOP_S:
                a("s_mov_b32 s86, 0")
                a.label("L_h_g2loop")
                for u in range(4):
                    a("s_waitcnt vmcnt(16)")
                    a("s_barrier")
                    stage(n + u + 3)
                a("s_add_u32 s86, s86, 1")
                a(f"s_cmp_lt_u32 s86, {(LOOP_E-LOOP_S)//4}")
                a("s_cbranch_scc1 L_h_g2loop")
                vm.ops = [f"s{LOOP_E}"] * 8 + [f"s{LOOP_E+1}"] * 8 + [f"s{LOOP_E+2}"] * 8
                n = LOOP_E
                continue
            vm.wait(f"s{n}")
            a("s_barrier")
            m = n + 3
            if n == 0:
                vm.wait("hl")
                spin(a, "hp", [HLD], HCHK, first_loaded=True)
                stA(3)
            elif m < 36:
                if m == 28:
                    vm.wait("ql")
                    spin(a, "qp", [QLD2], QCHK, first_loaded=True)
                stage(m)
            if n == 1:
                a("s_mov_b64 exec, 1")
                vm.op(f"buffer_store_dword v60, v231, {SR(S_MISC)}, s93 offen sc1", "qf")
                a("s_mov_b64 exec, -1")
            if m == 25: vm.op(QLD2, "ql")
            n += 1
        htrace_store(a)
        a("s_endpgm")

L_HAND = 2 * G2_STAGE
def epi_setup(role):
    L16 = 240
    return [
        "v_lshrrev_b32 v10, 4, v1", "v_lshlrev_b32 v10, 4, v10",
        f"s_mul_i32 s48, s{sNH}, 384", f"s_add_u32 s48, s48, {L_CSUM}", "v_add_u32 v11, s48, v10",
        f"s_lshl_b32 s48, s{sNH}, 6", f"s_add_u32 s48, s48, {L_CSUM+768}", "v_add_u32 v12, s48, v10",
        "v_and_b32 v10, 15, v1", "v_lshlrev_b32 v10, 3, v10",
        f"s_lshl_b32 s48, s{sMH}, 9", f"s_add_u32 s48, s48, {L_STAT + role*256}", "v_add_u32 v10, s48, v10",
        f"s_lshl_b32 s48, s{sMH}, 12", f"s_add_u32 s48, s48, {role*2048}", f"v_add_u32 v2, s48, v{L16}",
        f"s_add_u32 s48, s48, {3*G2_STAGE}", f"s_lshl_b32 s54, s{sNH}, 3", "s_add_u32 s54, s54, s48", f"v_add_u32 v3, s54, v{L16}",
        f"s_lshl_b32 s54, s{sNH}, {10 if SHARE else 11}", "s_add_u32 s48, s48, s54", f"v_add_u32 v4, s48, v{L16}",
        f"s_mul_i32 s48, s{sCT}, 7", f"s_mul_i32 s49, s{sNH}, 3", "s_add_u32 s49, s49, s48",
        "s_lshl_b32 s49, s49, 13", f"s_lshl_b32 s53, s{sTILE}, 20", "s_add_u32 s49, s49, s53",
        "s_add_u32 s50, s49, 8192", "s_add_u32 s51, s49, 16384",
        "s_add_u32 s52, s48, 6", "s_lshl_b32 s52, s52, 13", "s_add_u32 s52, s52, s53",
        "s_add_u32 s52, s52, s54", f"v_mov_b32 v13, {L_ST8+64}"]

def shared_epilogue(a):
    NF = 2 if SHARE else 4
    a.label("L_epi")
    CB = 128; SB = 156; RL = 164
    a("ds_read_b32 v241, v13")
    for f in range(NF): a(f"ds_read_b64 v[{SB+2*f}:{SB+2*f+1}], v10 offset:{f*128}")
    a(f"ds_read_b128 v[{CB+24}:{CB+27}], v12")
    for nb in range(6): a(f"ds_read_b128 v[{CB+4*nb}:{CB+4*nb+3}], v11 offset:{nb*64}")
    a("s_waitcnt lgkmcnt(7)")
    for f in range(NF): a(f"v_rcp_f32 v{RL+2*f}, v{SB+2*f+1}")
    a("s_nop 0")
    for f in range(NF): a(f"v_mul_f32 v{RL+2*f}, {f2u(-LOG2E)}, v{RL+2*f}")
    a("s_waitcnt lgkmcnt(6)")
    def silu_ln(fs, accs, cs, temps, dsts):
        n = len(accs)
        S = lambda i: f"v[{SB+2*fs[i]}:{SB+2*fs[i]+1}]"
        R = lambda i: f"v[{RL+2*fs[i]}:{RL+2*fs[i]+1}]"
        for i in range(n):
            a(f"v_pk_fma_f32 v[{accs[i]}:{accs[i]+1}], v[{cs[i]}:{cs[i]+1}], {S(i)}, v[{accs[i]}:{accs[i]+1}] op_sel_hi:[1,0,1] neg_lo:[0,1,0] neg_hi:[0,1,0]")
        for i in range(n):
            a(f"v_pk_mul_f32 v[{temps[i]}:{temps[i]+1}], v[{accs[i]}:{accs[i]+1}], {R(i)} op_sel_hi:[1,0]")
        for i in range(n):
            a(f"v_exp_f32 v{temps[i]}, v{temps[i]}"); a(f"v_exp_f32 v{temps[i]+1}, v{temps[i]+1}")
        for i in range(n):
            a(f"v_pk_fma_f32 v[{temps[i]}:{temps[i]+1}], v[{temps[i]}:{temps[i]+1}], {S(i)}, {S(i)} op_sel:[0,1,1] op_sel_hi:[1,1,1]")
        for i in range(n):
            a(f"v_rcp_f32 v{temps[i]}, v{temps[i]}"); a(f"v_rcp_f32 v{temps[i]+1}, v{temps[i]+1}")
        for i in range(n):
            a(f"v_pk_mul_f32 v[{temps[i]}:{temps[i]+1}], v[{temps[i]}:{temps[i]+1}], v[{accs[i]}:{accs[i]+1}]")
        for i in range(n):
            a(f"v_cvt_pk_bf16_f32 v{dsts[i]}, v{temps[i]}, v{temps[i]+1}")
    TM = [184, 186, 188, 190]
    for h in range(NF // 2):
        fs = [2 * h, 2 * h, 2 * h + 1, 2 * h + 1]
        accs = [ACC + (f * 7 + 6) * 4 + 2 * (i & 1) for i, f in enumerate(fs)]
        d = 192 + 4 * h
        silu_ln(fs, accs, [CB + 24, CB + 26, CB + 24, CB + 26], TM, [d, d + 1, d + 2, d + 3])
        a(f"ds_write_b64 v3, v[{d}:{d+1}] offset:{2*h*1024}")
        a(f"ds_write_b64 v3, v[{d+2}:{d+3}] offset:{(2*h+1)*1024}")
    a("s_waitcnt lgkmcnt(0)")
    k = 0
    for pp in range(3):
        for f in range(NF):
            c = ACC + (f * 7 + 2 * pp) * 4
            d = 172 + (k & 1) * 4
            cc = CB + 8 * pp
            silu_ln([f] * 4, [c, c + 2, c + 4, c + 6], [cc, cc + 2, cc + 4, cc + 6], TM, [d, d + 1, d + 2, d + 3])
            a(f"buffer_store_dwordx4 v[{d}:{d+3}], v2, {SR(S_HF)}, s{49+pp} offen offset:{f*1024} sc1")
            k += 1
            if k == EK:
                a("s_barrier")
                for i in range(NF // 2): a(f"ds_read_b128 v[{192+4*i}:{195+4*i}], v4 offset:{i*1024}")
            if k == EK + 1:
                a("s_waitcnt lgkmcnt(0)")
                for i in range(NF // 2): a(f"buffer_store_dwordx4 v[{192+4*i}:{195+4*i}], v2, {SR(S_HF)}, s52 offen offset:{i*1024} sc1")
    if not SHARE:
        a("s_branch L_epi_ret_c")
        return
    a(f"s_cmp_ge_u32 s{sWV}, 4")
    a("s_cbranch_scc1 L_epi_ret_h")
    a("s_branch L_epi_ret_c")

def tlb_touch(a):
    if OPT.get("tlb", "0") == "0": return
    sh = int(OPT.get("tlbsh", "20"))
    lab = a.uid("tlb")
    a(f"s_cmp_lg_u32 s{sLW}, 1")
    a(f"s_cbranch_scc1 {lab}")
    a(f"v_lshlrev_b32 v10, {sh}, v1")
    a("s_lshr_b32 s60, s2, 3")
    for i, sd in enumerate((S_CR, S_CI, S_W1, S_W2, S_OUT, S_HF, S_AP, S_MISC)):
        l2 = a.uid("tlb")
        a(f"s_cmp_lg_u32 s60, {9+i}")
        a(f"s_cbranch_scc1 {l2}")
        a(f"buffer_load_dword v243, v10, {SR(sd)}, 0 offen sc1")
        a.label(l2)
    a.label(lab)

def consumer_pre(a):
    tlb_touch(a)
    w1_touch_voff(a, 242)
    if TV == "a":
        a(f"s_cmp_eq_u32 s{sLW}, 3")
        a("s_mov_b32 s49, 0")
    else:
        a(f"s_cmp_ge_u32 s{sLW}, 2")
        a(f"s_cselect_b32 s49, 1, 0")
        a(f"s_and_b32 s49, s49, s{sLW}")
        a(f"s_xor_b32 s49, s49, 1")
        a(f"s_mul_i32 s49, s49, {2*SLAB}")
        a(f"s_cmp_ge_u32 s{sLW}, 2")
    a("s_cselect_b64 s[62:63], -1, 0")
    a("v_cndmask_b32 v11, v10, v242, s[62:63]")
    a(f"buffer_load_dword v241, v11, {SR(S_W1)}, s49 offen")
    a("v_and_b32 v10, 15, v1")
    a("v_lshrrev_b32 v11, 4, v1")
    a("v_and_b32 v12, 7, v1")
    a("v_xor_b32 v11, v11, v12")
    a("v_lshlrev_b32 v2, 7, v10")
    a("v_lshl_add_u32 v2, v11, 4, v2")
    a(f"s_lshl_b32 s48, s{sMH}, 13")
    a("v_add_u32 v2, s48, v2")
    a("v_xor_b32 v15, 64, v2")
    g1_bfrag_addrs(a, sNH, 3, 4, 5, 10, 11)
    a(f"s_add_u32 s97, s{sLW}, {1 if TV == 'a' else 2}")
    a(f"s_mul_i32 s97, s97, {2*SLAB}")
    a("v_bfrev_b32 v10, 1")
    a("v_cndmask_b32 v242, v242, v10, s[62:63]")
    a(f"s_mov_b32 s{sSLOT}, 0")
    a("v_mov_b32 v6, v2"); a("v_mov_b32 v7, v3"); a("v_mov_b32 v8, v4"); a("v_mov_b32 v9, v5"); a("v_mov_b32 v14, v15")

def gen_consumer(a):
    a.label("L_consumer")
    SET = [128, 172]
    L16 = 240
    a(f"s_lshl_b32 s48, s{sLW}, 12")
    a(f"s_add_u32 s48, s48, {L_XN}")
    a(f"v_add_u32 v10, s48, v{L16}")
    def reads(st, kb):
        L = []; b = SET[st]
        order = [("a", 0), ("w", 0), ("w", 1), ("a", 1), ("w", 2), ("w", 3), ("a", 2), ("w", 4), ("w", 5), ("a", 3), ("w", 6)]
        for kind, i in order:
            if kind == "a":
                L.append(f"ds_read_b128 v[{b+4*i}:{b+4*i+3}], v{14 if kb else 6} offset:{i*2048}")
            else:
                for hh in range(2):
                    d = b + 16 + 4 * i + 2 * hh
                    ro = (32 * kb + 16 * hh) * 448
                    if i < 6: L.append(f"ds_read_b64_tr_b16 v[{d}:{d+1}], v{7 + (i & 1)} offset:{ro + i*32}")
                    else: L.append(f"ds_read_b64_tr_b16 v[{d}:{d+1}], v9 offset:{ro}")
        return L
    def mfmas(st, zero=False):
        b = SET[st]; L = []
        for f in range(4):
            for nb in range(7):
                c = ACC + (f * 7 + nb) * 4
                C = "0" if zero else f"v[{c}:{c+3}]"
                L.append(f"v_mfma_f32_16x16x32_bf16 v[{c}:{c+3}], v[{b+16+4*nb}:{b+19+4*nb}], v[{b+4*f}:{b+3+4*f}], {C}")
        return L
    def adv():
        return [f"s_add_u32 s{sSLOT}, s{sSLOT}, {G1_STAGE}", f"s_cmp_eq_u32 s{sSLOT}, {3*G1_STAGE}", f"s_cselect_b32 s{sSLOT}, 0, s{sSLOT}",
                f"v_add_u32 v6, s{sSLOT}, v2", f"v_add_u32 v7, s{sSLOT}, v3", f"v_add_u32 v8, s{sSLOT}, v4", f"v_add_u32 v9, s{sSLOT}, v5", f"v_add_u32 v14, s{sSLOT}, v15"]
    stamp(a, 12)
    a(f"s_setprio {CPRIO}")
    if STAMP: a("s_mov_b32 s97, 0")
    a("s_waitcnt lgkmcnt(0)")
    a("s_barrier")
    stamp(a, 1)
    trace_mark(a)
    for r in reads(0, 0): a(r)
    a("s_mov_b32 s86, 0")
    a("s_waitcnt lgkmcnt(0)")
    trace_commit(a)
    interleave(a, mfmas(0, True), reads(1, 1) + adv())
    a("s_branch L_c_g1mid")
    a.label("L_c_g1loop")
    U1 = 3
    for u in range(U1):
        a("s_waitcnt lgkmcnt(0)")
        trace_commit(a)
        interleave(a, mfmas(0), reads(1, 1) + adv())
        if u == 0: a.label("L_c_g1mid")
        a("s_waitcnt lgkmcnt(0)")
        a("s_barrier")
        trace_mark(a)
        tail = ["s_add_u32 s86, s86, 1", f"s_cmp_lt_u32 s86, {15//U1}"] if u == U1 - 1 else []
        interleave(a, mfmas(1), reads(0, 0) + tail)
    a("s_cbranch_scc1 L_c_g1loop")
    a("s_waitcnt lgkmcnt(0)")
    trace_commit(a)
    interleave(a, mfmas(0), reads(1, 1))
    a("s_waitcnt lgkmcnt(0)")
    hand = [f"s_lshl_b32 s48, s{sLW}, 14", f"s_add_u32 s48, s48, {L_HAND}", f"v_add_u32 v5, s48, v{L16}"]
    interleave(a, mfmas(1), hand + epi_setup(0), per=2)
    a("s_barrier")
    stamp(a, 2)
    a(f"s_setprio {EPRIO}")
    if SHARE:
        for i in range(14):
            c = ACC + 56 + 4 * i
            a(f"ds_write_b128 v5, v[{c}:{c+3}] offset:{i*1024}")
        a("s_waitcnt lgkmcnt(0)")
        a("s_barrier")
    a("s_branch L_epi")
    a.label("L_epi_ret_c")
    stamp(a, 3)
    a("v_readfirstlane_b32 s96, v241")
    ACO = 32; ACY = 96; SET2 = [128, 160]; XO = 192; PB = 208
    a(f"s_lshl_b32 s48, s{sMH}, 12")
    a(f"s_lshl_b32 s49, s{sKH}, 11")
    a("s_add_u32 s50, s48, s49")
    a(f"v_add_u32 v2, s50, v{L16}")
    a("s_xor_b32 s49, s49, 2048")
    a("s_add_u32 s50, s48, s49")
    a(f"v_add_u32 v3, s50, v{L16}")
    a("v_lshrrev_b32 v11, 2, v1")
    a("v_and_b32 v12, 7, v11")
    a("v_lshlrev_b32 v11, 8, v11")
    a("v_and_b32 v13, 3, v1")
    a("v_lshl_add_u32 v11, v13, 3, v11")
    a("v_add_u32 v11, 16384, v11")
    a(f"s_lshl_b32 s48, s{sNH}, 2")
    a("v_xor_b32 v12, s48, v12")
    for nb in range(4):
        a(f"v_xor_b32 v13, {nb}, v12")
        a(f"v_lshl_add_u32 v{4+nb}, v13, 5, v11")
    for i in range(96): a(f"v_mov_b32 v{ACO+i}, 0")
    a(f"s_mov_b32 s{sSLOT}, 0")
    a("v_mov_b32 v14, v2"); a("v_mov_b32 v15, v3")
    for nb in range(4): a(f"v_mov_b32 v{16+nb}, v{4+nb}")
    late = [
        "v_mov_b32 v20, 0",
        f"s_lshl_b32 s48, s{sLW}, 2",
        "s_lshl_b32 s80, s2, 7", "s_add_u32 s80, s80, s48", f"s_add_u32 s80, s80, {XFLAG_G}", "s_xor_b32 s81, s80, 512",
        "v_and_b32 v9, 7, v1", "v_lshlrev_b32 v9, 19, v9", "v_bfe_u32 v10, v1, 3, 1", "v_lshl_add_u32 v9, v10, 14, v9",
        "v_bfe_u32 v10, v1, 4, 1", "v_lshl_add_u32 v9, v10, 5, v9", "v_bfe_u32 v10, v1, 5, 1", "v_lshl_add_u32 v9, v10, 4, v9",
        f"s_lshl_b32 s48, s{sJH}, 4", f"s_lshl_b32 s49, s{sMH}, 3", "s_add_u32 s48, s48, s49", f"s_lshl_b32 s49, s{sKH}, 2",
        "s_add_u32 s48, s48, s49", "s_lshl_b32 s48, s48, 3", f"s_add_u32 s48, s48, s{sT1}", "s_lshl_b32 s48, s48, 11",
        f"s_lshl_b32 s49, s{sC8}, 8", "s_add_u32 s48, s48, s49", f"s_lshl_b32 s49, s{sNH}, 7", "s_add_u32 s91, s48, s49",
        f"s_add_u32 s92, s91, {16*2048}", "s_lshl_b32 s93, s2, 2", f"s_add_u32 s93, s93, s{sLW}", "s_lshl_b32 s93, s93, 12",
        f"s_add_u32 s93, s93, {XB_G}", f"s_xor_b32 s94, s93, {4*4*4096}"]
    for l in late: a(l)
    zero_o = [f"v_mov_b32 v{ACO+i}, 0" for i in range(64)]
    def adv2():
        return [f"s_add_u32 s{sSLOT}, s{sSLOT}, {G2_STAGE}", f"s_and_b32 s{sSLOT}, s{sSLOT}, {4*G2_STAGE-1}",
                f"v_add_u32 v14, s{sSLOT}, v2", f"v_add_u32 v15, s{sSLOT}, v3"] + [f"v_add_u32 v{16+nb}, s{sSLOT}, v{4+nb}" for nb in range(4)]
    def reads2(st, kb, y=False):
        b = SET2[st]; L = []
        for i in range(4):
            if not (y and i >= 2):
                L.append(f"ds_read_b128 v[{b+4*i}:{b+4*i+3}], v{14 + (i >> 1)} offset:{kb*8192 + (i & 1)*1024}")
            for hh in range(2):
                d = b + 16 + i * 4 + hh * 2
                L.append(f"ds_read_b64_tr_b16 v[{d}:{d+1}], v{16+i} offset:{kb*8192 + hh*4096}")
        return L
    def mfmas2(st, y=False):
        b = SET2[st]; L = []
        for fp in range(2 if y else 4):
            for nb in range(4):
                c = (ACY if y else ACO) + (fp * 4 + nb) * 4
                w = b + 16 + nb * 4; x = b + fp * 4
                L.append(f"v_mfma_f32_16x16x32_bf16 v[{c}:{c+3}], v[{w}:{w+3}], v[{x}:{x+3}], v[{c}:{c+3}]")
        return L
    xl = []
    for fp in range(2):
        for pp in range(2):
            d = XO + (fp * 2 + pp) * 4
            xl.append(f"buffer_load_dwordx4 v[{d}:{d+3}], v9, {SR(S_X)}, s{91+fp} offen offset:{pp*64}")
    a("s_waitcnt vmcnt(0)")
    a("s_mov_b64 exec, 1")
    a(f"buffer_store_dword v241, v20, {SR(S_MISC)}, s79 offen sc1")
    a("s_mov_b64 exec, -1")
    stamp(a, 5)
    a("s_barrier")
    for l in xl: a(l)
    a(f"s_setprio {CPRIO}")
    a("s_barrier")
    stamp(a, 6)
    trace_mark(a)
    for r in reads2(0, 0): a(r)
    def step(y_cur, y_next, post=(), last=False, e1=()):
        a("s_waitcnt lgkmcnt(0)")
        trace_commit(a)
        interleave(a, mfmas2(0, y_cur), reads2(1, 1, y_cur) + ([] if last else adv2()) + list(e1), per=2)
        a("s_waitcnt lgkmcnt(0)")
        if not last:
            a("s_barrier")
            trace_mark(a)
            interleave(a, mfmas2(1, y_cur), reads2(0, 0, y_next) + list(post), per=2)
        else:
            interleave(a, mfmas2(1, y_cur), [])
    U2 = 3
    a("s_mov_b32 s86, 0")
    a.label("L_c_g2loop")
    for u in range(U2):
        step(False, False, post=(["s_add_u32 s86, s86, 1", f"s_cmp_lt_u32 s86, {27//U2}"] if u == U2 - 1 else []))
    a("s_cbranch_scc1 L_c_g2loop")
    step(False, True)
    stamp(a, 7)
    a(f"s_mov_b32 s60, {f2u(-LOG2E)}")
    a("s_mov_b32 s61, s60")
    xs = []
    for q in range(4):
        for i in range(4):
            c = ACO + 32 + q * 8 + 2 * i
            xs.append(f"v_cvt_pk_bf16_f32 v{224+4*q+i}, v{c}, v{c+1}")
        xs.append(f"buffer_store_dwordx4 v[{224+4*q}:{227+4*q}], v{L16}, {SR(S_MISC)}, s93 offen offset:{q*1024} sc1")
    XLD = f"buffer_load_dword v22, v20, {SR(S_MISC)}, s81 offen sc1"
    pls = [f"buffer_load_dwordx4 v[{PB+4*q}:{PB+4*q+3}], v{L16}, {SR(S_MISC)}, s94 offen offset:{q*1024} sc1" for q in range(4)]
    XF_S, XP_S = int(OPT.get("xfs", "30")), int(OPT.get("xps", "34"))
    for s in range(28, 36):
        e1 = []; post = []
        if s == 28: e1 = xs
        if s == XF_S: e1 = ["s_waitcnt vmcnt(0)", "s_mov_b64 exec, 1", f"buffer_store_dword v241, v20, {SR(S_MISC)}, s80 offen sc1", "s_mov_b64 exec, -1"]
        if s == XP_S - 1: post = [XLD]
        if s == XP_S:
            a("s_waitcnt vmcnt(0)")
            spin(a, "xp", [XLD], ["v_readfirstlane_b32 s62, v22", "s_nop 0", "s_cmp_eq_u32 s62, s96"], first_loaded=True)
            e1 = pls
        step(True, True, post=post, last=(s == 35), e1=e1)
    stamp(a, 8)
    a("s_setprio 0")
    for q in range(4):
        a(f"s_waitcnt vmcnt({3-q})")
        for i in range(4):
            c = ACO + q * 8 + 2 * i; p = PB + 4 * q + i
            a(f"v_lshlrev_b32 v{144+2*i}, 16, v{p}")
            a(f"v_and_b32 v{145+2*i}, 0xffff0000, v{p}")
        for i in range(4):
            c = ACO + q * 8 + 2 * i
            a(f"v_pk_add_f32 v[{c}:{c+1}], v[{c}:{c+1}], v[{144+2*i}:{145+2*i}]")
    stamp(a, 9)
    for h in range(2):
        srcs = [ACO + 2 * i for i in range(8 * h, 8 * h + 8)]; temps = [128 + 2 * i for i in range(8)]
        for i in range(8): a(f"v_pk_mul_f32 v[{temps[i]}:{temps[i]+1}], v[{srcs[i]}:{srcs[i]+1}], s[60:61]")
        for i in range(8): a(f"v_exp_f32 v{temps[i]}, v{temps[i]}"); a(f"v_exp_f32 v{temps[i]+1}, v{temps[i]+1}")
        for i in range(8): a(f"v_pk_add_f32 v[{temps[i]}:{temps[i]+1}], v[{temps[i]}:{temps[i]+1}], 1.0 op_sel_hi:[1,0]")
        for i in range(8): a(f"v_rcp_f32 v{temps[i]}, v{temps[i]}"); a(f"v_rcp_f32 v{temps[i]+1}, v{temps[i]+1}")
        for i in range(8):
            y = ACY + 2 * (8 * h + i)
            a(f"v_pk_mul_f32 v[{srcs[i]}:{srcs[i]+1}], v[{srcs[i]}:{srcs[i]+1}], v[{y}:{y+1}]")
        for i in range(8): a(f"v_pk_mul_f32 v[{temps[i]}:{temps[i]+1}], v[{temps[i]}:{temps[i]+1}], v[{srcs[i]}:{srcs[i]+1}]")
        for i in range(8): a(f"v_cvt_pk_bf16_f32 v{160+8*h+i}, v{temps[i]}, v{temps[i]+1}")
        a.nop(2)
        fp = h
        for pp in range(2):
            b0 = 160 + (fp * 4 + 2 * pp) * 2
            a(f"v_permlane16_swap_b32 v{b0}, v{b0+2}")
            a(f"v_permlane16_swap_b32 v{b0+1}, v{b0+3}")
        for q in (2 * h, 2 * h + 1):
            for i in range(4):
                p = 160 + q * 4 + i; x = XO + q * 4 + i
                t = 144 + 4 * (i & 1)
                a(f"v_lshlrev_b32 v{t}, 16, v{p}")
                a(f"v_and_b32 v{t+1}, 0xffff0000, v{p}")
                a(f"v_lshlrev_b32 v{t+2}, 16, v{x}")
                a(f"v_and_b32 v{t+3}, 0xffff0000, v{x}")
                a(f"v_pk_add_f32 v[{t}:{t+1}], v[{t}:{t+1}], v[{t+2}:{t+3}]")
                a(f"v_cvt_pk_bf16_f32 v{x}, v{t}, v{t+1}")
            d = XO + q * 4
            a(f"buffer_store_dwordx4 v[{d}:{d+3}], v9, {SR(S_OUT)}, s{91+(q>>1)} offen offset:{(q&1)*64}")
    if STAMP: a("s_waitcnt vmcnt(0)")
    stamp(a, 10)
    trace_store(a)

def main(out):
    for p in range(448): assert (p * 2341) >> 16 == p // 28
    for p in range(64): assert (p * 4682) >> 16 == p // 14
    a = Asm()
    gen(a)
    for p in check(a.lines): print("HAZARD", p)
    vg = 256 if (STAMP or DBGST) else 244
    txt = f"""; generated by work/gen16.py
; @launch grid=(256,1,1) block=(512,1,1) lds={LDS_TOTAL}
.amdgcn_target "amdgcn-amd-amdhsa--gfx950"
.text
.globl {NAME}_kernel
.p2align 8
.type {NAME}_kernel,@function
""" + a.text() + f""".section .rodata,"a"
.p2align 6
.amdhsa_kernel {NAME}_kernel
  .amdhsa_next_free_vgpr {vg}
  .amdhsa_next_free_sgpr 102
  .amdhsa_accum_offset {vg}
  .amdhsa_group_segment_fixed_size 0
  .amdhsa_kernarg_size 88
  .amdhsa_user_sgpr_count 2
  .amdhsa_user_sgpr_kernarg_segment_ptr 1
  .amdhsa_system_sgpr_workgroup_id_x 1
.end_amdhsa_kernel
"""
    open(out, "w").write(txt)
    print("lines", len(a.lines), "lds", LDS_TOTAL)

if __name__ == "__main__":
    args = [x for x in sys.argv[1:] if not x.startswith("--") and "=" not in x]
    main(args[0] if args else f"cdna_kernels/{NAME}.s")
```

```python
import sys, os, struct
from asmlib import *

NAME = "recurrent_scan__spectral_fnet__dense_activation_silu__prompt"
MB = 1 << 20
WSB = int(dict(x.split('=') for x in sys.argv if '=' in x and not x.startswith('--')).get('wsb', '0')) * MB
HF_OFF = WSB + 0
AP_OFF = WSB + 16 * MB
MISC_OFF = WSB + 24 * MB
STAT_G = 0
CS_G = 65536
HFLAG_G = 640 * 1024
XFLAG_G = 672 * 1024
RS_G = 720 * 1024
RC_G = 724 * 1024
QF_G = 728 * 1024
XB_G = 1 * MB
STAMP = "--stamp" in sys.argv
OPT = dict(x.split("=") for x in sys.argv if "=" in x and not x.startswith("--"))
NST = 64
EK = int(OPT.get('ek', '5'))
TP = OPT.get('tp', 'p2')
SHARE = OPT.get('share', '0') == '1'
TV = OPT.get('tv', 'b')
HM = int(OPT.get('hm', '11'))
HFS = int(OPT.get('hfs', '1'))
W1F = OPT.get('w1f', 'none').replace('none', '')
W2F = OPT.get('w2f', 'none').replace('none', '')
CPRIO = int(OPT.get('cprio', '2'))
EPRIO = int(OPT.get('eprio', '1'))

def f2u(x): return "0x%08x" % struct.unpack("<I", struct.pack("<f", x))[0]

S_X, S_W1, S_W2, S_OUT, S_CR, S_HF, S_AP, S_MISC, S_DBG, S_CI = 4, 8, 12, 16, 20, 24, 28, 32, 36, 64
def SR(b): return f"s[{b}:{b+3}]"
sWV, sTILE, sKH, sC8, sCT, sT1, sJH, sLW = 3, 40, 41, 42, 43, 44, 45, 46
sSLOT = 47
sSPIN = 73
LOG2E = 1.4426950408889634

G1_STAGE = 45056
L_STAT = 135168
L_CSUM = L_STAT + 1024
L_CS4 = L_CSUM + 1024
L_ST8 = L_CS4 + 4096
L_U = L_ST8 + 256
LDS_TOTAL = L_U + 16384
G2_STAGE = 32768

def srd(a, d, lo, hi, size, add=0):
    if add == 0:
        a(f"s_mov_b32 s{d}, s{lo}"); a(f"s_mov_b32 s{d+1}, s{hi}")
    else:
        a(f"s_add_u32 s{d}, s{lo}, {add}"); a(f"s_addc_u32 s{d+1}, s{hi}, 0")
    a(f"s_mov_b32 s{d+2}, {size}"); a(f"s_mov_b32 s{d+3}, 0x20000")

DBGST = OPT.get("dbgst")
DBGMAP = {11: 1, 16: 2, 12: 3, 1: 4, 2: 5, 3: 6, 5: 7, 6: 8, 7: 9, 8: 10, 9: 11, 10: 12}
def stamp(a, idx, wave=0, vt=250):
    if DBGST is not None and wave == 0 and idx in DBGMAP:
        lab = a.uid("dst%d" % idx)
        a(f"s_lshl_b32 s74, s2, 3")
        a(f"s_add_u32 s74, s74, s{sWV}")
        a(f"s_cmp_lg_u32 s74, {int(DBGST)*8}")
        a(f"s_cbranch_scc1 {lab}")
        if idx == 10: a("s_waitcnt vmcnt(0)")
        a("s_memrealtime s[74:75]")
        a("s_waitcnt lgkmcnt(0)")
        a("s_sub_u32 s74, s74, s98")
        a(f"v_mov_b32 v{vt}, s74")
        a(f"v_mov_b32 v{vt+1}, {DBGMAP[idx]*4}")
        a(f"buffer_store_dword v{vt}, v{vt+1}, {SR(S_DBG)}, 0 offen")
        a.label(lab)
        return
    if not STAMP: return
    lab = a.uid("stamp%d" % idx)
    a(f"s_cmp_lg_u32 s{sWV}, {wave}")
    a(f"s_cbranch_scc1 {lab}")
    a("s_memrealtime s[74:75]")
    a("s_memtime s[76:77]")
    a("s_waitcnt lgkmcnt(0)")
    a(f"v_mov_b32 v{vt}, s76")
    a(f"v_mov_b32 v{vt+1}, {idx*4+128}")
    a(f"buffer_store_dword v{vt}, v{vt+1}, s[68:71], s72 offen")
    a("s_nop 1")
    a(f"v_mov_b32 v{vt}, s74")
    a(f"v_mov_b32 v{vt+1}, {idx*4}")
    a(f"buffer_store_dword v{vt}, v{vt+1}, s[68:71], s72 offen")
    a.label(lab)
def trace_mark(a):
    if STAMP: a("s_memtime s[98:99]")
def trace_commit(a):
    if not STAMP: return
    a("s_mov_b32 m0, s97"); a("v_writelane_b32 v249, s98, m0")
    a("s_add_u32 s97, s97, 1")
def trace_store(a):
    if not STAMP: return
    lab = a.uid("trs")
    a(f"s_cmp_lg_u32 s{sWV}, 0")
    a(f"s_cbranch_scc1 {lab}")
    a(f"s_add_u32 s68, s68, {MB}")
    a("s_addc_u32 s69, s69, 0")
    a(f"s_mov_b32 s70, {256*256}")
    a("s_lshl_b32 s72, s2, 8")
    a("v_lshlrev_b32 v250, 2, v1")
    a("buffer_store_dword v249, v250, s[68:71], s72 offen")
    a.label(lab)

HT = [0]
def htrace(a):
    if not STAMP or OPT.get("ht", "0") != "1": return
    i = HT[0]; HT[0] += 1
    if i >= 128: return
    a("s_memtime s[76:77]")
    a("s_waitcnt lgkmcnt(0)")
    a(f"v_writelane_b32 v{248 + (i >> 6)}, s76, {i & 63}")
def htrace_store(a):
    if not STAMP: return
    lab = a.uid("htrs")
    a(f"s_cmp_lg_u32 s{sWV}, 4")
    a(f"s_cbranch_scc1 {lab}")
    a(f"s_add_u32 s68, s68, {2*MB}")
    a("s_addc_u32 s69, s69, 0")
    a(f"s_mov_b32 s70, {256*512}")
    a("s_lshl_b32 s72, s2, 9")
    a("v_lshlrev_b32 v250, 2, v1")
    a("buffer_store_dword v248, v250, s[68:71], s72 offen")
    a("buffer_store_dword v249, v250, s[68:71], s72 offen offset:256")
    a.label(lab)

class VM:
    def __init__(self, a): self.a = a; self.ops = []
    def op(self, line, tag): self.a(line); self.ops.append(tag)
    def count(self, tag):
        n = 0
        for t in reversed(self.ops):
            if t == tag: return n
            n += 1
        raise KeyError(tag)
    def wait(self, tag, extra=""):
        n = min(self.count(tag), 63)
        self.a(f"s_waitcnt vmcnt({n}){extra}")

def multi_wave_sum(a, vs, ts):
    assert len(vs) >= 3
    for pat in ("quad_perm:[1,0,3,2]", "quad_perm:[2,3,0,1]", "row_half_mirror", "row_mirror"):
        for v in vs: a(f"v_add_f32_dpp v{v}, v{v}, v{v} {pat} row_mask:0xf bank_mask:0xf")
    for sw in ("v_permlane16_swap_b32", "v_permlane32_swap_b32"):
        for v, t in zip(vs, ts): a(f"v_mov_b32 v{t}, v{v}")
        for v, t in zip(vs, ts): a(f"{sw} v{t}, v{v}")
        for v, t in zip(vs, ts): a(f"v_add_f32 v{v}, v{t}, v{v}")

def interleave(a, mfmas, others, first=0, per=1):
    oi = 0
    for i, m in enumerate(mfmas):
        a(m)
        if i >= first:
            for _ in range(per):
                if oi < len(others): a(others[oi]); oi += 1
    while oi < len(others): a(others[oi]); oi += 1

def spin(a, name, load, check, first_loaded=False):
    L = a.uid(name + "_spin"); D = a.uid(name + "_done")
    a(f"s_mov_b32 s{sSPIN}, 0")
    if first_loaded:
        for l in check: a(l)
        a(f"s_cbranch_scc1 {D}")
    a.label(L)
    for l in load: a(l)
    a("s_waitcnt vmcnt(0)")
    for l in check: a(l)
    a(f"s_cbranch_scc1 {D}")
    a("s_sleep 1")
    a(f"s_add_u32 s{sSPIN}, s{sSPIN}, 1")
    a(f"s_cmp_lt_u32 s{sSPIN}, 0x8000")
    a(f"s_cbranch_scc1 {L}")
    a.label(D)

OOB = 17
def sel_voff(a, dst, src, turn):
    a(f"s_cmp_eq_u32 s{sLW}, {turn}")
    a("s_cselect_b64 s[62:63], -1, 0")
    a(f"v_cndmask_b32 v{dst}, v{OOB}, v{src}, s[62:63]")

def g1_bfrag_addrs(a, nhreg, d0, d1, d2, t0, t1):
    a(f"v_lshrrev_b32 v{t0}, 2, v1")
    a(f"v_mul_u32_u24 v{t0}, 448, v{t0}")
    a(f"v_and_b32 v{t1}, 3, v1")
    a(f"v_lshl_add_u32 v{t0}, v{t1}, 3, v{t0}")
    a(f"v_add_u32 v{t0}, 16384, v{t0}")
    a(f"v_bfe_u32 v{t1}, v1, 4, 1")
    a(f"v_lshlrev_b32 v{t1}, 5, v{t1}")
    a(f"s_mul_i32 s49, s{nhreg}, 192")
    a(f"v_add_u32 v{d0}, v{t0}, v{t1}")
    a(f"v_add_u32 v{d0}, s49, v{d0}")
    a(f"v_sub_u32 v{d1}, v{t0}, v{t1}")
    a(f"v_add_u32 v{d1}, s49, v{d1}")
    a(f"s_lshl_b32 s50, s{nhreg}, 5")
    a(f"v_xor_b32 v{d2}, s50, v{t1}")
    a(f"v_add_u32 v{d2}, v{t0}, v{d2}")
    a(f"v_add_u32 v{d2}, 384, v{d2}")


L_XN = 2 * G1_STAGE
ACC = 16
TC, TS, CC, SS, NSS = 128, 144, 160, 168, 176
PX, PF, PT, PM = 184, 192, 208, 224
DRE, DIM, FR, FT = 184, 200, 216, 232
sEP = 94
sMH, sNH = 100, 101
SLAB = 64 * 7168

L_K = L_XN + 18432
def consts(a):
    a("v_and_b32 v232, 31, v1")
    a("v_cvt_f32_u32 v232, v232")
    a(f"v_mul_f32 v232, {f2u(1.0/1024)}, v232")
    a("v_lshrrev_b32 v233, 5, v1")
    a("v_lshlrev_b32 v233, 2, v233")
    a(f"s_lshr_b32 s60, s{sWV}, 1")
    a("s_lshl_b32 s60, s60, 3")
    a(f"s_and_b32 s61, s{sWV}, 1")
    a("s_lshl_b32 s61, s61, 1")
    a("s_add_u32 s60, s60, s61")
    a("v_add_u32 v233, s60, v233")
    a("v_cvt_f32_u32 v233, v233")
    a("v_mul_f32 v233, v233, v232")
    a("v_add_f32 v232, v233, v232")
    a(f"v_cos_f32 v{TC}, v233"); a(f"v_cos_f32 v{TC+1}, v232")
    a(f"v_sin_f32 v{TS}, v233"); a(f"v_sin_f32 v{TS+1}, v232")
    a(f"v_mul_f32 v233, {f2u(32.0)}, v233"); a(f"v_mul_f32 v232, {f2u(32.0)}, v232")
    a("v_fract_f32 v233, v233"); a("v_fract_f32 v232, v232")
    a("v_cos_f32 v234, v233"); a("v_cos_f32 v235, v232")
    a("v_sin_f32 v236, v233"); a("v_sin_f32 v237, v232")
    a(f"s_lshr_b32 s60, s{sWV}, 1")
    a("s_lshl_b32 s60, s60, 10")
    a("s_lshl_b32 s61, s61, 2")
    a("s_add_u32 s60, s60, s61")
    a(f"s_add_u32 s60, s60, {L_K}")
    a("v_add_u32 v238, s60, v240")
    a(f"s_lshr_b32 s60, s{sWV}, 2")
    a("s_lshl_b32 s60, s60, 10")
    a(f"s_lshl_b32 s61, s{sLW}, 2")
    a("s_add_u32 s60, s60, s61")
    a(f"s_add_u32 s60, s60, {L_K + 8192}")
    a("v_add_u32 v239, s60, v240")
    a("v_cvt_pk_f16_f32 v234, v234, v235")
    a("v_cvt_pk_f16_f32 v235, v236, v237")
    a("v_cvt_pk_f16_f32 v236, -v236, -v237")
    a(f"ds_write_b64 v238, v[{TC}:{TC+1}]")
    a(f"ds_write_b64 v238, v[{TS}:{TS+1}] offset:4096")
    a("ds_write_b32 v239, v234")
    a("ds_write_b32 v239, v235 offset:2048")
    a("ds_write_b32 v239, v236 offset:4096")
    a("v_lshrrev_b32 v10, 2, v1"); a("v_mul_u32_u24 v10, 576, v10")
    a("v_and_b32 v11, 1, v1"); a("v_mul_u32_u24 v11, 288, v11")
    a("v_add_u32 v10, v10, v11"); a("v_bfe_u32 v11, v1, 1, 1"); a("v_lshl_add_u32 v10, v11, 3, v10")
    a(f"s_lshl_b32 s60, s{sWV}, 4"); a(f"s_add_u32 s60, s60, {L_XN}"); a("v_add_u32 v10, s60, v10")
    a("v_lshrrev_b32 v11, 2, v0"); a("v_mul_u32_u24 v11, 144, v11"); a("v_and_b32 v12, 3, v0")
    a("v_lshl_add_u32 v11, v12, 2, v11"); a(f"v_add_u32 v11, {L_XN}, v11")
    a("v_lshrrev_b32 v12, 4, v0"); a("v_lshlrev_b32 v12, 6, v12")
    a("v_bfe_u32 v13, v0, 1, 1"); a("v_lshl_add_u32 v12, v13, 5, v12")
    a("v_bfe_u32 v13, v0, 2, 2"); a("v_lshl_add_u32 v12, v13, 3, v12")
    a("v_and_b32 v13, 1, v0"); a("v_lshl_add_u32 v12, v13, 2, v12"); a(f"v_add_u32 v12, {L_U}, v12")
    a(f"s_lshl_b32 s60, s{sWV}, 3")
    a(f"s_add_u32 s60, s60, {L_ST8}")
    a(f"v_mov_b32 v{PM+6}, s60")
    a(f"v_mov_b32 v{PM+7}, 0x3f803f80")

def helper_only(a, fn):
    if fn is None: return
    lab = a.uid("ho")
    a(f"s_cmp_lt_u32 s{sWV}, 4")
    a(f"s_cbranch_scc1 {lab}")
    fn()
    a.label(lab)

def startup(a, ins):
    m, s, t0, t1 = PM, PM + 1, PM + 2, PM + 3
    for q in range(8):
        a(f"v_dot2_f32_bf16 v{m}, v{PX+q}, v{PM+7}, {'0' if q == 0 else 'v%d' % m}")
        a(f"v_dot2_f32_bf16 v{s}, v{PX+q}, v{PX+q}, {'0' if q == 0 else 'v%d' % s}")
    fill = []
    for q in range(8):
        fill += [f"v_lshlrev_b32 v{PF+2*q}, 16, v{PX+q}", f"v_and_b32 v{PF+1+2*q}, 0xffff0000, v{PX+q}"]
    for _ in range(3): a(fill.pop(0))
    for pat in ("quad_perm:[1,0,3,2]", "quad_perm:[2,3,0,1]", "row_half_mirror", "row_mirror"):
        for v in (m, s): a(f"v_add_f32_dpp v{v}, v{v}, v{v} {pat} row_mask:0xf bank_mask:0xf")
        a(fill.pop(0))
    for sw in ("v_permlane16_swap_b32", "v_permlane32_swap_b32"):
        a(f"v_mov_b32 v{t0}, v{m}"); a(f"v_mov_b32 v{t1}, v{s}")
        a(fill.pop(0)); a(fill.pop(0))
        a(f"{sw} v{t0}, v{m}"); a(f"{sw} v{t1}, v{s}")
        a(f"v_add_f32 v{m}, v{t0}, v{m}"); a(f"v_add_f32 v{s}, v{t1}, v{s}")
    a(f"v_mul_f32 v{m}, {f2u(1.0/1024)}, v{m}")
    a(f"v_mul_f32 v{s}, {f2u(1.0/1024)}, v{s}")
    a(f"v_fma_f32 v{s}, -v{m}, v{m}, v{s}")
    a(f"v_max_f32 v{s}, 0, v{s}")
    a(f"v_cvt_pk_bf16_f32 v{s}, v{m}, v{s}")
    a(f"v_lshlrev_b32 v{m}, 16, v{s}")
    a(f"v_and_b32 v{s}, 0xffff0000, v{s}")
    a(f"v_add_f32 v{s}, {f2u(1e-5)}, v{s}")
    a(f"v_cvt_pk_bf16_f32 v{s}, v{s}, v{s}")
    a(f"v_and_b32 v{s}, 0xffff0000, v{s}")
    a(f"v_sqrt_f32 v{s}, v{s}")
    a(fill.pop(0))
    a(f"v_cvt_pk_bf16_f32 v{s}, v{s}, v{s}")
    a(f"v_and_b32 v{s}, 0xffff0000, v{s}")
    a(f"v_rcp_f32 v{t0}, v{s}")
    while fill: a(fill.pop(0))
    a(f"v_mul_f32_e64 v{t1}, -v{m}, v{t0}")
    a(f"ds_write_b64 v{PM+6}, v[{m}:{s}]")
    for q in range(8):
        P = f"v[{PF+2*q}:{PF+2*q+1}]"
        a(f"v_pk_fma_f32 {P}, {P}, v[{t0}:{t1}], v[{t0}:{t1}] op_sel:[0,0,1] op_sel_hi:[1,0,1]")
    for q in range(8): a(f"v_cvt_pk_bf16_f32 v{PX+q}, v{PF+2*q}, v{PF+2*q+1}")
    a(f"ds_write_b64 v10, v[{PX}:{PX+1}]")
    a(f"ds_write_b64 v10, v[{PX+2}:{PX+3}] offset:144")
    a(f"ds_write_b64 v10, v[{PX+4}:{PX+5}] offset:9216")
    a(f"ds_write_b64 v10, v[{PX+6}:{PX+7}] offset:9360")
    helper_only(a, ins["ln"])
    a(f"s_mov_b32 s60, {f2u(0.7071067811865476)}")
    a("s_mov_b32 s61, s60")
    a("s_waitcnt lgkmcnt(0)")
    stamp(a, 16); stamp(a, 20, wave=4)
    a("s_barrier")
    for s1 in range(8): a(f"ds_read_b32 v{PX+s1}, v11 offset:{16*s1}")
    a("s_waitcnt lgkmcnt(0)")
    for q in range(8):
        a(f"v_lshlrev_b32 v{PF+2*q}, 16, v{PX+q}")
        a(f"v_and_b32 v{PF+1+2*q}, 0xffff0000, v{PX+q}")
    X = lambda s: f"v[{PF+2*s}:{PF+1+2*s}]"
    T = lambda i: f"v[{PT+2*i}:{PT+1+2*i}]"
    NEG = "neg_lo:[0,1] neg_hi:[0,1]"
    for l in [f"v_pk_add_f32 {T(0)}, {X(0)}, {X(4)}", f"v_pk_add_f32 {T(1)}, {X(0)}, {X(4)} {NEG}",
              f"v_pk_add_f32 {T(2)}, {X(2)}, {X(6)}", f"v_pk_add_f32 {T(3)}, {X(2)}, {X(6)} {NEG}",
              f"v_pk_add_f32 {T(4)}, {X(1)}, {X(5)}", f"v_pk_add_f32 {T(5)}, {X(1)}, {X(5)} {NEG}",
              f"v_pk_add_f32 {T(6)}, {X(3)}, {X(7)}", f"v_pk_add_f32 {T(7)}, {X(3)}, {X(7)} {NEG}",
              f"v_pk_add_f32 {X(0)}, {T(0)}, {T(2)}", f"v_pk_add_f32 {X(4)}, {T(0)}, {T(2)} {NEG}",
              f"v_pk_add_f32 {X(1)}, {T(4)}, {T(6)}", f"v_pk_add_f32 {X(5)}, {T(6)}, {T(4)} {NEG}",
              f"v_pk_add_f32 {X(2)}, {T(5)}, {T(7)} {NEG}", f"v_pk_add_f32 {X(3)}, {T(5)}, {T(7)}",
              f"v_pk_add_f32 {T(0)}, {X(0)}, {X(1)}", f"v_pk_add_f32 {T(2)}, {X(0)}, {X(1)} {NEG}",
              f"v_pk_fma_f32 {T(4)}, {X(2)}, s[60:61], {T(1)}",
              f"v_pk_fma_f32 {T(5)}, {X(3)}, s[60:61], {T(3)} neg_lo:[1,0,1] neg_hi:[1,0,1]",
              f"v_pk_fma_f32 {T(6)}, {X(2)}, s[60:61], {T(1)} neg_lo:[1,0,0] neg_hi:[1,0,0]",
              f"v_pk_fma_f32 {T(7)}, {X(3)}, s[60:61], {T(3)} neg_lo:[1,0,0] neg_hi:[1,0,0]"]: a(l)
    srcs = [PT+0, PT+4, PT+8, PT+10, PF+8, PF+10, PT+12, PT+14]
    for k, sx in enumerate(srcs): a(f"v_cvt_pk_f16_f32 v{PX+k}, v{sx}, v{sx+1}")
    for k in range(8): a(f"ds_write_b32 v12, v{PX+k} offset:{2048*k}")
    helper_only(a, ins["r8"])

def fft(a):
    URE, UIM = FR, FR + 8
    for part in range(2):
        for kk in range(2):
            for hh in range(2):
                d = URE + part * 8 + kk * 4 + hh * 2
                a(f"ds_read_b64_tr_b16 v[{d}:{d+1}], v13 offset:{part*2048 + kk*1024 + hh*512}")
    a("s_waitcnt lgkmcnt(0)")
    for i in range(8):
        a(f"v_and_b32 v{UIM+i}, s56, v{UIM+i}")
        a(f"v_xor_b32 v{UIM+i}, s57, v{UIM+i}")
    Cc = lambda kk: f"v[{CC+4*kk}:{CC+3+4*kk}]"
    Ss = lambda kk: f"v[{SS+4*kk}:{SS+3+4*kk}]"
    NS = lambda kk: f"v[{NSS+4*kk}:{NSS+3+4*kk}]"
    Dre = f"v[{DRE}:{DRE+15}]"; Dim = f"v[{DIM}:{DIM+15}]"
    def cplx():
        R = lambda kk: f"v[{URE+4*kk}:{URE+3+4*kk}]"
        I = lambda kk: f"v[{UIM+4*kk}:{UIM+3+4*kk}]"
        M = "v_mfma_f32_32x32x16_f16"
        a(f"{M} {Dre}, {R(0)}, {Cc(0)}, 0")
        a(f"{M} {Dim}, {R(0)}, {NS(0)}, 0")
        a(f"{M} {Dre}, {R(1)}, {Cc(1)}, {Dre}")
        a(f"{M} {Dim}, {R(1)}, {NS(1)}, {Dim}")
        a(f"{M} {Dre}, {I(0)}, {Ss(0)}, {Dre}")
        a(f"{M} {Dim}, {I(0)}, {Cc(0)}, {Dim}")
        a(f"{M} {Dre}, {I(1)}, {Ss(1)}, {Dre}")
        a(f"{M} {Dim}, {I(1)}, {Cc(1)}, {Dim}")
    cplx()
    a.nop(12)
    for r in range(0, 16, 2):
        P = lambda bb: f"v[{bb+r}:{bb+r+1}]"
        t = FT + (r & 2) * 2
        a(f"v_pk_mul_f32 v[{t}:{t+1}], {P(DRE)}, {P(TC)}")
        a(f"v_pk_mul_f32 v[{t+2}:{t+3}], {P(DIM)}, {P(TC)}")
        a(f"v_pk_fma_f32 v[{t}:{t+1}], {P(DIM)}, {P(TS)}, v[{t}:{t+1}]")
        a(f"v_pk_fma_f32 v[{t+2}:{t+3}], {P(DRE)}, {P(TS)}, v[{t+2}:{t+3}] neg_lo:[1,0,0] neg_hi:[1,0,0]")
        a(f"v_cvt_pk_f16_f32 v{URE+(r>>1)}, v{t}, v{t+1}")
        a(f"v_cvt_pk_f16_f32 v{UIM+(r>>1)}, v{t+2}, v{t+3}")
    a.nop(2)
    cplx()
    a.nop(12)
    O = FR
    for r in range(0, 16, 2):
        a(f"v_cvt_pk_bf16_f32 v{O+(r>>1)}, v{DRE+r}, v{DRE+1+r}")
        a(f"v_cvt_pk_bf16_f32 v{O+8+(r>>1)}, -v{DIM+r}, -v{DIM+1+r}")
    a.nop(2)
    for base in (O, O + 4, O + 8, O + 12):
        a(f"v_permlane32_swap_b32 v{base}, v{base+2}")
        a(f"v_permlane32_swap_b32 v{base+1}, v{base+3}")
    a.nop(1)
    for base in (O, O + 8):
        for i in range(4): a(f"v_permlane16_swap_b32 v{base+i}, v{base+4+i}")

def gen(a):
    a.label(NAME + "_kernel")
    a("s_cmp_ge_u32 s2, 256")
    a("s_cbranch_scc1 L_end")
    a("s_load_dwordx8 s[48:55], s[0:1], 0")
    if CPF:
        a("s_getpc_b64 s[92:93]")
        a.label("L_pc0")
        a(f"s_sub_u32 s92, s92, L_pc0-{NAME}_kernel")
        a("s_subb_u32 s93, s93, 0")
        a("s_lshr_b32 s94, s2, 3")
        a("s_lshl_b32 s94, s94, 11")
        a("v_lshlrev_b32 v10, 7, v0")
        a("v_add_u32 v10, s94, v10")
        a(f"v_min_u32 v10, L_end-{NAME}_kernel, v10")
        a("v_cmp_gt_u32 vcc, 16, v0")
        a("s_and_saveexec_b64 s[94:95], vcc")
        a("s_cbranch_execz L_noct")
        a("global_load_dword v243, v10, s[92:93]")
        a.label("L_noct")
        a("s_mov_b64 exec, -1")
    a("s_load_dwordx8 s[56:63], s[0:1], 48")
    a("s_load_dwordx2 s[78:79], s[0:1], 80")
    a("s_memrealtime s[98:99]")
    a("v_and_b32 v1, 63, v0")
    a("v_lshrrev_b32 v2, 6, v0")
    a("v_lshlrev_b32 v19, 4, v1")
    a(f"v_readfirstlane_b32 s{sWV}, v2")
    a(f"s_and_b32 s{sTILE}, s2, 3")
    a(f"s_lshl_b32 s{sTILE}, s{sTILE}, 2")
    a("s_bfe_u32 s80, s2, 0x20003")
    a(f"s_add_u32 s{sTILE}, s{sTILE}, s80")
    a(f"s_bfe_u32 s{sKH}, s2, 0x10002")
    a(f"s_lshr_b32 s{sC8}, s2, 5")
    a(f"s_lshl_b32 s{sCT}, s{sKH}, 3")
    a(f"s_add_u32 s{sCT}, s{sCT}, s{sC8}")
    a(f"s_lshr_b32 s{sT1}, s{sTILE}, 1")
    a(f"s_and_b32 s{sJH}, s{sTILE}, 1")
    a(f"s_and_b32 s{sLW}, s{sWV}, 3")
    a(f"s_lshl_b32 s80, s{sWV}, 8")
    a("s_add_u32 s80, s80, s2")
    a("s_lshl_b32 s80, s80, 11")
    a("s_waitcnt lgkmcnt(0)")
    srd(a, S_X, 48, 49, 4 * MB)
    a(f"buffer_load_dwordx4 v[{PX}:{PX+3}], v19, {SR(S_X)}, s80 offen")
    a(f"buffer_load_dwordx4 v[{PX+4}:{PX+7}], v19, {SR(S_X)}, s80 offen offset:1024")
    srd(a, S_W1, 56, 57, 1024 * 3584 * 2)
    a("v_mov_b32 v240, v19")
    srd(a, S_W2, 58, 59, 1024 * 3584 * 2)
    srd(a, S_OUT, 60, 61, 4 * MB)
    srd(a, S_CR, 50, 51, 8 * MB)
    srd(a, S_CI, 52, 53, 8 * MB)
    srd(a, S_HF, 78, 79, 16 * MB, HF_OFF)
    srd(a, S_AP, 78, 79, 8 * MB, AP_OFF)
    srd(a, S_MISC, 78, 79, 16 * MB, MISC_OFF)
    srd(a, S_DBG, 62, 63, 256)
    if STAMP:
        srd(a, 68, 78, 79, 256 * NST * 4, 200 * MB)
        a(f"s_mul_i32 s72, s2, {NST*4}")
    a(f"s_lshl_b32 s48, s{sTILE}, 1")
    a(f"s_add_u32 s48, s48, s{sKH}")
    a("s_lshl_b32 s48, s48, 8")
    a(f"s_add_u32 s78, s48, {HFLAG_G}")
    a(f"s_lshl_b32 s48, s{sC8}, 5")
    a("s_add_u32 s79, s78, s48")
    a(f"s_lshl_b32 s48, s{sWV}, 2")
    a("s_add_u32 s79, s79, s48")
    a(f"s_lshr_b32 s{sMH}, s{sLW}, 1")
    a(f"s_and_b32 s{sNH}, s{sLW}, 1")
    a("v_mov_b32 v242, v19")
    a("v_mov_b32 v58, 0")
    stamp(a, 0)
    a(f"s_cmp_ge_u32 s{sWV}, 4")
    a("s_cbranch_scc1 L_hpre")
    consumer_pre(a)
    a("s_branch L_join")
    a.label("L_hpre")
    H = Helper(a)
    H.pre()
    a.label("L_join")
    consts(a)
    a(f"s_cmp_ge_u32 s{sWV}, 4")
    a("s_cbranch_scc1 L_hw")
    a("s_waitcnt vmcnt(1)")
    a("s_branch L_hw2")
    a.label("L_hw")
    H.after_x()
    a.label("L_hw2")
    stamp(a, 11); stamp(a, 19, wave=4)
    startup(a, H.inserts())
    a(f"s_cmp_ge_u32 s{sWV}, 4")
    a("s_cbranch_scc0 L_consumer")
    H.main()
    shared_epilogue(a)
    gen_consumer(a)
    a.label("L_end")
    a("s_endpgm")

CPF = OPT.get("cpf", "1") == "1"
def code_touch(a, wave, vt=10, vd=243):
    if not CPF: return None
    lab = a.uid("ct")
    a(f"s_cmp_lg_u32 s{sLW}, {wave}")
    a(f"s_cbranch_scc1 {lab}")
    a("s_getpc_b64 s[60:61]")
    here = a.uid("pc")
    a.label(here)
    a(f"s_sub_u32 s60, s60, {here}-{NAME}_kernel")
    a("s_subb_u32 s61, s61, 0")
    a("s_lshr_b32 s62, s2, 3")
    a("s_lshl_b32 s62, s62, 11")
    a(f"v_lshlrev_b32 v{vt}, 7, v1")
    a(f"v_add_u32 v{vt}, s62, v{vt}")
    a(f"v_min_u32 v{vt}, L_end-{NAME}_kernel, v{vt}")
    a("s_mov_b64 exec, 0xffff")
    a(f"global_load_dword v{vd}, v{vt}, s[60:61]")
    a("s_mov_b64 exec, -1")
    a.label(lab)

def w1_touch_voff(a, d):
    a("v_mul_u32_u24 v10, 4682, v1")
    a("v_lshrrev_b32 v10, 16, v10")
    a("v_mul_u32_u24 v11, 14, v10")
    a("v_sub_u32 v11, v1, v11")
    a("v_lshrrev_b32 v12, 1, v10")
    a("v_and_b32 v10, 1, v10")
    a("v_lshl_add_u32 v10, v10, 3, v12")
    a(f"s_mov_b32 s56, {SLAB}")
    a("v_mul_lo_u32 v10, v10, s56")
    a(f"v_lshl_add_u32 v{d}, v11, 7, v10")
    a("s_mul_i32 s56, s2, 1792")
    a(f"v_add_u32 v{d}, s56, v{d}")
    a("v_cmp_gt_u32 vcc, 56, v1")
    a("v_bfrev_b32 v10, 1")
    a("s_nop 0")
    a(f"v_cndmask_b32 v{d}, v10, v{d}, vcc")

class Helper:
    def __init__(self, a):
        self.a = a
        self.vm = VM(a)
        self.vm.ops = ["x", "x"] + (["s"] * 0)
    def issueA(self, n, qs=range(4)):
        a, vm = self.a, self.vm
        slot = (n % 3) * G1_STAGE
        for q in qs:
            a(f"s_add_u32 m0, s96, {slot + q*1024}")
            a(f"s_add_u32 s55, s{84 if n < 8 else 85}, {q*16384 + n*128}")
            vm.op(f"buffer_load_dwordx4 v2, {SR(S_X)}, s55 offen lds", f"st{n}")
    def issueB(self, n, qs=range(8)):
        a, vm = self.a, self.vm
        slot = (n % 3) * G1_STAGE
        a("s_mov_b32 exec_hi, 0xffffff")
        for q in qs:
            roff = (8 * (q >> 1) + 2 * (q & 1)) * 7168
            a(f"s_add_u32 m0, s54, {slot + q*896}")
            if n < 8: a(f"s_add_u32 s55, s83, {n*SLAB + roff}")
            else: a(f"s_sub_u32 s55, {n*SLAB + roff}, s83")
            vm.op(f"buffer_load_dwordx4 v{3 + ((q >> 1) & 1)}, {SR(S_W1)}, s55 offen {W1F} lds", f"st{n}")
        a("s_mov_b64 exec, -1")
    def pre(self):
        a, vm = self.a, self.vm
        a("v_lshrrev_b32 v10, 3, v1")
        a("v_and_b32 v11, 7, v1")
        a("v_xor_b32 v11, v11, v10")
        a("v_lshlrev_b32 v2, 19, v10")
        a("v_lshl_add_u32 v2, v11, 4, v2")
        a(f"s_lshl_b32 s48, s{sJH}, 4")
        a(f"s_lshl_b32 s49, s{sLW}, 2")
        a("s_add_u32 s48, s48, s49")
        a("s_lshl_b32 s48, s48, 3")
        a(f"s_add_u32 s48, s48, s{sT1}")
        a("s_lshl_b32 s48, s48, 11")
        a(f"s_lshr_b32 s82, s{sTILE}, 3")
        a(f"s_mul_i32 s83, s82, {8*SLAB}")
        a("s_lshl_b32 s82, s82, 10")
        a("s_add_u32 s84, s48, s82")
        a("s_sub_u32 s85, s48, s82")
        a(f"s_lshl_b32 s96, s{sLW}, 12")
        if TV == 'a': self.issueA(0, range(2))
        a(f"s_lshl_b32 s48, s2, 3")
        a(f"s_add_u32 s48, s48, s{sLW}")
        a("s_cmp_lg_u32 s48, 1")
        a("s_cbranch_scc1 L_noepoch")
        a("v_mov_b32 v10, 0")
        a("s_or_b32 s48, s98, 1")
        a("v_mov_b32 v11, s48")
        a("s_mov_b64 exec, 1")
        a(f"buffer_store_dword v11, v10, {SR(S_DBG)}, 0 offen sc1")
        a("s_mov_b64 exec, -1")
        a.label("L_noepoch")
        a(f"s_lshr_b32 s49, s{sLW}, 1")
        a("s_lshl_b32 s49, s49, 5")
        a(f"s_and_b32 s50, s{sLW}, 1")
        a("s_lshl_b32 s50, s50, 2")
        a("s_add_u32 s49, s49, s50")
        a("s_mul_i32 s49, s49, 7168")
        a(f"s_mul_i32 s50, s{sCT}, 448")
        a("s_add_u32 s49, s49, s50")
        a("v_cmp_lt_u32 vcc, 27, v1")
        a("v_subrev_u32 v10, 28, v1")
        a(f"v_mov_b32 v11, 7168")
        a("v_cndmask_b32 v10, v1, v10, vcc")
        a("v_cndmask_b32 v11, 0, v11, vcc")
        a("v_add_u32 v11, s49, v11")
        a("v_lshl_add_u32 v3, v10, 4, v11")
        a("v_xor_b32 v10, 2, v10")
        a("v_lshl_add_u32 v4, v10, 4, v11")
        a(f"s_mul_i32 s54, s{sLW}, 7168")
        a("s_add_u32 s54, s54, 16384")
        a(f"s_and_b32 s87, s{sTILE}, 7")
    def late_setup(self):
        a = self.a
        w1_touch_voff(a, 14)
        a(f"v_bfrev_b32 v{OOB}, 1")
        a("v_lshlrev_b32 v15, 7, v1")
        a("v_cmp_gt_u32 vcc, 56, v1")
        a(f"s_and_b32 s59, s{sLW}, 1")
        a("s_mul_i32 s80, s2, 28672")
        a(f"v_cndmask_b32 v15, v{OOB}, v15, vcc")
        g1_bfrag_addrs(a, 59, 36, 37, 38, 10, 11)
        a(f"s_lshr_b32 s60, s{sLW}, 1")
        a(f"s_mul_i32 s61, s60, {32*448}")
        for r in (36, 37, 38): a(f"v_add_u32 v{r}, s61, v{r}")
        a("v_lshrrev_b32 v10, 4, v1")
        a("v_lshlrev_b32 v10, 4, v10")
        a("s_mul_i32 s60, s60, 896")
        a(f"s_add_u32 s60, s60, {L_CS4}")
        a("s_mul_i32 s61, s59, 384")
        a("s_add_u32 s61, s61, s60")
        a("v_add_u32 v39, s61, v10")
        a("s_lshl_b32 s61, s59, 6")
        a("s_add_u32 s61, s61, 768")
        a("s_add_u32 s61, s61, s60")
        a("v_add_u32 v40, s61, v10")
        a(f"s_lshl_b32 s86, s{sCT}, 4")
        a(f"s_add_u32 s86, s86, s{sTILE}")
        a("s_mul_i32 s86, s86, 896")
        a(f"s_add_u32 s86, s86, {CS_G}")
        a(f"s_and_b32 s87, s{sTILE}, 7")
        for i in range(4): a(f"v_mov_b32 v{44+i}, 0x3f803f80")
        a("s_and_b32 s60, s2, 7")
        a("s_lshl_b32 s60, s60, 1")
        a("s_lshr_b32 s61, s2, 7")
        a("s_add_u32 s60, s60, s61")
        a("s_bfe_u32 s61, s2, 0x40003")
        a("s_lshl_b32 s90, s60, 10")
        a("s_lshl_b32 s91, s61, 6")
        a("s_add_u32 s90, s90, s91")
        a("s_lshl_b32 s95, s60, 20")
        a("s_lshr_b32 s62, s61, 1")
        a("s_lshl_b32 s62, s62, 10")
        a("s_add_u32 s95, s95, s62")
        a("s_and_b32 s62, s61, 1")
        a("s_lshl_b32 s62, s62, 7")
        a("s_add_u32 s95, s95, s62")
        a(f"s_lshl_b32 s62, s{sLW}, 14")
        a("s_add_u32 s95, s95, s62")
        a(f"s_add_u32 s95, s95, {112*8192}")
        a("s_lshl_b32 s91, s60, 7")
        a("s_lshl_b32 s61, s61, 2")
        a("s_add_u32 s91, s91, s61")
        a(f"s_add_u32 s91, s91, {RS_G}")
        a(f"s_lshl_b32 s92, s{sCT}, 7")
        a(f"s_lshl_b32 s61, s{sTILE}, 2")
        a("s_add_u32 s92, s92, s61")
        a(f"s_add_u32 s92, s92, {RC_G}")
        a("s_lshl_b32 s93, s2, 2")
        a(f"s_add_u32 s93, s93, {QF_G}")
        a("v_cmp_gt_u32 vcc, 16, v1")
        a(f"s_lshl_b32 s60, s{sTILE}, 7")
        a(f"s_add_u32 s60, s60, {RS_G}")
        a(f"s_lshl_b32 s61, s{sCT}, 7")
        a(f"s_add_u32 s61, s61, {RC_G}")
        a("v_mov_b32 v62, s60")
        a("v_mov_b32 v63, s61")
        a("v_and_b32 v10, 15, v1")
        a("v_cndmask_b32 v62, v63, v62, vcc")
        a("v_lshl_add_u32 v62, v10, 2, v62")
        a("v_lshlrev_b32 v41, 6, v10")
        a("v_bfe_u32 v10, v1, 4, 1")
        a("v_lshl_add_u32 v41, v10, 5, v41")
        a("v_lshrrev_b32 v11, 5, v1")
        a("v_lshl_add_u32 v41, v11, 4, v41")
        a("v_and_b32 v12, 7, v1")
        a("v_lshlrev_b32 v42, 20, v12")
        a("v_lshl_add_u32 v42, v11, 6, v42")
        a("v_bfe_u32 v10, v1, 3, 2")
        a("v_lshl_add_u32 v42, v10, 3, v42")
        a("v_lshlrev_b32 v43, 4, v12")
        a("v_lshl_add_u32 v43, v11, 13, v43")
        a("v_lshl_add_u32 v43, v10, 8, v43")
        a(f"s_lshl_b32 s89, s{sLW}, 20")
        a("s_lshl_b32 s60, s2, 11")
        a("s_add_u32 s89, s89, s60")
        a(f"s_add_u32 s88, s89, {4*MB}")
    def after_x(self):
        self.vm.wait("x")
        stamp(self.a, 23, wave=4)
        self.issueA(0, range(2 if TV == 'a' else 0, 4))
        self.issueB(0, range(4 if TV == 'a' else 3))
    def inserts(self):
        vm = self.vm; a = self.a
        def r8():
            a(f"v_add_u32 v11, {L_K}, v240")
            for q in range(14): a(f"ds_read_b128 v[{TC+4*q}:{TC+4*q+3}], v11 offset:{q*1024}")
            self.issueA(1); self.issueB(1)
            vm.op(f"buffer_load_dword v59, v58, {SR(S_DBG)}, 0 offen sc1", "ep")
        return {"ln": lambda: self.issueB(0, range(4 if TV == 'a' else 3, 8)), "r8": r8}
    def main(self):
        a, vm = self.a, self.vm
        def job_colsum(n):
            lab = a.uid("cs")
            a(f"s_cmp_lg_u32 s87, {n}")
            a(f"s_cbranch_scc1 {lab}")
            slot = (n % 3) * G1_STAGE
            for r in range(3): a(f"v_add_u32 v{10+r}, {slot}, v{36+r}")
            for i in range(7):
                for hh in range(2):
                    d = 64 + 4 * i + 2 * hh
                    if i < 6: a(f"ds_read_b64_tr_b16 v[{d}:{d+1}], v{10 + (i & 1)} offset:{16*hh*448 + i*32}")
                    else: a(f"ds_read_b64_tr_b16 v[{d}:{d+1}], v12 offset:{16*hh*448}")
            a("s_waitcnt lgkmcnt(0)")
            for i in range(7):
                a(f"v_mfma_f32_16x16x32_bf16 v[{92+4*i}:{95+4*i}], v[{64+4*i}:{67+4*i}], v[44:47], 0")
            a("s_mov_b32 exec_lo, 0x00010001")
            a("s_mov_b32 exec_hi, 0x00010001")
            a.nop(6)
            for i in range(6): a(f"ds_write_b128 v39, v[{92+4*i}:{95+4*i}] offset:{64*i}")
            a("ds_write_b128 v40, v[116:119]")
            a("s_mov_b64 exec, -1")
            a.label(lab)
        def job_csstore():
            a(f"v_add_u32 v11, {L_CS4}, v19")
            a("ds_read_b128 v[28:31], v11")
            a("ds_read_b128 v[32:35], v11 offset:896")
            sel_voff(a, 18, 19, 1)
            a("s_waitcnt lgkmcnt(0)")
            a("v_pk_add_f32 v[28:29], v[28:29], v[32:33]")
            a("v_pk_add_f32 v[30:31], v[30:31], v[34:35]")
            a("s_mov_b32 exec_hi, 0xffffff")
            vm.op(f"buffer_store_dwordx4 v[28:31], v18, {SR(S_MISC)}, s86 offen sc1", "pub")
            a("s_mov_b64 exec, -1")
        def job_spf(srdb, sreg, k0, k1):
            for k in range(k0, k1): a(f"s_buffer_load_dword s100, {SR(srdb)}, s{sreg} offset:{k*128}")
        def job_pub0():
            a(f"v_add_u32 v20, {L_ST8}, v19")
            a("ds_read_b128 v[48:51], v20")
            a("s_waitcnt lgkmcnt(0)")
        def job_statstore():
            sel_voff(a, 18, 19, 0)
            a("s_mov_b64 exec, 15")
            vm.op(f"buffer_store_dwordx4 v[48:51], v18, {SR(S_MISC)}, s90 offen offset:{STAT_G} sc1", "pub")
            a("s_mov_b64 exec, -1")
        def job_epoch():
            vm.wait("ep")
            spin(a, "ep", [f"buffer_load_dword v59, v58, {SR(S_DBG)}, 0 offen sc1"],
                 [f"v_readfirstlane_b32 s{sEP}, v59", "s_nop 0", f"s_cmp_lg_u32 s{sEP}, 0"], first_loaded=True)
            a(f"v_mov_b32 v60, s{sEP}")
        def job_ap(k):
            reg = (FR if k < 4 else 184) + 4 * (k & 3)
            so = 88 if k < 4 else 89
            if (k & 3) == 2: a(f"s_add_u32 s{so}, s{so}, {256*2048}")
            vm.op(f"buffer_store_dwordx4 v[{reg}:{reg+3}], v41, {SR(S_AP)}, s{so} offen offset:{(k & 1)*1024} sc1", "pub")
        def job_cload():
            a(f"s_lshl_b32 s60, s{sLW}, 7")
            a("s_lshl_b32 s61, s2, 12")
            a("s_add_u32 s60, s60, s61")
            for i, srdc in enumerate((S_CR, S_CI)):
                vm.op(f"buffer_load_dwordx2 v[{20+4*i}:{21+4*i}], v42, {SR(srdc)}, s60 offen nt", "cl")
                vm.op(f"buffer_load_dwordx2 v[{22+4*i}:{23+4*i}], v42, {SR(srdc)}, s60 offen offset:32 nt", "cl")
        def job_cstore():
            vm.wait("cl")
            vm.op(f"buffer_store_dwordx4 v[20:23], v43, {SR(S_HF)}, s95 offen sc1", "pub")
            a("s_add_u32 s95, s95, 65536")
            vm.op(f"buffer_store_dwordx4 v[24:27], v43, {SR(S_HF)}, s95 offen sc1", "pub")
        def job_ready():
            li = lambda t: max(i for i, x in enumerate(vm.ops) if x == t)
            assert li("pub") < li(f"st{EV[2]}"), "pub not covered"
            sel_voff(a, 18, 58, 0)
            a("s_mov_b64 exec, 1")
            for sr_ in (91, 92):
                vm.op(f"buffer_store_dword v60, v18, {SR(S_MISC)}, s{sr_} offen sc1", "rdy")
            a("s_mov_b64 exec, -1")
        CHK_LD = [f"buffer_load_dword v63, v62, {SR(S_MISC)}, 0 offen sc1"]
        CHK = [f"v_cmp_ne_u32 vcc, s{sEP}, v63", "s_nop 1", "s_cmp_eq_u64 vcc, 0"]
        QLD = [f"buffer_load_dwordx4 v[52:55], v19, {SR(S_MISC)}, s97 offen sc1"]
        QCHK = [f"v_xor_b32 v{52+i}, s{sEP}, v{52+i}" for i in range(4)] + \
              ["v_or_b32 v52, v52, v53", "v_or3_b32 v52, v52, v54, v55", "v_cmp_ne_u32 vcc, 0, v52", "s_nop 1", "s_cmp_eq_u64 vcc, 0"]
        def job_pload():
            for l in CHK_LD: vm.op(l, "pl")
        def job_gather():
            vm.wait("pl")
            spin(a, "pp", CHK_LD, CHK, first_loaded=True)
            a(f"s_lshl_b32 s60, s{sTILE}, 10")
            a(f"s_lshl_b32 s61, s{sLW}, 8")
            a("s_add_u32 s60, s60, s61")
            a(f"s_add_u32 m0, s61, {L_STAT}")
            a("v_lshlrev_b32 v10, 2, v1")
            vm.op(f"buffer_load_dword v10, {SR(S_MISC)}, s60 offen sc1 lds", "g")
            a("v_lshrrev_b32 v10, 4, v1")
            a("v_mul_u32_u24 v10, 3584, v10")
            a("v_and_b32 v11, 15, v1")
            a("v_lshl_add_u32 v10, v11, 4, v10")
            a(f"s_mul_i32 s60, s{sCT}, {16*896}")
            a(f"s_mul_i32 s61, s{sLW}, 224")
            a("s_add_u32 s60, s60, s61")
            a(f"s_add_u32 s60, s60, {CS_G}")
            for p in range(4):
                vm.op(f"buffer_load_dwordx4 v[{20+4*p}:{23+4*p}], v10, {SR(S_MISC)}, s60 offen offset:{896*p} sc1", "g")
            a(f"s_add_u32 s61, s61, {L_CSUM}")
            a("v_lshlrev_b32 v11, 4, v11")
            a("v_add_u32 v11, s61, v11")
        def job_gather2():
            vm.wait("g")
            for p in range(1, 4):
                a(f"v_pk_add_f32 v[20:21], v[20:21], v[{20+4*p}:{21+4*p}]")
                a(f"v_pk_add_f32 v[22:23], v[22:23], v[{22+4*p}:{23+4*p}]")
            for sw in ("v_permlane16_swap_b32", "v_permlane32_swap_b32"):
                for i in range(4): a(f"v_mov_b32 v{24+i}, v{20+i}")
                for i in range(4): a(f"{sw} v{24+i}, v{20+i}")
                a("v_pk_add_f32 v[20:21], v[20:21], v[24:25]")
                a("v_pk_add_f32 v[22:23], v[22:23], v[26:27]")
            a(f"v_mov_b32 v57, {L_ST8+64}")
            a("s_mov_b64 exec, 0x3fff")
            a("ds_write_b128 v11, v[20:23]")
            a("ds_write_b32 v57, v60")
            a("s_mov_b64 exec, -1")
        EV = [int(x) for x in OPT.get("ev", "4,6,11").split(",")]
        CATCH = int(OPT.get("catch", "15"))
        def w2touch(k):
            sel_voff(a, 18, 15, k)
            a(f"s_add_u32 s55, s80, {k*7168}")
            vm.op(f"buffer_load_dword v16, v18, {SR(S_W2)}, s55 offen", "touch")
        before = {0: [job_pub0], 13: [job_pload], 14: [job_gather]}
        after = {2: [job_epoch], 15: [job_gather2]}
        after.setdefault(EV[0], []).extend([lambda: w2touch(0), lambda: w2touch(1), job_cload])
        after.setdefault(8, []).extend([job_csstore, job_statstore, job_cstore])
        after.setdefault(EV[1], []).extend([lambda: w2touch(2)])
        after.setdefault(EV[2], []).extend([job_ready, lambda: w2touch(3), lambda: code_touch(a, 2, 10, 16)])
        assert EV[2] >= 11 and EV[1] <= 8
        units = [(st, i) for st in range(2, 16) for i in range(12)]
        skip = set(x + 1 for x in EV) if OPT.get("elastic", "0") == "1" else set()
        def issue_units(n):
            q = 0 if n in skip else CATCH
            todo = []
            while units and units[0][0] <= n + 2 and (len(todo) < q or units[0][0] <= n + 1):
                todo.append(units.pop(0))
            for st in sorted(set(t[0] for t in todo)):
                A = [i for s_, i in todo if s_ == st and i < 4]; B = [i - 4 for s_, i in todo if s_ == st and i >= 4]
                if A: self.issueA(st, A)
                if B: self.issueB(st, B)
        T2S = [int(x) for x in OPT.get("t2s", "0,2").split(",")]
        def w1t(k):
            sel_voff(a, 18, 14, k)
            a(f"s_mov_b32 s55, {(4 + 2*k)*SLAB}")
            vm.op(f"buffer_load_dword v16, v18, {SR(S_W1)}, s55 offen", "touch")
        for k in range(2): after.setdefault(T2S[k], []).insert(0, lambda k=k: w1t(k))
        after[0].insert(0, self.late_setup)
        after[0].append(lambda: job_colsum(0))
        stamp(a, 13, wave=4)
        for n in range(16):
            htrace(a)
            vm.wait(f"st{n}", " lgkmcnt(0)")
            htrace(a)
            a("s_barrier")
            htrace(a)
            for j in before.get(n, []): j()
            issue_units(n)
            htrace(a)
            if 0 < n < 8: job_colsum(n)
            for j in after.get(n, []): j()
        a("s_waitcnt lgkmcnt(0)")
        a("s_barrier")
        def g2_addr():
            a("v_add_u32 v232, s96, v240")
            a("v_lshrrev_b32 v10, 4, v1")
            a("v_and_b32 v11, 15, v1")
            a("v_lshlrev_b32 v12, 1, v10")
            a("v_xor_b32 v13, v11, v12")
            a("v_lshlrev_b32 v233, 11, v10")
            a("v_lshl_add_u32 v234, v13, 4, v233")
            a("v_xor_b32 v13, 8, v13")
            a("v_lshl_add_u32 v235, v13, 4, v233")
            a(f"v_add_u32 v235, {4*2048}, v235")
            a(f"s_lshl_b32 s60, s{sLW}, 15")
            a(f"s_lshl_b32 s61, s{sC8}, 8")
            a("s_add_u32 s60, s60, s61")
            a("v_add_u32 v233, s60, v234")
            a("v_add_u32 v234, s60, v235")
            a(f"s_lshl_b32 s60, s{sMH}, 13")
            a("v_subrev_u32 v232, s60, v232")
            a(f"s_lshl_b32 s60, s{sMH}, 16")
            a("v_subrev_u32 v228, s60, v233")
            a("v_subrev_u32 v229, s60, v234")
        a("s_add_u32 s84, s96, 16384")
        a(f"s_lshr_b32 s60, s{sLW}, 1")
        a("s_lshl_b32 s85, s60, 13")
        a(f"s_and_b32 s60, s{sLW}, 1")
        a("s_lshl_b32 s60, s60, 12")
        a("s_add_u32 s85, s85, s60")
        a(f"s_lshl_b32 s60, s{sKH}, 11")
        a("s_add_u32 s85, s85, s60")
        a(f"s_lshl_b32 s87, s{sTILE}, 20")
        a(f"s_mul_i32 s82, s{sKH}, {56*8192}")
        a("s_add_u32 s82, s82, s87")
        a("s_add_u32 s87, s87, s85")
        a(f"s_add_u32 s87, s87, {112*8192}")
        a(f"s_lshl_b32 s88, s{sT1}, 20")
        a(f"s_mul_i32 s83, s{sKH}, {1792*2048}")
        a(f"s_mul_i32 s90, s{sC8}, 7")
        a(f"s_add_u32 s90, s90, s{sMH}")
        vm.ops = []
        def g2B(slot, srdb, soff, tag, fl="", vb=233):
            a(f"s_add_u32 s55, {soff}, 16384")
            for q in range(4):
                a(f"s_add_u32 m0, s84, {slot + q*1024}")
                if q: a("s_nop 0")
                so = soff if q < 2 else "s55"
                if q == 0: a("s_nop 0")
                vm.op(f"buffer_load_dwordx4 v{vb + (q & 1)}, {SR(srdb)}, {so} offen {fl} lds", tag)
            if vb == 233: a(f"s_add_u32 {soff}, {soff}, 131072")
        NAT = OPT.get("nat", "1") == "1"
        def kb_of(si, dst):
            a(f"s_sub_u32 s92, s{si}, 7")
            a("s_cmp_ge_u32 s92, s99")
            a("s_cselect_b32 s61, 7, 0")
            a("s_add_u32 s92, s92, s61")
            a(f"s_add_u32 s61, s{si}, s99")
            a(f"s_cmp_lt_u32 s{si}, 7")
            a(f"s_cselect_b32 s{dst}, s61, s92")
            a(f"s_add_u32 s{si}, s{si}, 2")
        def stB(n):
            if NAT:
                kb_of(89, 91); a("s_lshl_b32 s91, s91, 16")
            else: a("s_lshl_b32 s91, s89, 16")
            a("s_add_u32 s91, s91, s83")
            g2B((n % 4) * G2_STAGE, S_W2, "s91", f"s{n}", W2F, vb=228)
            if NAT: return
            a("s_add_u32 s89, s89, 2")
            a("s_sub_u32 s92, s89, 56")
            a("s_cmp_ge_u32 s89, 56")
            a("s_cselect_b32 s89, s92, s89")
        def stA(n):
            a(f"s_add_u32 m0, s96, {(n % 4) * G2_STAGE}")
            if NAT:
                kb_of(90, 91); a("s_lshl_b32 s91, s91, 13")
            else: a("s_lshl_b32 s91, s90, 13")
            a("s_add_u32 s91, s91, s82")
            if n == 3:
                a(f"s_cmp_eq_u32 s{sMH}, 0")
                a("s_cbranch_scc1 L_skipA3")
            for q in range(4):
                vm.op(f"buffer_load_dwordx4 v232, {SR(S_HF)}, s91 offen offset:{q*1024} sc1 lds", f"s{n}")
            if n == 3: a.label("L_skipA3")
            if NAT: return
            a("s_add_u32 s90, s90, 2")
            a("s_sub_u32 s92, s90, 56")
            a("s_cmp_ge_u32 s90, 56")
            a("s_cselect_b32 s90, s92, s90")
        def stage(n):
            slot = (n % 4) * G2_STAGE
            if n >= 28:
                a(f"s_add_u32 m0, s85, {slot}")
                a("s_nop 0")
                for q in range(2):
                    vm.op(f"buffer_load_dwordx4 v240, {SR(S_HF)}, s87 offen offset:{q*1024} sc1 lds", f"s{n}")
                a("s_add_u32 s87, s87, 16384")
                g2B(slot, S_AP, "s88", f"s{n}", "sc1")
            else:
                stB(n); stA(n)
        a("s_mov_b32 s89, s90")
        a("s_add_u32 s90, s90, 6")
        a("s_sub_u32 s92, s90, 56")
        a("s_cmp_ge_u32 s90, 56")
        a("s_cselect_b32 s90, s92, s90")
        if NAT:
            a(f"s_mul_i32 s99, s{sC8}, 7")
            a(f"s_mov_b32 s89, s{sMH}")
            a(f"s_add_u32 s90, s{sMH}, 6")
        g2_addr()
        for n in range(4): stB(n)
        a("v_lshrrev_b32 v12, 5, v1"); a("v_lshlrev_b32 v12, 8, v12")
        a("v_bfe_u32 v10, v1, 2, 2"); a("v_lshl_add_u32 v12, v10, 6, v12")
        a("v_bfe_u32 v10, v1, 4, 1"); a("v_lshl_add_u32 v12, v10, 5, v12")
        a("v_and_b32 v10, 3, v1"); a("v_lshl_add_u32 v12, v10, 3, v12")
        a(f"s_cmp_eq_u32 s{sLW}, 0")
        a("s_cselect_b32 s56, 0, -1")
        a(f"s_lshl_b32 s58, s{sLW}, 12")
        a(f"s_add_u32 s58, s58, {L_U}")
        a("s_mov_b32 s57, 0")
        a("s_lshl_b32 s59, s2, 11")
        a(f"s_lshl_b32 s60, s{sLW}, 20")
        a("s_add_u32 s60, s60, s59")
        a("s_mov_b32 s86, 0")
        a.label("L_fft")
        a("v_add_u32 v13, s58, v12")
        a(f"s_add_u32 s61, s60, {256*2048}")
        fft(a)
        APL = int(OPT.get("apl", "0"))
        if APL == 0:
            for k in range(4):
                a(f"buffer_store_dwordx4 v[{FR+4*k}:{FR+4*k+3}], v41, {SR(S_AP)}, s{60 + (k >> 1)} offen offset:{(k & 1)*1024} sc1")
        else:
            for i in range(16): a(f"v_mov_b32 v{64+i}, v{80+i}")
            for i in range(16): a(f"v_mov_b32 v{80+i}, v{FR+i}")
            a("s_mov_b32 s95, s80")
            a("s_mov_b32 s80, s60")
        a(f"s_cmp_eq_u32 s{sLW}, 0")
        a(f"s_cselect_b32 s58, {L_U+2048}, s58")
        a("s_cselect_b32 s57, 0, 0x80008000")
        a(f"s_sub_u32 s60, 8, s{sLW}")
        a(f"s_cmp_eq_u32 s{sLW}, 0")
        a("s_cselect_b32 s60, 4, s60")
        a("s_lshl_b32 s60, s60, 20")
        a("s_add_u32 s60, s60, s59")
        a("s_add_u32 s86, s86, 1")
        a("s_cmp_ge_u32 s86, 2")
        a("s_cbranch_scc1 L_fft_done")
        a("s_barrier")
        a("s_branch L_fft")
        a.label("L_fft_done")
        if APL == 0: vm.ops += ["ap"] * 8
        def apst(k):
            so = 95 if k < 4 else 80
            if (k & 3) == 2: a(f"s_add_u32 s{so}, s{so}, {256*2048}")
            vm.op(f"buffer_store_dwordx4 v[{64+4*k}:{67+4*k}], v41, {SR(S_AP)}, s{so} offen offset:{(k & 1)*1024} sc1", "ap")
        APN = int(OPT.get("apn", "1"))
        QFN = 5 if APL == 0 else APL + (8 + APN - 1) // APN + 3
        g2_addr()
        a("v_mov_b32 v238, 0")
        a("v_and_b32 v10, 3, v1"); a("v_lshrrev_b32 v236, 2, v1"); a("v_and_b32 v236, 7, v236")
        a("v_lshlrev_b32 v236, 5, v236"); a("v_lshl_add_u32 v236, v10, 2, v236")
        sel_voff(a, 231, 238, 0)
        a(f"s_mov_b32 s97, {QF_G}")
        stamp(a, 14, wave=4)
        HLD = f"buffer_load_dword v237, v236, {SR(S_MISC)}, s78 offen sc1"
        HCHK = [f"v_cmp_ne_u32 vcc, s{sEP}, v237", "s_nop 1", "s_cmp_eq_u64 vcc, 0"]
        QLD2 = f"buffer_load_dwordx4 v[52:55], v240, {SR(S_MISC)}, s97 offen sc1"
        HN = int(OPT.get("hn", "2"))
        a(f"s_add_u32 s60, s{sC8}, 1")
        a("s_and_b32 s60, s60, 7")
        a("s_lshl_b32 s60, s60, 2")
        a("s_lshl_b32 s81, 15, s60")
        if NAT:
            a(f"s_cmp_eq_u32 s{sC8}, 0")
            a("s_cselect_b32 s81, 0xf0, 15")
        HCHK1 = [f"v_cmp_ne_u32 vcc, s{sEP}, v237", "s_nop 1", "s_and_b32 s60, vcc_lo, s81", "s_cmp_eq_u32 s60, 0"]
        if OPT.get("h1", "1") == "0": HCHK1 = HCHK
        LOOP_S, LOOP_E = (8, 20) if APL == 0 else (99, 99)
        n = 0
        while n < 36:
            if n == LOOP_S:
                a("s_mov_b32 s86, 0")
                a.label("L_h_g2loop")
                for u in range(4):
                    a("s_waitcnt vmcnt(16)")
                    a("s_barrier")
                    stage(n + u + 3)
                a("s_add_u32 s86, s86, 1")
                a(f"s_cmp_lt_u32 s86, {(LOOP_E-LOOP_S)//4}")
                a("s_cbranch_scc1 L_h_g2loop")
                vm.ops = [f"s{LOOP_E}"] * 8 + [f"s{LOOP_E+1}"] * 8 + [f"s{LOOP_E+2}"] * 8
                n = LOOP_E
                continue
            if n == 0: vm.wait("s3")
            elif n >= 3: vm.wait(f"s{n}")
            a("s_barrier")
            m = n + 3
            if n < HN:
                if n >= 1: stB(m)
                if n == HN - 1: vm.op(HLD, "hl")
            elif n == HN:
                vm.wait("hl")
                spin(a, "hp", [HLD], HCHK1, first_loaded=True)
                stamp(a, 15, wave=4)
                for mm in range(3, m): stA(mm)
                stage(m)
            elif m < 36:
                if m == 7:
                    vm.wait("hl")
                    spin(a, "hp2", [HLD], HCHK, first_loaded=True)
                if m == 28:
                    vm.wait("ql")
                    spin(a, "qp", [QLD2], QCHK, first_loaded=True)
                stage(m)
            if m == 6: vm.op(HLD, "hl")
            if APL and n >= APL:
                for k in range((n - APL) * APN, min(8, (n - APL + 1) * APN)): apst(k)
            if n == QFN:
                li = lambda t: max(i for i, x in enumerate(vm.ops) if x == t)
                assert li("ap") < li(f"s{QFN}")
                a("s_mov_b64 exec, 1")
                vm.op(f"buffer_store_dword v60, v231, {SR(S_MISC)}, s93 offen sc1", "qf")
                a("s_mov_b64 exec, -1")
            if m == 25: vm.op(QLD2, "ql")
            n += 1
        htrace_store(a)
        a("s_endpgm")

L_HAND = 2 * G2_STAGE
def epi_setup(role):
    L16 = 240
    return [
        "v_lshrrev_b32 v10, 4, v1", "v_lshlrev_b32 v10, 4, v10",
        f"s_mul_i32 s48, s{sNH}, 384", f"s_add_u32 s48, s48, {L_CSUM}", "v_add_u32 v11, s48, v10",
        f"s_lshl_b32 s48, s{sNH}, 6", f"s_add_u32 s48, s48, {L_CSUM+768}", "v_add_u32 v12, s48, v10",
        "v_and_b32 v10, 15, v1", "v_lshlrev_b32 v10, 3, v10",
        f"s_lshl_b32 s48, s{sMH}, 9", f"s_add_u32 s48, s48, {L_STAT + role*256}", "v_add_u32 v10, s48, v10",
        f"s_lshl_b32 s48, s{sMH}, 12", f"s_add_u32 s48, s48, {role*2048}", f"v_add_u32 v2, s48, v{L16}",
        f"s_add_u32 s48, s48, {3*G2_STAGE}", f"s_lshl_b32 s54, s{sNH}, 3", "s_add_u32 s54, s54, s48", f"v_add_u32 v3, s54, v{L16}",
        f"s_lshl_b32 s54, s{sNH}, {10 if SHARE else 11}", "s_add_u32 s48, s48, s54", f"v_add_u32 v4, s48, v{L16}",
        f"s_mul_i32 s48, s{sCT}, 7", f"s_mul_i32 s49, s{sNH}, 3", "s_add_u32 s49, s49, s48",
        "s_lshl_b32 s49, s49, 13", f"s_lshl_b32 s53, s{sTILE}, 20", "s_add_u32 s49, s49, s53",
        "s_add_u32 s50, s49, 8192", "s_add_u32 s51, s49, 16384",
        "s_add_u32 s52, s48, 6", "s_lshl_b32 s52, s52, 13", "s_add_u32 s52, s52, s53",
        "s_add_u32 s52, s52, s54", f"v_mov_b32 v13, {L_ST8+64}",
        f"s_mul_i32 s48, s{sNH}, 40960", "v_add_u32 v6, s48, v2", f"s_lshl_b32 s48, s{sNH}, 14", "s_add_u32 s48, s48, 8192", "v_add_u32 v7, s48, v6"]

def shared_epilogue(a):
    NF = 2 if SHARE else 4
    a.label("L_epi")
    CB = 128; SB = 156; RL = 164
    a("ds_read_b32 v241, v13")
    for f in range(NF): a(f"ds_read_b64 v[{SB+2*f}:{SB+2*f+1}], v10 offset:{f*128}")
    a(f"ds_read_b128 v[{CB+24}:{CB+27}], v12")
    for nb in range(6): a(f"ds_read_b128 v[{CB+4*nb}:{CB+4*nb+3}], v11 offset:{nb*64}")
    a("s_waitcnt lgkmcnt(7)")
    for f in range(NF): a(f"v_rcp_f32 v{RL+2*f}, v{SB+2*f+1}")
    a("s_nop 0")
    for f in range(NF): a(f"v_mul_f32 v{RL+2*f}, {f2u(-LOG2E)}, v{RL+2*f}")
    a("s_waitcnt lgkmcnt(6)")
    def silu_ln(fs, accs, cs, temps, dsts):
        n = len(accs)
        S = lambda i: f"v[{SB+2*fs[i]}:{SB+2*fs[i]+1}]"
        R = lambda i: f"v[{RL+2*fs[i]}:{RL+2*fs[i]+1}]"
        for i in range(n):
            a(f"v_pk_fma_f32 v[{accs[i]}:{accs[i]+1}], v[{cs[i]}:{cs[i]+1}], {S(i)}, v[{accs[i]}:{accs[i]+1}] op_sel_hi:[1,0,1] neg_lo:[0,1,0] neg_hi:[0,1,0]")
        for i in range(n):
            a(f"v_pk_mul_f32 v[{temps[i]}:{temps[i]+1}], v[{accs[i]}:{accs[i]+1}], {R(i)} op_sel_hi:[1,0]")
        for i in range(n):
            a(f"v_exp_f32 v{temps[i]}, v{temps[i]}"); a(f"v_exp_f32 v{temps[i]+1}, v{temps[i]+1}")
        for i in range(n):
            a(f"v_pk_fma_f32 v[{temps[i]}:{temps[i]+1}], v[{temps[i]}:{temps[i]+1}], {S(i)}, {S(i)} op_sel:[0,1,1] op_sel_hi:[1,1,1]")
        for i in range(n):
            a(f"v_rcp_f32 v{temps[i]}, v{temps[i]}"); a(f"v_rcp_f32 v{temps[i]+1}, v{temps[i]+1}")
        for i in range(n):
            a(f"v_pk_mul_f32 v[{temps[i]}:{temps[i]+1}], v[{temps[i]}:{temps[i]+1}], v[{accs[i]}:{accs[i]+1}]")
        for i in range(n):
            a(f"v_cvt_pk_bf16_f32 v{dsts[i]}, v{temps[i]}, v{temps[i]+1}")
    TM = [184, 186, 188, 190]
    for h in range(NF // 2):
        fs = [2 * h, 2 * h, 2 * h + 1, 2 * h + 1]
        accs = [ACC + (f * 7 + 6) * 4 + 2 * (i & 1) for i, f in enumerate(fs)]
        d = 192 + 4 * h
        silu_ln(fs, accs, [CB + 24, CB + 26, CB + 24, CB + 26], TM, [d, d + 1, d + 2, d + 3])
        a(f"ds_write_b64 v3, v[{d}:{d+1}] offset:{2*h*1024}")
        a(f"ds_write_b64 v3, v[{d+2}:{d+3}] offset:{(2*h+1)*1024}")
    a("s_waitcnt lgkmcnt(0)")
    k = 0
    for pp in range(3):
        for f in range(NF):
            c = ACC + (f * 7 + 2 * pp) * 4
            d = 172 + (k & 1) * 4
            cc = CB + 8 * pp
            silu_ln([f] * 4, [c, c + 2, c + 4, c + 6], [cc, cc + 2, cc + 4, cc + 6], TM, [d, d + 1, d + 2, d + 3])
            a(f"ds_write_b128 v{7 if pp == 1 else 6}, v[{d}:{d+3}] offset:{f*1024 + (32768 if pp == 2 else 0)}")
            a(f"buffer_store_dwordx4 v[{d}:{d+3}], v2, {SR(S_HF)}, s{49+pp} offen offset:{f*1024} sc1")
            k += 1
            if k == EK:
                a("s_barrier")
                for i in range(NF // 2): a(f"ds_read_b128 v[{192+4*i}:{195+4*i}], v4 offset:{i*1024}")
            if k == EK + 1:
                a("s_waitcnt lgkmcnt(0)")
                for i in range(NF // 2): a(f"buffer_store_dwordx4 v[{192+4*i}:{195+4*i}], v2, {SR(S_HF)}, s52 offen offset:{i*1024} sc1")
    if not SHARE:
        a("s_branch L_epi_ret_c")
        return
    a(f"s_cmp_ge_u32 s{sWV}, 4")
    a("s_cbranch_scc1 L_epi_ret_h")
    a("s_branch L_epi_ret_c")

def tlb_touch(a):
    if OPT.get("tlb", "0") == "0": return
    sh = int(OPT.get("tlbsh", "20"))
    lab = a.uid("tlb")
    a(f"s_cmp_lg_u32 s{sLW}, 1")
    a(f"s_cbranch_scc1 {lab}")
    a(f"v_lshlrev_b32 v10, {sh}, v1")
    a("s_lshr_b32 s60, s2, 3")
    for i, sd in enumerate((S_CR, S_CI, S_W1, S_W2, S_OUT, S_HF, S_AP, S_MISC)):
        l2 = a.uid("tlb")
        a(f"s_cmp_lg_u32 s60, {9+i}")
        a(f"s_cbranch_scc1 {l2}")
        a(f"buffer_load_dword v243, v10, {SR(sd)}, 0 offen sc1")
        a.label(l2)
    a.label(lab)

def consumer_pre(a):
    tlb_touch(a)
    w1_touch_voff(a, 242)
    if TV == "a":
        a(f"s_cmp_eq_u32 s{sLW}, 3")
        a("s_mov_b32 s49, 0")
    else:
        a(f"s_cmp_ge_u32 s{sLW}, 2")
        a(f"s_cselect_b32 s49, 1, 0")
        a(f"s_and_b32 s49, s49, s{sLW}")
        a(f"s_xor_b32 s49, s49, 1")
        a(f"s_mul_i32 s49, s49, {2*SLAB}")
        a(f"s_cmp_ge_u32 s{sLW}, 2")
    a("s_cselect_b64 s[62:63], -1, 0")
    a("v_cndmask_b32 v11, v10, v242, s[62:63]")
    a(f"buffer_load_dword v241, v11, {SR(S_W1)}, s49 offen")
    a("v_and_b32 v10, 15, v1")
    a("v_lshrrev_b32 v11, 4, v1")
    a("v_and_b32 v12, 7, v1")
    a("v_xor_b32 v11, v11, v12")
    a("v_lshlrev_b32 v2, 7, v10")
    a("v_lshl_add_u32 v2, v11, 4, v2")
    a(f"s_lshl_b32 s48, s{sMH}, 13")
    a("v_add_u32 v2, s48, v2")
    a("v_xor_b32 v15, 64, v2")
    g1_bfrag_addrs(a, sNH, 3, 4, 5, 10, 11)
    a(f"s_add_u32 s97, s{sLW}, {1 if TV == 'a' else 2}")
    a(f"s_mul_i32 s97, s97, {2*SLAB}")
    a("v_bfrev_b32 v10, 1")
    a("v_cndmask_b32 v242, v242, v10, s[62:63]")
    a(f"s_mov_b32 s{sSLOT}, 0")
    a("v_mov_b32 v6, v2"); a("v_mov_b32 v7, v3"); a("v_mov_b32 v8, v4"); a("v_mov_b32 v9, v5"); a("v_mov_b32 v14, v15")

def gen_consumer(a):
    a.label("L_consumer")
    SET = [128, 172]
    L16 = 240
    a(f"s_lshl_b32 s48, s{sLW}, 12")
    a(f"s_add_u32 s48, s48, {L_XN}")
    a(f"v_add_u32 v10, s48, v{L16}")
    def reads(st, kb):
        L = []; b = SET[st]
        order = [("a", 0), ("w", 0), ("w", 1), ("a", 1), ("w", 2), ("w", 3), ("a", 2), ("w", 4), ("w", 5), ("a", 3), ("w", 6)]
        for kind, i in order:
            if kind == "a":
                L.append(f"ds_read_b128 v[{b+4*i}:{b+4*i+3}], v{14 if kb else 6} offset:{i*2048}")
            else:
                for hh in range(2):
                    d = b + 16 + 4 * i + 2 * hh
                    ro = (32 * kb + 16 * hh) * 448
                    if i < 6: L.append(f"ds_read_b64_tr_b16 v[{d}:{d+1}], v{7 + (i & 1)} offset:{ro + i*32}")
                    else: L.append(f"ds_read_b64_tr_b16 v[{d}:{d+1}], v9 offset:{ro}")
        return L
    def mfmas(st, zero=False):
        b = SET[st]; L = []
        for f in range(4):
            for nb in range(7):
                c = ACC + (f * 7 + nb) * 4
                C = "0" if zero else f"v[{c}:{c+3}]"
                L.append(f"v_mfma_f32_16x16x32_bf16 v[{c}:{c+3}], v[{b+16+4*nb}:{b+19+4*nb}], v[{b+4*f}:{b+3+4*f}], {C}")
        return L
    def adv():
        return [f"s_add_u32 s{sSLOT}, s{sSLOT}, {G1_STAGE}", f"s_cmp_eq_u32 s{sSLOT}, {3*G1_STAGE}", f"s_cselect_b32 s{sSLOT}, 0, s{sSLOT}",
                f"v_add_u32 v6, s{sSLOT}, v2", f"v_add_u32 v7, s{sSLOT}, v3", f"v_add_u32 v8, s{sSLOT}, v4", f"v_add_u32 v9, s{sSLOT}, v5", f"v_add_u32 v14, s{sSLOT}, v15"]
    stamp(a, 12)
    a(f"s_setprio {CPRIO}")
    if STAMP: a("s_mov_b32 s97, 0")
    a("s_waitcnt lgkmcnt(0)")
    a("s_barrier")
    stamp(a, 1)
    trace_mark(a)
    for r in reads(0, 0): a(r)
    a("s_mov_b32 s86, 0")
    a("s_waitcnt lgkmcnt(0)")
    trace_commit(a)
    interleave(a, mfmas(0, True), reads(1, 1) + adv())
    a("s_branch L_c_g1mid")
    a.label("L_c_g1loop")
    U1 = 3
    for u in range(U1):
        a("s_waitcnt lgkmcnt(0)")
        trace_commit(a)
        interleave(a, mfmas(0), reads(1, 1) + adv())
        if u == 0: a.label("L_c_g1mid")
        a("s_waitcnt lgkmcnt(0)")
        a("s_barrier")
        trace_mark(a)
        tail = ["s_add_u32 s86, s86, 1", f"s_cmp_lt_u32 s86, {15//U1}"] if u == U1 - 1 else []
        interleave(a, mfmas(1), reads(0, 0) + tail)
    a("s_cbranch_scc1 L_c_g1loop")
    a("s_waitcnt lgkmcnt(0)")
    trace_commit(a)
    interleave(a, mfmas(0), reads(1, 1))
    a("s_waitcnt lgkmcnt(0)")
    hand = [f"s_lshl_b32 s48, s{sLW}, 14", f"s_add_u32 s48, s48, {L_HAND}", f"v_add_u32 v5, s48, v{L16}"]
    interleave(a, mfmas(1), hand + epi_setup(0), per=2)
    a("s_barrier")
    stamp(a, 2)
    a(f"s_setprio {EPRIO}")
    if SHARE:
        for i in range(14):
            c = ACC + 56 + 4 * i
            a(f"ds_write_b128 v5, v[{c}:{c+3}] offset:{i*1024}")
        a("s_waitcnt lgkmcnt(0)")
        a("s_barrier")
    a("s_branch L_epi")
    a.label("L_epi_ret_c")
    stamp(a, 3)
    a("v_readfirstlane_b32 s96, v241")
    ACO = 32; ACY = 96; SET2 = [128, 160]; XO = 192; PB = 208
    a(f"s_lshl_b32 s48, s{sMH}, 12")
    a(f"s_lshl_b32 s49, s{sKH}, 11")
    a("s_add_u32 s50, s48, s49")
    a(f"v_add_u32 v2, s50, v{L16}")
    a("s_xor_b32 s49, s49, 2048")
    a("s_add_u32 s50, s48, s49")
    a(f"v_add_u32 v3, s50, v{L16}")
    a("v_lshrrev_b32 v11, 2, v1")
    a("v_and_b32 v12, 7, v11")
    a("v_lshlrev_b32 v11, 8, v11")
    a("v_and_b32 v13, 3, v1")
    a("v_lshl_add_u32 v11, v13, 3, v11")
    a("v_add_u32 v11, 16384, v11")
    a(f"s_lshl_b32 s48, s{sNH}, 2")
    a("v_xor_b32 v12, s48, v12")
    for nb in range(4):
        a(f"v_xor_b32 v13, {nb}, v12")
        a(f"v_lshl_add_u32 v{4+nb}, v13, 5, v11")
    for i in range(96): a(f"v_mov_b32 v{ACO+i}, 0")
    a(f"s_mov_b32 s{sSLOT}, 0")
    a("v_mov_b32 v14, v2"); a("v_mov_b32 v15, v3")
    for nb in range(4): a(f"v_mov_b32 v{16+nb}, v{4+nb}")
    late = [
        "v_mov_b32 v20, 0",
        f"s_lshl_b32 s48, s{sLW}, 2",
        "s_lshl_b32 s80, s2, 7", "s_add_u32 s80, s80, s48", f"s_add_u32 s80, s80, {XFLAG_G}", "s_xor_b32 s81, s80, 512",
        "v_and_b32 v9, 7, v1", "v_lshlrev_b32 v9, 19, v9", "v_bfe_u32 v10, v1, 3, 1", "v_lshl_add_u32 v9, v10, 14, v9",
        "v_bfe_u32 v10, v1, 4, 1", "v_lshl_add_u32 v9, v10, 5, v9", "v_bfe_u32 v10, v1, 5, 1", "v_lshl_add_u32 v9, v10, 4, v9",
        f"s_lshl_b32 s48, s{sJH}, 4", f"s_lshl_b32 s49, s{sMH}, 3", "s_add_u32 s48, s48, s49", f"s_lshl_b32 s49, s{sKH}, 2",
        "s_add_u32 s48, s48, s49", "s_lshl_b32 s48, s48, 3", f"s_add_u32 s48, s48, s{sT1}", "s_lshl_b32 s48, s48, 11",
        f"s_lshl_b32 s49, s{sC8}, 8", "s_add_u32 s48, s48, s49", f"s_lshl_b32 s49, s{sNH}, 7", "s_add_u32 s91, s48, s49",
        f"s_add_u32 s92, s91, {16*2048}", "s_lshl_b32 s93, s2, 2", f"s_add_u32 s93, s93, s{sLW}", "s_lshl_b32 s93, s93, 12",
        f"s_add_u32 s93, s93, {XB_G}", f"s_xor_b32 s94, s93, {4*4*4096}"]
    for l in late: a(l)
    zero_o = [f"v_mov_b32 v{ACO+i}, 0" for i in range(64)]
    def adv2():
        return [f"s_add_u32 s{sSLOT}, s{sSLOT}, {G2_STAGE}", f"s_and_b32 s{sSLOT}, s{sSLOT}, {4*G2_STAGE-1}",
                f"v_add_u32 v14, s{sSLOT}, v2", f"v_add_u32 v15, s{sSLOT}, v3"] + [f"v_add_u32 v{16+nb}, s{sSLOT}, v{4+nb}" for nb in range(4)]
    def reads2(st, kb, y=False):
        b = SET2[st]; L = []
        for i in range(4):
            if not (y and i >= 2):
                L.append(f"ds_read_b128 v[{b+4*i}:{b+4*i+3}], v{14 + (i >> 1)} offset:{kb*8192 + (i & 1)*1024}")
            for hh in range(2):
                d = b + 16 + i * 4 + hh * 2
                L.append(f"ds_read_b64_tr_b16 v[{d}:{d+1}], v{16+i} offset:{kb*8192 + hh*4096}")
        return L
    def mfmas2(st, y=False):
        b = SET2[st]; L = []
        for fp in range(2 if y else 4):
            for nb in range(4):
                c = (ACY if y else ACO) + (fp * 4 + nb) * 4
                w = b + 16 + nb * 4; x = b + fp * 4
                L.append(f"v_mfma_f32_16x16x32_bf16 v[{c}:{c+3}], v[{w}:{w+3}], v[{x}:{x+3}], v[{c}:{c+3}]")
        return L
    xl = []
    for fp in range(2):
        for pp in range(2):
            d = XO + (fp * 2 + pp) * 4
            xl.append(f"buffer_load_dwordx4 v[{d}:{d+3}], v9, {SR(S_X)}, s{91+fp} offen offset:{pp*64}")
    stamp(a, 5)
    a(f"s_setprio {CPRIO}")
    a("s_waitcnt lgkmcnt(0)")
    a("s_barrier")
    stamp(a, 6)
    trace_mark(a)
    for r in reads2(0, 0): a(r)
    def step(y_cur, y_next, post=(), last=False, e1=()):
        a("s_waitcnt lgkmcnt(0)")
        trace_commit(a)
        interleave(a, mfmas2(0, y_cur), reads2(1, 1, y_cur) + ([] if last else adv2()) + list(e1), per=2)
        a("s_waitcnt lgkmcnt(0)")
        if not last:
            a("s_barrier")
            trace_mark(a)
            interleave(a, mfmas2(1, y_cur), reads2(0, 0, y_next) + list(post), per=2)
        else:
            interleave(a, mfmas2(1, y_cur), [])
    U2 = 3
    FS = int(OPT.get("fs", "1"))
    for s in range(3):
        step(False, False, e1=(["s_waitcnt vmcnt(0)", "s_mov_b64 exec, 1", f"buffer_store_dword v241, v20, {SR(S_MISC)}, s79 offen sc1", "s_mov_b64 exec, -1"] if s == FS else []),
             post=(xl if s == 2 else []))
    a("s_mov_b32 s86, 1")
    a.label("L_c_g2loop")
    for u in range(U2):
        step(False, False, post=(["s_add_u32 s86, s86, 1", f"s_cmp_lt_u32 s86, {27//U2}"] if u == U2 - 1 else []))
    a("s_cbranch_scc1 L_c_g2loop")
    step(False, True)
    stamp(a, 7)
    a(f"s_mov_b32 s60, {f2u(-LOG2E)}")
    a("s_mov_b32 s61, s60")
    xs = []
    for q in range(4):
        for i in range(4):
            c = ACO + 32 + q * 8 + 2 * i
            xs.append(f"v_cvt_pk_bf16_f32 v{224+4*q+i}, v{c}, v{c+1}")
        xs.append(f"buffer_store_dwordx4 v[{224+4*q}:{227+4*q}], v{L16}, {SR(S_MISC)}, s93 offen offset:{q*1024} sc1")
    XLD = f"buffer_load_dword v22, v20, {SR(S_MISC)}, s81 offen sc1"
    pls = [f"buffer_load_dwordx4 v[{PB+4*q}:{PB+4*q+3}], v{L16}, {SR(S_MISC)}, s94 offen offset:{q*1024} sc1" for q in range(4)]
    XF_S, XP_S = int(OPT.get("xfs", "30")), int(OPT.get("xps", "34"))
    for s in range(28, 36):
        e1 = []; post = []
        if s == 28: e1 = xs
        if s == XF_S: e1 = ["s_waitcnt vmcnt(0)", "s_mov_b64 exec, 1", f"buffer_store_dword v241, v20, {SR(S_MISC)}, s80 offen sc1", "s_mov_b64 exec, -1"]
        if s == XP_S - 1: post = [XLD]
        if s == XP_S:
            a("s_waitcnt vmcnt(0)")
            spin(a, "xp", [XLD], ["v_readfirstlane_b32 s62, v22", "s_nop 0", "s_cmp_eq_u32 s62, s96"], first_loaded=True)
            e1 = pls
        step(True, True, post=post, last=(s == 35), e1=e1)
    stamp(a, 8)
    a("s_setprio 0")
    for q in range(4):
        a(f"s_waitcnt vmcnt({3-q})")
        for i in range(4):
            c = ACO + q * 8 + 2 * i; p = PB + 4 * q + i
            a(f"v_lshlrev_b32 v{144+2*i}, 16, v{p}")
            a(f"v_and_b32 v{145+2*i}, 0xffff0000, v{p}")
        for i in range(4):
            c = ACO + q * 8 + 2 * i
            a(f"v_pk_add_f32 v[{c}:{c+1}], v[{c}:{c+1}], v[{144+2*i}:{145+2*i}]")
    stamp(a, 9)
    for h in range(2):
        srcs = [ACO + 2 * i for i in range(8 * h, 8 * h + 8)]; temps = [128 + 2 * i for i in range(8)]
        for i in range(8): a(f"v_pk_mul_f32 v[{temps[i]}:{temps[i]+1}], v[{srcs[i]}:{srcs[i]+1}], s[60:61]")
        for i in range(8): a(f"v_exp_f32 v{temps[i]}, v{temps[i]}"); a(f"v_exp_f32 v{temps[i]+1}, v{temps[i]+1}")
        for i in range(8): a(f"v_pk_add_f32 v[{temps[i]}:{temps[i]+1}], v[{temps[i]}:{temps[i]+1}], 1.0 op_sel_hi:[1,0]")
        for i in range(8): a(f"v_rcp_f32 v{temps[i]}, v{temps[i]}"); a(f"v_rcp_f32 v{temps[i]+1}, v{temps[i]+1}")
        for i in range(8):
            y = ACY + 2 * (8 * h + i)
            a(f"v_pk_mul_f32 v[{srcs[i]}:{srcs[i]+1}], v[{srcs[i]}:{srcs[i]+1}], v[{y}:{y+1}]")
        for i in range(8): a(f"v_pk_mul_f32 v[{temps[i]}:{temps[i]+1}], v[{temps[i]}:{temps[i]+1}], v[{srcs[i]}:{srcs[i]+1}]")
        for i in range(8): a(f"v_cvt_pk_bf16_f32 v{160+8*h+i}, v{temps[i]}, v{temps[i]+1}")
        a.nop(2)
        fp = h
        for pp in range(2):
            b0 = 160 + (fp * 4 + 2 * pp) * 2
            a(f"v_permlane16_swap_b32 v{b0}, v{b0+2}")
            a(f"v_permlane16_swap_b32 v{b0+1}, v{b0+3}")
        for q in (2 * h, 2 * h + 1):
            for i in range(4):
                p = 160 + q * 4 + i; x = XO + q * 4 + i
                t = 144 + 4 * (i & 1)
                a(f"v_lshlrev_b32 v{t}, 16, v{p}")
                a(f"v_and_b32 v{t+1}, 0xffff0000, v{p}")
                a(f"v_lshlrev_b32 v{t+2}, 16, v{x}")
                a(f"v_and_b32 v{t+3}, 0xffff0000, v{x}")
                a(f"v_pk_add_f32 v[{t}:{t+1}], v[{t}:{t+1}], v[{t+2}:{t+3}]")
                a(f"v_cvt_pk_bf16_f32 v{x}, v{t}, v{t+1}")
            d = XO + q * 4
            a(f"buffer_store_dwordx4 v[{d}:{d+3}], v9, {SR(S_OUT)}, s{91+(q>>1)} offen offset:{(q&1)*64}")
    if STAMP: a("s_waitcnt vmcnt(0)")
    stamp(a, 10)
    trace_store(a)

def main(out):
    for p in range(448): assert (p * 2341) >> 16 == p // 28
    for p in range(64): assert (p * 4682) >> 16 == p // 14
    a = Asm()
    gen(a)
    for p in check(a.lines): print("HAZARD", p)
    vg = 256 if (STAMP or DBGST) else 244
    txt = f"""; generated by work/gen17.py
; @launch grid=(256,1,1) block=(512,1,1) lds={LDS_TOTAL}
.amdgcn_target "amdgcn-amd-amdhsa--gfx950"
.text
.globl {NAME}_kernel
.p2align 8
.type {NAME}_kernel,@function
""" + a.text() + f""".section .rodata,"a"
.p2align 6
.amdhsa_kernel {NAME}_kernel
  .amdhsa_next_free_vgpr {vg}
  .amdhsa_next_free_sgpr 102
  .amdhsa_accum_offset {vg}
  .amdhsa_group_segment_fixed_size 0
  .amdhsa_kernarg_size 88
  .amdhsa_user_sgpr_count 2
  .amdhsa_user_sgpr_kernarg_segment_ptr 1
  .amdhsa_system_sgpr_workgroup_id_x 1
.end_amdhsa_kernel
"""
    open(out, "w").write(txt)
    print("lines", len(a.lines), "lds", LDS_TOTAL)

if __name__ == "__main__":
    args = [x for x in sys.argv[1:] if not x.startswith("--") and "=" not in x]
    main(args[0] if args else f"cdna_kernels/{NAME}.s")
```
